```python
import torch

def _softmax(x, axis=-1):
    return torch.softmax(x, dim=axis)

def _gelu(x):
    return torch.nn.functional.gelu(x, approximate='tanh')

def _silu(x):
    return torch.nn.functional.silu(x)

def _sigmoid(x):
    return torch.sigmoid(x)

def _layernorm(x, axis=-1, eps=1e-05):
    m = x.mean(dim=axis, keepdim=True)
    v = x.var(dim=axis, keepdim=True, unbiased=False)
    return (x - m) / torch.sqrt(v + eps)

def _scatter_add(tgt, idx, src, axis=0):
    return tgt.clone().index_add_(axis, idx, src)

def _segment_sum(src, seg, n):
    out = torch.zeros((n,) + src.shape[1:], dtype=src.dtype)
    return out.index_add_(0, seg, src)

def _pad(x, pw):
    flat = tuple((v for pair in reversed(pw) for v in pair))
    return torch.nn.functional.pad(x, flat)
kernel_name = 'adaLN_cond__memory_aug_recurrent_mem_tr__dense_activation_squared_relu__prompt'

def setup_inputs():

    _w = lambda a: (lambda t: t.to(torch.bfloat16) if t.is_floating_point() else t)(torch.as_tensor(a))

    def _A_setup():
        B, S, Dm = (1, 2048, 640)
        H, Dh = (32, 192)
        M, seg = (8, 32)
        seg = min(seg, S)
        S = S // seg * seg
        return {'x': _w((lambda *s: torch.randn(*s, dtype=torch.bfloat16) * 0.05)(B, S, Dm)), 'mem0': _w((lambda *s: torch.randn(*s, dtype=torch.bfloat16) * 0.4)(B, M, Dm)), 'Wq': _w((lambda *s: torch.randn(*s, dtype=torch.bfloat16) * 3.2)(Dm, H, Dh) * Dm ** (-0.5)), 'Wk': _w((lambda *s: torch.randn(*s, dtype=torch.bfloat16) * 3.2)(Dm, H, Dh) * Dm ** (-0.5)), 'Wv': _w((lambda *s: torch.randn(*s, dtype=torch.bfloat16) * 0.4)(Dm, H, Dh) * Dm ** (-0.5)), 'Wo': _w((lambda *s: torch.randn(*s, dtype=torch.bfloat16) * 0.4)(H, Dh, Dm) * (H * Dh) ** (-0.5)), 'seg_len': seg}
    _A_in = _A_setup()

    def _B_setup():
        B, S, D, F = (1, 2048, 640, 1536)
        return {'x': _w((lambda *s: torch.randn(*s, dtype=torch.bfloat16) * 0.05)(B, S, D)), 'w1': _w((lambda *s: torch.randn(*s, dtype=torch.bfloat16) * 0.05)(D, F)), 'b1': _w((lambda *s: torch.randn(*s, dtype=torch.bfloat16) * 0.4)(F)), 'w2': _w((lambda *s: torch.randn(*s, dtype=torch.bfloat16) * 0.05)(F, D)), 'b2': _w((lambda *s: torch.randn(*s, dtype=torch.bfloat16) * 3.2)(D))}
    _B_in = _B_setup()
    return {'A_x': _A_in['x'], 'A_mem0': _A_in['mem0'], 'A_Wq': _A_in['Wq'], 'A_Wk': _A_in['Wk'], 'A_Wv': _A_in['Wv'], 'A_Wo': _A_in['Wo'], 'A_seg_len': _A_in['seg_len'], 'B_x': _B_in['x'], 'B_w1': _B_in['w1'], 'B_b1': _B_in['b1'], 'B_w2': _B_in['w2'], 'B_b2': _B_in['b2'], 'c': _w((lambda *s: torch.randn(*s, dtype=torch.bfloat16) * 0.1)(1, 640) * 8.0), 'w_mod': _w((lambda *s: torch.randn(*s, dtype=torch.bfloat16) * 0.1)(640, 6 * 640) * 640 ** (-0.5) * 8.0)}

def reference(A_x, A_mem0, A_Wq, A_Wk, A_Wv, A_Wo, A_seg_len, B_x, B_w1, B_b1, B_w2, B_b2, c, w_mod):

    def _A_ref(x, mem0, Wq, Wk, Wv, Wo, seg_len):
        B, S, Dm = x.shape
        H, Dh = (Wq.shape[1], Wq.shape[2])
        M = mem0.shape[1]
        scale = Dh ** (-0.5)
        n_seg = S // seg_len
        L = M + seg_len
        idx = torch.arange(L)
        mask = (idx[:, None] < M) | (idx[:, None] >= idx[None, :])
        mem = mem0
        outs = []
        for s in range(n_seg):
            xs = x[:, s * seg_len:(s + 1) * seg_len, :].clone()
            h = torch.concatenate([mem, xs], axis=1)
            q = torch.einsum('btd,dhe->bhte', h, Wq)
            k = torch.einsum('btd,dhe->bhte', h, Wk)
            v = torch.einsum('btd,dhe->bhte', h, Wv)
            scores = torch.einsum('bhqe,bhke->bhqk', q, k) * scale
            scores = torch.where(mask[None, None], scores, -1000000000.0)
            p = _softmax(scores, axis=-1)
            o = torch.einsum('bhqk,bhke->bhqe', p, v)
            o = torch.einsum('bhte,hed->btd', o, Wo)
            mem = o[:, :M, :].clone()
            outs.append(o[:, M:, :])
        return torch.concatenate(outs, axis=1)

    def _B_ref(x, w1, b1, w2, b2):
        h = torch.einsum('bsd,df->bsf', x, w1) + b1
        zero = torch.zeros_like(h)
        r = torch.where(h > zero, h, zero)
        h = r * r
        out = torch.einsum('bsf,fd->bsd', h, w2) + b2
        return out
    x = A_x
    mod = (_silu(c) @ w_mod).reshape(c.shape[0], 6, 1, -1)
    sa, ca, ga, sb, cb, gb = (mod[:, 0].clone(), mod[:, 1].clone(), mod[:, 2].clone(), mod[:, 3].clone(), mod[:, 4].clone(), mod[:, 5].clone())
    h = _layernorm(x, axis=-1) * (1 + ca) + sa
    x = x + ga * _A_ref(h, A_mem0, A_Wq, A_Wk, A_Wv, A_Wo, A_seg_len)
    h = _layernorm(x, axis=-1) * (1 + cb) + sb
    x = x + gb * _B_ref(h, B_w1, B_b1, B_w2, B_b2)
    return x
```

```python
class Asm:
    def __init__(self):
        self.lines = []
        self.lbl = 0
    def __call__(self, s):
        for ln in s.strip('\n').split('\n'):
            self.lines.append('    ' + ln.strip())
    def label(self, name):
        self.lines.append(name + ':')
    def newlabel(self, base='L'):
        self.lbl += 1
        return f'{base}_{self.lbl}'
    def raw(self, s):
        self.lines.append(s)
    def text(self):
        return '\n'.join(self.lines) + '\n'

def vr(b, n=1):
    return f'v{b}' if n == 1 else f'v[{b}:{b+n-1}]'
def ar(b, n=1):
    return f'a{b}' if n == 1 else f'a[{b}:{b+n-1}]'
def sr(b, n=1):
    return f's{b}' if n == 1 else f's[{b}:{b+n-1}]'
def reg(b, n=1):
    if b >= 256:
        return ar(b - 256, n)
    assert b + n <= 256
    return vr(b, n)

def kernel_header(A, name):
    A.raw('.globl ' + name)
    A.raw('.p2align 8')
    A.raw(f'.type {name},@function')
    A.label(name)

def kernel_desc(name, nvgpr, nagpr=0, nsgpr=102):
    acc = (nvgpr + 3) // 4 * 4
    if nagpr:
        total = acc + nagpr
    else:
        total = nvgpr
    return f'''.section .rodata,"a"
.p2align 6
.amdhsa_kernel {name}
  .amdhsa_next_free_vgpr {total}
  .amdhsa_next_free_sgpr {nsgpr}
  .amdhsa_accum_offset {acc}
  .amdhsa_group_segment_fixed_size 0
  .amdhsa_kernarg_size 136
  .amdhsa_user_sgpr_count 2
  .amdhsa_user_sgpr_kernarg_segment_ptr 1
  .amdhsa_system_sgpr_workgroup_id_x 1
.end_amdhsa_kernel
.text
'''

KA = dict(x=0, mem0=8, Wq=16, Wk=24, Wv=32, Wo=40, seg=48, Bx=56, w1=64, b1=72, w2=80, b2=88,
          c=96, wmod=104, out=112, dbg=120, ws=128)
SZ = dict(x=2048*640*2, mem0=8*640*2, Wq=640*6144*2, Wk=640*6144*2, Wv=640*6144*2, Wo=6144*640*2,
          w1=640*1536*2, b1=1536*2, w2=1536*640*2, b2=640*2, c=640*2, wmod=640*3840*2,
          out=2048*640*2, dbg=256, ws=268435456)

def load_srd(A, name, s):
    A(f's_load_dwordx2 s[{s}:{s+1}], s[0:1], {KA[name]}')
def finish_srd(A, name, s):
    A(f's_and_b32 s{s+1}, s{s+1}, 0xffff')
    A(f's_mov_b32 s{s+2}, {SZ[name]}')
    A(f's_mov_b32 s{s+3}, 0x00020000')

def srds(A, pairs):
    for n, s in pairs:
        load_srd(A, n, s)
    A('s_waitcnt lgkmcnt(0)')
    for n, s in pairs:
        finish_srd(A, n, s)

def magic_div(A, sq, sn, d, stmp=None):
    m = -(-(1 << 32) // d)
    A(f's_mul_hi_u32 s{sq}, s{sn}, {m}')
```

```python
from asmlib import *
from layout import WS
from k_post import SCALE, LOG2E

SPIN = 400000
MEMLDS = 0
RED = 10240
WLDS = 16384
TL = 16384
LDS_CHAIN = WLDS + 4 * 18 * 1024

class Lgkm:
    def __init__(s, A): s.A = A; s.q = []
    def issue(s, tag, text): s.A(text); s.q.append(tag)
    def need(s, tag):
        if tag in s.q:
            i = s.q.index(tag)
            n = len(s.q) - 1 - i
            s.A(f's_waitcnt lgkmcnt({min(n,15)})')
            s.q = s.q[i + 1:]

def gather_mem(A, tag, sstep):
    A(f's_mul_i32 s41, s{sstep}, 10240')
    A(f's_add_u32 s41, s41, {WS["MEMB"]}')
    A('s_mov_b32 s42, 0')
    A.label(f'L_{tag}_poll')
    A('buffer_load_dwordx4 v[12:15], v4, s[4:7], s41 offen sc1')
    A('buffer_load_dwordx4 v[16:19], v4, s[4:7], s41 offen offset:1024 sc1')
    A('s_mov_b64 exec, s[60:61]')
    A('buffer_load_dwordx4 v[20:23], v4, s[4:7], s41 offen offset:2048 sc1')
    A('s_mov_b64 exec, -1')
    A('s_waitcnt vmcnt(0)')
    A('v_max3_u32 v24, v12, v13, v14')
    A('v_max3_u32 v25, v15, v16, v17')
    A('v_max3_u32 v24, v24, v18, v19')
    A('v_max3_u32 v25, v25, v20, v21')
    A('v_max3_u32 v24, v24, v22, v23')
    A('v_max_u32 v24, v24, v25')
    A('v_cmp_eq_u32 vcc, -1, v24')
    A(f's_cbranch_vccz L_{tag}_ok')
    A('s_add_u32 s42, s42, 1')
    A('s_cmp_lt_u32 s42, s44')
    A(f's_cbranch_scc1 L_{tag}_poll')
    A('s_mov_b32 s44, 0')
    A.label(f'L_{tag}_ok')
    A(f'ds_write_b128 v4, v[12:15] offset:{MEMLDS}')
    A(f'ds_write_b128 v4, v[16:19] offset:{MEMLDS+1024}')
    A('s_mov_b64 exec, s[60:61]')
    A(f'ds_write_b128 v4, v[20:23] offset:{MEMLDS+2048}')
    A('s_mov_b64 exec, -1')
    A('s_waitcnt lgkmcnt(0)')
    A('s_barrier')

def dpp_red32(A, op, v, t):
    for c in ['quad_perm:[1,0,3,2]', 'quad_perm:[2,3,0,1]', 'row_half_mirror', 'row_mirror']:
        A('s_nop 1')
        A(f'{op}_dpp v{v}, v{v}, v{v} {c} row_mask:0xf bank_mask:0xf')
    A(f'v_mov_b32 v{t}, v{v}')
    A('s_nop 1')
    A(f'v_permlane16_swap_b32 v{v}, v{t}')
    A('s_nop 1')
    A(f'{op} v{v}, v{v}, v{t}')

def gen_chain(A):
    name = 'k_chain_kernel'
    kernel_header(A, name)
    A('s_cmp_ge_u32 s2, 112')
    A('s_cbranch_scc1 L_ch_end')
    srds(A, [('ws', 4)])
    A('v_lshrrev_b32 v1, 6, v0')
    A('s_nop 0')
    A('v_readfirstlane_b32 s20, v1')
    A('v_and_b32 v1, 63, v0')
    A('v_lshlrev_b32 v2, 4, v1')
    A('s_mul_i32 s21, s20, 2560')
    A('v_add_u32 v4, s21, v2')
    for r in range(20, 24):
        A(f'v_mov_b32 v{r}, 0')
    A(f's_mov_b32 s44, {SPIN}')
    A('s_mov_b32 s60, -1')
    A('s_mov_b32 s61, 0')
    A('s_mov_b32 s62, 0xffff')
    A('s_mov_b32 s63, 0')
    A('s_mov_b32 s40, 0')
    A('s_cmp_ge_u32 s2, 32')
    A('s_cbranch_scc1 L_ch_s2')
    gen_s1(A)
    A.label('L_ch_s2')
    gen_s2(A)
    A.label('L_ch_end')
    A('s_endpgm')
    return name, kernel_desc(name, 256, 256), f'; @launch kernel={name} grid=(112,1,1) block=(256,1,1) lds={LDS_CHAIN}'

def gen_s1(A):
    BF, ACC, KFO, SACC, OPS = 24, 40, 64, 76, 88
    TMPA = [12, 16, 76, 80, 84, 88]
    NREG_KS = 17
    def wreg(ks, t):
        f = ks * 6 + t
        return (100 + f * 4) if f < 39 else (256 + (f - 39) * 4)
    A('s_mul_i32 s22, s2, 12')
    A('s_mul_i32 s51, s20, 3')
    A('s_add_u32 s22, s22, s51')
    A(f's_mul_i32 s22, s22, {20*1024}')
    A(f's_add_u32 s22, s22, {WS["WqF"]}')
    KOFF = WS['WkF'] - WS['WqF']
    for t in range(6):
        A(f's_add_u32 s23, s22, {(t % 3)*20*1024 + (KOFF if t >= 3 else 0)}')
        for ks in range(NREG_KS):
            if ks % 4 == 0 and ks:
                A('s_add_u32 s23, s23, 4096')
            r = wreg(ks, t)
            A(f'buffer_load_dwordx4 {reg(r,4)}, v2, s[4:7], s23 offen offset:{(ks % 4)*1024}')
    A(f's_mul_i32 s24, s20, {18*1024}')
    A(f'v_add_u32 v0, s24, v2')
    for t in range(6):
        A(f's_add_u32 s23, s22, {(t % 3)*20*1024 + (KOFF if t >= 3 else 0) + 16*1024}')
        for k3 in range(3):
            r = 24 + k3 * 4
            A(f'buffer_load_dwordx4 v[{r}:{r+3}], v2, s[4:7], s23 offen offset:{(1+k3)*1024}')
        A('s_waitcnt vmcnt(0)')
        for k3 in range(3):
            r = 24 + k3 * 4
            A(f'ds_write_b128 v0, v[{r}:{r+3}] offset:{WLDS + (k3*6 + t)*1024}')
        A('s_waitcnt lgkmcnt(0)')
    A('v_and_b32 v5, 7, v1')
    A('v_lshrrev_b32 v6, 4, v1')
    A('v_lshlrev_b32 v3, 3, v6')
    A('v_add_u32 v3, v3, v5')
    A('v_lshlrev_b32 v3, 4, v3')
    A('v_lshlrev_b32 v7, 2, v5')
    A('v_add_u32 v7, s20, v7')
    A('v_mul_u32_u24 v7, 176, v7')
    A('v_and_b32 v8, 1, v6')
    A('v_lshlrev_b32 v8, 4, v8')
    A('v_add_u32 v8, v8, v7')
    A('v_lshlrev_b32 v9, 5, v6')
    A('v_add_u32 v7, v7, v9')
    A('v_lshrrev_b32 v9, 5, v1')
    A('s_lshl_b32 s24, s20, 1')
    A('v_add_u32 v9, s24, v9')
    A('v_and_b32 v10, 31, v1')
    A('v_mul_u32_u24 v11, 704, v9')
    A('v_lshlrev_b32 v5, 2, v10')
    A('v_add_u32 v5, v5, v11')
    A('v_and_b32 v6, 7, v10')
    A('v_lshlrev_b32 v6, 2, v6')
    A('v_add_u32 v6, v6, v11')
    A('v_mul_u32_u24 v9, 80, v9')
    A('v_lshlrev_b32 v11, 1, v10')
    A('v_and_b32 v12, 1, v10')
    A('v_cmp_eq_u32 vcc, 1, v12')
    A('v_add_u32 v12, 16, v11')
    A('v_subrev_u32 v11, 2, v11')
    A('v_cndmask_b32 v12, v12, v11, vcc')
    A('s_mov_b64 s[46:47], vcc')
    A('v_cmp_gt_u32 vcc, 8, v10')
    A('s_mov_b64 s[48:49], vcc')
    A('v_add_u32 v10, v12, v9')
    A('s_and_b64 s[56:57], s[46:47], s[48:49]')
    A('s_andn2_b64 s[58:59], -1, s[46:47]')
    A('s_or_b64 s[56:57], s[56:57], s[58:59]')
    A(f'v_mov_b32 v9, {SCALE}')
    A(f'v_mov_b32 v11, {LOG2E}')
    for a in range(3):
        A(f's_add_u32 s50, s51, {a}')
        A('s_lshr_b32 s52, s50, 1')
        A('s_lshl_b32 s52, s52, 10')
        A('s_and_b32 s50, s50, 1')
        A('s_lshl_b32 s50, s50, 3')
        A(f's_add_u32 s{53+a}, s50, s52')
    def kf_prefetch(sreg):
        A(f's_mul_i32 s45, s{sreg}, {2*192*1024}')
        A(f's_mul_i32 s50, s2, {6*1024}')
        A('s_add_u32 s45, s45, s50')
        A(f's_add_u32 s45, s45, {WS["KF"]}')
        for a in range(3):
            A(f's_add_u32 s50, s45, s{53+a}')
            A(f'buffer_load_dwordx2 v[{KFO+a*4}:{KFO+a*4+1}], v2, s[4:7], s50 offen')
            A(f's_add_u32 s50, s50, {192*1024}')
            A(f'buffer_load_dwordx2 v[{KFO+a*4+2}:{KFO+a*4+3}], v2, s[4:7], s50 offen')
    kf_prefetch(40)
    A('s_waitcnt vmcnt(0)')
    A.label('L_s1_loop')
    gather_mem(A, 's1', 40)
    L = Lgkm(A)
    order = list(range(0, 6)) + [17] + list(range(6, 12)) + [18] + list(range(12, 17)) + [19]
    def rdB(n):
        ks = order[n]
        b = BF + (n % 4) * 4
        L.issue(('B', n), f'ds_read_b128 v[{b}:{b+3}], v3 offset:{MEMLDS + ks*512}')
    def rdA(ks):
        for t in range(6):
            r = TMPA[t]
            L.issue(('A', ks, t), f'ds_read_b128 v[{r}:{r+3}], v0 offset:{WLDS + ((ks-17)*6 + t)*1024}')
    for n in range(3): rdB(n)
    rdA(17)
    for n in range(20):
        ks = order[n]
        if n + 3 < 20: rdB(n + 3)
        L.need(('B', n))
        b = BF + (n % 4) * 4
        for t in range(6):
            if ks >= 17:
                L.need(('A', ks, t))
                a = vr(TMPA[t], 4)
            else:
                a = reg(wreg(ks, t), 4)
            d = ACC + t * 4
            c = '0' if n == 0 else f'v[{d}:{d+3}]'
            A(f'v_mfma_f32_16x16x32_bf16 v[{d}:{d+3}], {a}, v[{b}:{b+3}], {c}')
        if ks in (17, 18):
            rdA(ks + 1)
    A('s_nop 7')
    A('s_nop 3')
    for t in range(6):
        d = ACC + t * 4
        A(f'v_cvt_pk_bf16_f32 v{OPS+2*t}, v{d}, v{d+1}')
        A(f'v_cvt_pk_bf16_f32 v{OPS+2*t+1}, v{d+2}, v{d+3}')
    A('s_nop 1')
    for a in range(3):
        q = OPS + 2 * a
        k = OPS + 6 + 2 * a
        for st, src in ((0, k), (1, KFO + a * 4), (2, KFO + a * 4 + 2)):
            d = SACC + st * 4
            c = '0' if a == 0 else f'v[{d}:{d+3}]'
            A(f'v_mfma_f32_16x16x16_bf16 v[{d}:{d+3}], v[{src}:{src+1}], v[{q}:{q+1}], {c}')
    A('s_lshl_b32 s45, s40, 5')
    A('s_add_u32 s45, s45, s2')
    A(f's_mul_i32 s45, s45, {6*1024}')
    A(f's_add_u32 s45, s45, {WS["KMF"]}')
    for a in range(3):
        k = OPS + 6 + 2 * a
        A(f's_add_u32 s50, s45, s{53+a}')
        A(f'buffer_store_dwordx2 v[{k}:{k+1}], v2, s[4:7], s50 offen')
    A('s_nop 3')
    A(f'ds_write_b128 v8, v[{SACC}:{SACC+3}] offset:{RED}')
    A(f'ds_write_b128 v7, v[{SACC+4}:{SACC+7}] offset:{RED+32}')
    A(f'ds_write_b128 v7, v[{SACC+8}:{SACC+11}] offset:{RED+48}')
    A('s_add_u32 s50, s40, 1')
    A('s_min_u32 s52, s50, 63')
    kf_prefetch(52)
    A('s_waitcnt lgkmcnt(0)')
    A('s_barrier')
    A(f'v_add_u32 v24, {RED}, v5')
    A(f'v_add_u32 v25, {RED}, v6')
    A('ds_read2_b32 v[12:13], v24 offset0:8 offset1:52')
    A('ds_read2_b32 v[14:15], v24 offset0:96 offset1:140')
    A('ds_read2_b32 v[16:17], v25 offset0:0 offset1:44')
    A('ds_read2_b32 v[18:19], v25 offset0:88 offset1:132')
    A('s_waitcnt lgkmcnt(2)')
    A('v_add_f32 v12, v12, v13')
    A('v_add_f32 v14, v14, v15')
    A('s_waitcnt lgkmcnt(0)')
    A('v_add_f32 v16, v16, v17')
    A('v_add_f32 v18, v18, v19')
    A('v_add_f32 v12, v12, v14')
    A('v_add_f32 v16, v16, v18')
    A('v_cvt_pk_bf16_f32 v13, v12, v16')
    A('v_lshlrev_b32 v12, 16, v13')
    A('v_and_b32 v16, 0xffff0000, v13')
    A('v_mul_f32 v12, v12, v9')
    A('v_mul_f32 v16, v16, v9')
    A('v_cvt_pk_bf16_f32 v13, v12, v16')
    A('v_lshlrev_b32 v12, 16, v13')
    A('v_and_b32 v16, 0xffff0000, v13')
    A('v_mov_b32 v14, 0xff800000')
    A('v_cndmask_b32 v16, v14, v16, s[48:49]')
    A('v_max_f32 v13, v12, v16')
    dpp_red32(A, 'v_max_f32', 13, 14)
    A('v_mul_f32 v13, v13, v11')
    A('v_fma_f32 v12, v12, v11, -v13')
    A('v_fma_f32 v16, v16, v11, -v13')
    A('v_exp_f32 v12, v12')
    A('v_exp_f32 v16, v16')
    A('s_nop 0')
    A('v_add_f32 v13, v12, v16')
    dpp_red32(A, 'v_add_f32', 13, 14)
    A('v_rcp_f32 v13, v13')
    A('s_nop 0')
    A('v_mul_f32 v12, v12, v13')
    A('v_mul_f32 v16, v16, v13')
    A('s_nop 1')
    A('v_mov_b32_dpp v14, v12 quad_perm:[1,0,3,2] row_mask:0xf bank_mask:0xf')
    A('v_mov_b32_dpp v15, v16 quad_perm:[1,0,3,2] row_mask:0xf bank_mask:0xf')
    A('v_cvt_pk_bf16_f32 v12, v12, v14')
    A('v_cvt_pk_bf16_f32 v16, v15, v16')
    A('v_cndmask_b32 v12, v12, v16, s[46:47]')
    A('v_min_u32 v12, 0xfffffffe, v12')
    A('s_lshl_b32 s45, s40, 5')
    A('s_add_u32 s45, s45, s2')
    A('s_mul_i32 s45, s45, 640')
    A(f's_add_u32 s45, s45, {WS["PB"]}')
    A('s_mov_b64 exec, s[56:57]')
    A('buffer_store_dword v12, v10, s[4:7], s45 offen sc1')
    A('s_mov_b64 exec, -1')
    A('s_add_u32 s40, s40, 1')
    A('s_cmp_lt_u32 s40, 64')
    A('s_cbranch_scc1 L_s1_loop')
    A('s_endpgm')

def gen_s2(A):
    PT, PM, VT, MOP, ACCM, ACC, VMOP, PK = 24, 56, 64, 96, 112, 128, 132, 140
    def wreg(ks, pp):
        f = ks * 4 + pp
        return (192 + f * 4) if f < 16 else (256 + (f - 16) * 4)
    A('s_sub_u32 s21, s2, 32')
    A('s_lshr_b32 s22, s21, 1')
    A('s_and_b32 s23, s21, 1')
    A('v_and_b32 v5, 15, v1')
    A('v_lshrrev_b32 v6, 4, v1')
    A('v_and_b32 v7, 7, v1')
    A('v_lshrrev_b32 v8, 3, v5')
    A('s_lshl_b32 s24, s23, 3')
    A('v_lshlrev_b32 v9, 4, v6')
    A('v_add_u32 v9, v9, v7')
    A('v_add_u32 v9, s24, v9')
    A('v_lshlrev_b32 v9, 4, v9')
    A(f'v_mul_u32_u24 v10, {40*1024}, v8')
    A('v_add_u32 v9, v9, v10')
    A('s_lshl_b32 s24, s20, 3')
    A('s_mul_i32 s24, s24, 40')
    A('s_add_u32 s24, s24, s22')
    A('s_lshl_b32 s24, s24, 10')
    A(f's_add_u32 s24, s24, {WS["WVOF"]}')
    for ks in range(20):
        for pp in range(4):
            r = wreg(ks, pp)
            A(f's_add_u32 s25, s24, {(ks*32 + 2*pp)*40*1024}')
            A(f'buffer_load_dwordx4 {reg(r,4)}, v9, s[4:7], s25 offen')
    A('v_lshrrev_b32 v9, 1, v6')
    A('v_lshlrev_b32 v9, 7, v9')
    A('v_lshlrev_b32 v10, 4, v7')
    A('v_add_u32 v9, v9, v10')
    A('v_and_b32 v10, 1, v6')
    A('v_lshlrev_b32 v10, 3, v10')
    A('v_add_u32 v9, v9, v10')
    MB = [9, 148, 149, 150, 151]
    for j in range(1, 5):
        A(f'v_add_u32 v{MB[j]}, {2048*j}, v9')
    A('v_lshlrev_b32 v10, 8, v8')
    A('s_lshl_b32 s24, s23, 3')
    A('v_add_u32 v11, s24, v7')
    A('v_lshlrev_b32 v11, 4, v11')
    A('v_add_u32 v10, v10, v11')
    A('v_lshlrev_b32 v11, 3, v6')
    A('v_add_u32 v10, v10, v11')
    A('s_lshl_b32 s24, s20, 11')
    A(f's_add_u32 s24, s24, {TL}')
    A('v_add_u32 v11, s24, v10')
    A('v_add_u32 v152, s24, v2')
    A('v_mul_u32_u24 v153, 80, v7')
    A('v_lshlrev_b32 v154, 4, v6')
    A('v_add_u32 v154, v154, v153')
    A('v_mul_u32_u24 v155, 640, v6')
    A('v_add_u32 v155, v155, v153')
    A('s_lshl_b32 s24, s20, 10')
    A('v_add_u32 v156, s24, v2')
    A('v_and_b32 v157, 1, v8')
    A('s_lshl_b32 s24, s23, 1')
    A('v_add_u32 v158, s24, v157')
    A('v_lshlrev_b32 v158, 4, v158')
    A('v_add_u32 v158, v158, v7')
    A('v_lshlrev_b32 v158, 4, v158')
    A('s_lshr_b32 s24, s22, 1')
    A('s_lshl_b32 s24, s24, 9')
    A('s_and_b32 s25, s22, 1')
    A('s_lshl_b32 s25, s25, 1')
    A('s_add_u32 s25, s25, s23')
    A('s_lshl_b32 s25, s25, 7')
    A('s_add_u32 s24, s24, s25')
    A('v_lshlrev_b32 v159, 4, v7')
    A('v_lshlrev_b32 v157, 3, v157')
    A('v_add_u32 v159, v159, v157')
    A('v_add_u32 v159, s24, v159')
    for r in range(4): A(f'v_mov_b32 v{PK+r}, 0')
    A(f'ds_write_b128 v152, v[{PK}:{PK+3}]')
    A(f'ds_write_b128 v152, v[{PK}:{PK+3}] offset:1024')
    def vt_prefetch(sreg):
        A(f's_lshl_b32 s45, s{sreg}, 5')
        A('s_lshl_b32 s50, s20, 3')
        A('s_add_u32 s45, s45, s50')
        A('s_mul_i32 s45, s45, 40')
        A('s_add_u32 s45, s45, s22')
        A('s_lshl_b32 s45, s45, 10')
        A(f's_add_u32 s45, s45, {WS["VOF"]}')
        for hh in range(8):
            A(f'buffer_load_dwordx4 v[{VT+hh*4}:{VT+hh*4+3}], v2, s[4:7], s45 offen')
            if hh < 7: A(f's_add_u32 s45, s45, {40*1024}')
    vt_prefetch(40)
    A('s_waitcnt vmcnt(0) lgkmcnt(0)')
    A.label('L_s2_loop')
    gather_mem(A, 's2', 40)
    L = Lgkm(A)
    def rd(ks):
        b = MOP + (ks % 4) * 4
        L.issue(ks, f'ds_read2_b64 v[{b}:{b+3}], v{MB[ks//4]} offset0:{(ks%4)*64} offset1:{(ks%4)*64+32}')
    for ks in range(3): rd(ks)
    for ks in range(20):
        if ks + 3 < 20: rd(ks + 3)
        L.need(ks)
        b = MOP + (ks % 4) * 4
        for pp in range(4):
            d = ACCM + pp * 4
            c = '0' if ks == 0 else f'v[{d}:{d+3}]'
            A(f'v_mfma_f32_16x16x32_bf16 v[{d}:{d+3}], v[{b}:{b+3}], {reg(wreg(ks,pp),4)}, {c}')
    A('s_nop 7')
    A('s_nop 3')
    A('s_lshl_b32 s45, s40, 3')
    A('s_lshl_b32 s50, s20, 1')
    A('s_add_u32 s45, s45, s50')
    A('s_mul_i32 s45, s45, 40')
    A('s_add_u32 s45, s45, s22')
    A('s_lshl_b32 s45, s45, 10')
    A(f's_add_u32 s45, s45, {WS["VOMF"]}')
    A(f's_add_u32 s50, s45, {40*1024}')
    for pp in range(4):
        d = ACCM + pp * 4
        A(f'v_cvt_pk_bf16_f32 v{PK+2*pp}, v{d}, v{d+1}')
        A(f'v_cvt_pk_bf16_f32 v{PK+2*pp+1}, v{d+2}, v{d+3}')
    A('s_mov_b64 exec, s[60:61]')
    for pp in range(4):
        A(f'ds_write_b64 v11, v[{PK+2*pp}:{PK+2*pp+1}] offset:{(pp>>1)*1024 + (pp&1)*512}')
        A(f'buffer_store_dwordx2 v[{PK+2*pp}:{PK+2*pp+1}], v10, s[4:7], s{45 if pp < 2 else 50} offen offset:{(pp&1)*512}')
    A('s_mov_b64 exec, -1')
    A(f'ds_read_b128 v[{VMOP}:{VMOP+3}], v152')
    A(f'ds_read_b128 v[{VMOP+4}:{VMOP+7}], v152 offset:1024')
    A('s_lshl_b32 s45, s40, 5')
    A('s_lshl_b32 s50, s20, 3')
    A('s_add_u32 s45, s45, s50')
    A('s_mul_i32 s45, s45, 640')
    A(f's_add_u32 s45, s45, {WS["PB"]}')
    A(f's_add_u32 s50, s45, 2560')
    A('s_mov_b32 s42, 0')
    A.label('L_s2_ppoll')
    for hh in range(8):
        A(f'buffer_load_dwordx4 v[{PT+hh*4}:{PT+hh*4+3}], v154, s[4:7], s{45 if hh < 4 else 50} offen offset:{16 + (hh&3)*640} sc1')
    for hg in range(2):
        A(f'buffer_load_dwordx4 v[{PM+hg*4}:{PM+hg*4+3}], v155, s[4:7], s45 offen offset:{hg*2560} sc1')
    A('s_waitcnt vmcnt(0)')
    regs = list(range(PT, PT + 40))
    A(f'v_max3_u32 v12, v{regs[0]}, v{regs[1]}, v{regs[2]}')
    A(f'v_max3_u32 v13, v{regs[3]}, v{regs[4]}, v{regs[5]}')
    k = 6; tgl = 0
    while k + 1 < 40:
        A(f'v_max3_u32 v{12+tgl}, v{12+tgl}, v{regs[k]}, v{regs[k+1]}')
        k += 2; tgl ^= 1
    A('v_max_u32 v12, v12, v13')
    A('v_cmp_eq_u32 vcc, -1, v12')
    A('s_cbranch_vccz L_s2_pok')
    A('s_add_u32 s42, s42, 1')
    A('s_cmp_lt_u32 s42, s44')
    A('s_cbranch_scc1 L_s2_ppoll')
    A('s_mov_b32 s44, 0')
    A.label('L_s2_pok')
    A('s_waitcnt lgkmcnt(0)')
    for hh in range(8):
        d = ACC if hh % 2 == 0 else ACCM
        c = '0' if hh < 2 else f'v[{d}:{d+3}]'
        A(f'v_mfma_f32_16x16x32_bf16 v[{d}:{d+3}], v[{VT+hh*4}:{VT+hh*4+3}], v[{PT+hh*4}:{PT+hh*4+3}], {c}')
    for hg in range(2):
        d = ACC if hg == 0 else ACCM
        A(f'v_mfma_f32_16x16x32_bf16 v[{d}:{d+3}], v[{VMOP+hg*4}:{VMOP+hg*4+3}], v[{PM+hg*4}:{PM+hg*4+3}], v[{d}:{d+3}]')
    A('s_nop 7')
    A('s_nop 3')
    for r in range(4):
        A(f'v_add_f32 v{ACC+r}, v{ACC+r}, v{ACCM+r}')
    A(f'ds_write_b128 v156, v[{ACC}:{ACC+3}] offset:{RED}')
    A('s_add_u32 s50, s40, 1')
    A('s_min_u32 s52, s50, 63')
    vt_prefetch(52)
    A('s_waitcnt lgkmcnt(0)')
    A('s_barrier')
    A('s_cmp_lg_u32 s20, 0')
    A('s_cbranch_scc1 L_s2_next')
    for w in range(4):
        A(f'ds_read_b128 v[{24+4*w}:{27+4*w}], v158 offset:{RED + w*1024}')
    A('s_waitcnt lgkmcnt(2)')
    for r in range(4): A(f'v_add_f32 v{24+r}, v{24+r}, v{28+r}')
    A('s_waitcnt lgkmcnt(0)')
    for r in range(4): A(f'v_add_f32 v{32+r}, v{32+r}, v{36+r}')
    for r in range(4): A(f'v_add_f32 v{24+r}, v{24+r}, v{32+r}')
    A('v_cvt_pk_bf16_f32 v24, v24, v25')
    A('v_cvt_pk_bf16_f32 v25, v26, v27')
    A('v_min_u32 v24, 0xfffffffe, v24')
    A('v_min_u32 v25, 0xfffffffe, v25')
    A('s_add_u32 s45, s40, 1')
    A('s_mul_i32 s45, s45, 10240')
    A(f's_add_u32 s45, s45, {WS["MEMB"]}')
    A('s_mov_b64 exec, s[62:63]')
    A('buffer_store_dwordx2 v[24:25], v159, s[4:7], s45 offen sc1')
    A('s_mov_b64 exec, -1')
    A.label('L_s2_next')
    A('s_add_u32 s40, s40, 1')
    A('s_cmp_lt_u32 s40, 64')
    A('s_cbranch_scc1 L_s2_loop')
    A('s_endpgm')
```

```python
from asmlib import *
from layout import WS

def gemm_direct(A, RA, RB, NKS, vA, vB, srdA, srdB, strA, strB, acc, fa, fb, sk, tag, accfile='v', zero=True):
    assert NKS % 2 == 0
    ac = (lambda b, n=4: ar(b, n)) if accfile == 'a' else (lambda b, n=4: vr(b, n))
    if zero:
        for r in range(RA * RB * 4):
            A(f'v_accvgpr_write_b32 a{acc + r}, 0' if accfile == 'a' else f'v_mov_b32 v{acc + r}, 0')
    def loads(st):
        for i in range(RA):
            b = fa + (st * RA + i) * 4
            A(f'buffer_load_dwordx4 v[{b}:{b+3}], v{vA+i}, {srdA}, s{sk} offen')
        for j in range(RB):
            b = fb + (st * RB + j) * 4
            A(f'buffer_load_dwordx4 v[{b}:{b+3}], v{vB+j}, {srdB}, s{sk+1} offen')
    def adv():
        A(f's_add_u32 s{sk}, s{sk}, {strA}')
        A(f's_add_u32 s{sk+1}, s{sk+1}, {strB}')
    def mfmas(st):
        for i in range(RA):
            for j in range(RB):
                a = fa + (st * RA + i) * 4
                b = fb + (st * RB + j) * 4
                d = acc + (i * RB + j) * 4
                A(f'v_mfma_f32_16x16x32_bf16 {ac(d)}, v[{a}:{a+3}], v[{b}:{b+3}], {ac(d)}')
    R = RA + RB
    A(f's_mov_b32 s{sk}, 0')
    A(f's_mov_b32 s{sk+1}, 0')
    loads(0)
    lp = f'L_gemm_{tag}'
    A.label(lp)
    adv()
    loads(1)
    A(f's_waitcnt vmcnt({R})')
    mfmas(0)
    adv()
    A(f's_cmp_lt_u32 s{sk}, {NKS*strA}')
    A(f's_cbranch_scc0 {lp}_last')
    loads(0)
    A(f's_waitcnt vmcnt({R})')
    mfmas(1)
    A(f's_branch {lp}')
    A.label(f'{lp}_last')
    A('s_waitcnt vmcnt(0)')
    mfmas(1)
    A('s_nop 7')
    A('s_nop 7')

def wave_ids(A, sw):
    A('v_lshrrev_b32 v1, 6, v0')
    A('s_nop 0')
    A(f'v_readfirstlane_b32 s{sw}, v1')
    A('v_and_b32 v1, 63, v0')
    A('v_lshlrev_b32 v2, 4, v1')

def offs(A, v0, n, sbase, stride):
    for i in range(n):
        A(f'v_add_u32 v{v0+i}, s{sbase}, v2')
        if i < n - 1:
            A(f's_add_u32 s{sbase}, s{sbase}, {stride}')

def gen_qk(A):
    name = 'k_qk_kernel'
    kernel_header(A, name)
    A('s_cmp_ge_u32 s2, 768')
    A('s_cbranch_scc1 L_qk_end')
    srds(A, [('ws', 4)])
    wave_ids(A, 20)
    A('s_and_b32 s21, s2, 15')
    A('s_lshr_b32 s22, s2, 4')
    A('s_and_b32 s23, s20, 1')
    A('s_lshr_b32 s24, s20, 1')
    assert WS['WkF'] == WS['WqF'] + 384 * 20 * 1024
    assert WS['KF'] == WS['QF'] + 128 * 192 * 1024
    A('s_lshl_b32 s25, s22, 4')
    A('s_lshl_b32 s26, s24, 3')
    A('s_add_u32 s25, s25, s26')
    A('s_lshl_b32 s26, s21, 3')
    A('s_lshl_b32 s27, s23, 2')
    A('s_add_u32 s26, s26, s27')
    RA, RB = 8, 4
    VA, VB = 4, 12
    A(f's_mul_i32 s27, s25, {20*1024}')
    A(f's_add_u32 s27, s27, {WS["WqF"]}')
    offs(A, VA, RA, 27, 20 * 1024)
    A(f's_mul_i32 s27, s26, {20*1024}')
    A(f's_add_u32 s27, s27, {WS["H1F"]}')
    offs(A, VB, RB, 27, 20 * 1024)
    ACC, FA, FB = 16, 144, 208
    gemm_direct(A, RA, RB, 20, VA, VB, 's[4:7]', 's[4:7]', 1024, 1024, ACC, FA, FB, 28, 'qk')
    A('s_cmp_ge_u32 s25, 384')
    A('s_cselect_b32 s30, 384, 0')
    A(f's_cselect_b32 s32, {128*192*1024}, 0')
    A('s_sub_u32 s30, s25, s30')
    A('s_lshr_b32 s30, s30, 1')
    A(f's_add_u32 s32, s32, {WS["QF"]}')
    A('s_mul_i32 s31, s26, 192')
    A('s_add_u32 s31, s31, s30')
    A('s_lshl_b32 s31, s31, 10')
    A('s_add_u32 s32, s32, s31')
    for j in range(RB):
        for ip in range(RA // 2):
            a = ACC + ((2 * ip) * RB + j) * 4
            b = ACC + ((2 * ip + 1) * RB + j) * 4
            t = FA + ((j * (RA // 2) + ip) % 16) * 4
            A(f'v_cvt_pk_bf16_f32 v{t}, v{a}, v{a+1}')
            A(f'v_cvt_pk_bf16_f32 v{t+1}, v{a+2}, v{a+3}')
            A(f'v_cvt_pk_bf16_f32 v{t+2}, v{b}, v{b+1}')
            A(f'v_cvt_pk_bf16_f32 v{t+3}, v{b+2}, v{b+3}')
            A(f's_add_u32 s31, s32, {(j*192 + ip)*1024}')
            A(f'buffer_store_dwordx4 v[{t}:{t+3}], v2, s[4:7], s31 offen')
    A.label('L_qk_end')
    A('s_endpgm')
    return name, kernel_desc(name, 256), f'; @launch kernel={name} grid=(768,1,1) block=(256,1,1) lds=0'

def gen_vo(A):
    name = 'k_vo_kernel'
    kernel_header(A, name)
    A('s_cmp_ge_u32 s2, 672')
    A('s_cbranch_scc1 L_vo_end')
    srds(A, [('ws', 4), ('Wv', 8), ('Wo', 12)])
    wave_ids(A, 20)
    magic_div(A, 22, 2, 21)
    A('s_mul_i32 s21, s22, 21')
    A('s_sub_u32 s21, s2, s21')
    A('s_lshl_b32 s23, s21, 2')
    A('s_add_u32 s23, s23, s20')
    VA, VB, FA, FB, VOP = 4, 16, 20, 116, 132
    A('s_cmp_ge_u32 s21, 16')
    A('s_cbranch_scc1 L_vo_ident')
    A(f's_mul_i32 s27, s22, {12*20*1024}')
    A(f's_add_u32 s27, s27, {WS["WvF"]}')
    offs(A, VA, 12, 27, 20 * 1024)
    A(f's_mul_i32 s27, s23, {2*20*1024}')
    A(f's_add_u32 s27, s27, {WS["H1F"]}')
    offs(A, VB, 2, 27, 20 * 1024)
    gemm_direct(A, 12, 2, 20, VA, VB, 's[4:7]', 's[4:7]', 1024, 1024, 0, FA, FB, 28, 'vo1', accfile='a')
    for j in range(2):
        for ks in range(6):
            a = ((2 * ks) * 2 + j) * 4
            b = ((2 * ks + 1) * 2 + j) * 4
            t = VOP + (j * 6 + ks) * 4
            for q in range(4):
                A(f'v_accvgpr_read_b32 v{FA+q}, a{a+q}')
                A(f'v_accvgpr_read_b32 v{FA+4+q}, a{b+q}')
            A(f'v_cvt_pk_bf16_f32 v{t}, v{FA}, v{FA+1}')
            A(f'v_cvt_pk_bf16_f32 v{t+1}, v{FA+2}, v{FA+3}')
            A(f'v_cvt_pk_bf16_f32 v{t+2}, v{FA+4}, v{FA+5}')
            A(f'v_cvt_pk_bf16_f32 v{t+3}, v{FA+6}, v{FA+7}')
    A('s_branch L_vo_p2')
    A.label('L_vo_ident')
    A('s_sub_u32 s27, s23, 64')
    A(f's_mul_i32 s27, s27, {32*12288}')
    A(f's_mul_i32 s28, s22, 384')
    A('s_add_u32 s27, s27, s28')
    A('v_and_b32 v4, 15, v1')
    A('v_lshrrev_b32 v5, 4, v1')
    A('v_mul_u32_u24 v4, 12288, v4')
    A('v_lshlrev_b32 v5, 3, v5')
    A('v_add_u32 v4, v4, v5')
    for j in range(2):
        for ks in range(6):
            t = VOP + (j * 6 + ks) * 4
            A(f'buffer_load_dwordx2 v[{t}:{t+1}], v4, s[8:11], s27 offen offset:{ks*64}')
            A(f'buffer_load_dwordx2 v[{t+2}:{t+3}], v4, s[8:11], s27 offen offset:{ks*64+32}')
        if j == 0:
            A(f's_add_u32 s27, s27, {16*12288}')
    A('s_waitcnt vmcnt(0)')
    A.label('L_vo_p2')
    A(f's_mul_i32 s27, s22, {40*6*1024}')
    A(f's_add_u32 s27, s27, {WS["WoF"]}')
    A('s_mul_i32 s28, s23, 32')
    A('s_add_u32 s28, s28, s22')
    A(f's_mul_i32 s28, s28, {40*1024}')
    A(f's_add_u32 s28, s28, {WS["VOF"]}')
    assert WS['WVOF'] == WS['VOF'] + 64 * 32 * 40 * 1024
    WB = FA
    AC = 68
    OUT = 84
    def ld(buf):
        for ks in range(6):
            b = WB + (buf * 6 + ks) * 4
            A(f'buffer_load_dwordx4 v[{b}:{b+3}], v2, s[4:7], s27 offen offset:{ks*1024 if ks < 4 else 0}' if ks < 4 else
              f'buffer_load_dwordx4 v[{b}:{b+3}], v3, s[4:7], s27 offen offset:{(ks-4)*1024}')
        A(f's_add_u32 s27, s27, {6*1024}')
    def mm(buf):
        ac = AC + buf * 8
        for j in range(2):
            for ks in range(6):
                a = VOP + (j * 6 + ks) * 4
                b = WB + (buf * 6 + ks) * 4
                c = '0' if ks == 0 else f'v[{ac+4*j}:{ac+4*j+3}]'
                A(f'v_mfma_f32_16x16x32_bf16 v[{ac+4*j}:{ac+4*j+3}], v[{a}:{a+3}], v[{b}:{b+3}], {c}')
        A('s_nop 7')
        A('s_nop 7')
        o = OUT + buf * 4
        A(f'v_cvt_pk_bf16_f32 v{o}, v{ac}, v{ac+1}')
        A(f'v_cvt_pk_bf16_f32 v{o+1}, v{ac+2}, v{ac+3}')
        A(f'v_cvt_pk_bf16_f32 v{o+2}, v{ac+4}, v{ac+5}')
        A(f'v_cvt_pk_bf16_f32 v{o+3}, v{ac+6}, v{ac+7}')
        A(f'buffer_store_dwordx4 v[{o}:{o+3}], v2, s[4:7], s28 offen')
        A('s_add_u32 s28, s28, 1024')
    A('v_add_u32 v3, 4096, v2')
    A('s_mov_b32 s29, 0')
    ld(0)
    A.label('L_vo_loop')
    ld(1)
    A('s_waitcnt vmcnt(6)')
    mm(0)
    A('s_add_u32 s29, s29, 2')
    A('s_cmp_lt_u32 s29, 40')
    A('s_cbranch_scc0 L_vo_last')
    ld(0)
    A('s_waitcnt vmcnt(6)')
    mm(1)
    A('s_branch L_vo_loop')
    A.label('L_vo_last')
    A('s_waitcnt vmcnt(0)')
    mm(1)
    A.label('L_vo_end')
    A('s_endpgm')
    return name, kernel_desc(name, 180, 96), f'; @launch kernel={name} grid=(672,1,1) block=(256,1,1) lds=0'
```

```python
from asmlib import *
from layout import WS
from k_gemm import gemm_direct, wave_ids, offs

SCALE = 0x3d93cd3a
LOG2E = 0x3fb8aa3b

def rnd2(A, a, b, t):
    A(f'v_cvt_pk_bf16_f32 v{t}, v{a}, v{b}')
    A(f'v_lshlrev_b32 v{a}, 16, v{t}')
    A(f'v_and_b32 v{b}, 0xffff0000, v{t}')

def xred1632(A, op, v, t):
    A(f'v_mov_b32 v{t}, v{v}')
    A('s_nop 1')
    A(f'v_permlane16_swap_b32 v{v}, v{t}')
    A('s_nop 1')
    A(f'{op} v{v}, v{v}, v{t}')
    A(f'v_mov_b32 v{t}, v{v}')
    A('s_nop 1')
    A(f'v_permlane32_swap_b32 v{v}, v{t}')
    A('s_nop 1')
    A(f'{op} v{v}, v{v}, v{t}')

def gen_e1(A):
    name = 'k_e1_kernel'
    kernel_header(A, name)
    A('s_cmp_ge_u32 s2, 512')
    A('s_cbranch_scc1 L_e1_end')
    srds(A, [('ws', 4)])
    wave_ids(A, 20)
    A('s_lshl_b32 s21, s2, 2')
    A('s_add_u32 s21, s21, s20')
    A('s_lshr_b32 s22, s21, 5')
    A('s_and_b32 s23, s21, 31')
    KM, KT, Q, ACC = 8, 32, 80, 128
    A('s_lshl_b32 s24, s21, 0')
    A(f's_mul_i32 s24, s21, {6*1024}')
    A(f's_add_u32 s24, s24, {WS["KMF"]}')
    A('v_add_u32 v3, 4096, v2')
    def ld6(base, s):
        for ks in range(6):
            b = base + ks * 4
            A(f'buffer_load_dwordx4 v[{b}:{b+3}], v{2 if ks < 4 else 3}, s[4:7], s{s} offen offset:{(ks % 4)*1024}')
    ld6(KM, 24)
    A('s_mul_i32 s25, s22, 384')
    A('s_mul_i32 s26, s23, 6')
    A('s_add_u32 s25, s25, s26')
    A('s_lshl_b32 s25, s25, 10')
    for tt in range(2):
        A(f's_add_u32 s24, s25, {WS["KF"] + tt*192*1024}')
        ld6(KT + tt * 24, 24)
        A(f's_add_u32 s24, s25, {WS["QF"] + tt*192*1024}')
        ld6(Q + tt * 24, 24)
    A('v_and_b32 v4, 15, v1')
    A('v_lshrrev_b32 v5, 4, v1')
    A('v_lshlrev_b32 v6, 2, v5')
    A('v_sub_u32 v6, v4, v6')
    A('v_mov_b32 v7, 0xff800000')
    A('s_waitcnt vmcnt(0)')
    for qt in range(2):
        for kt in range(3):
            if qt == 0 and kt == 2: continue
            d = ACC + (qt * 3 + kt) * 4
            for ks in range(6):
                a = (KM + ks * 4) if kt == 0 else KT + (kt - 1) * 24 + ks * 4
                b = Q + qt * 24 + ks * 4
                c = '0' if ks == 0 else f'v[{d}:{d+3}]'
                A(f'v_mfma_f32_16x16x32_bf16 v[{d}:{d+3}], v[{a}:{a+3}], v[{b}:{b+3}], {c}')
    A('s_nop 7')
    A('s_nop 7')
    A(f'v_mov_b32 v160, {SCALE}')
    A(f'v_mov_b32 v161, {LOG2E}')
    A('s_lshl_b32 s24, s22, 6')
    A('s_add_u32 s24, s24, s23')
    A('s_lshl_b32 s24, s24, 10')
    A(f's_add_u32 s24, s24, {WS["PF"]}')
    A('s_lshl_b32 s25, s22, 4')
    A('s_lshr_b32 s26, s23, 2')
    A('s_add_u32 s25, s25, s26')
    A('s_lshl_b32 s25, s25, 10')
    A('s_and_b32 s26, s23, 3')
    A('s_lshl_b32 s26, s26, 8')
    A('s_add_u32 s25, s25, s26')
    A(f's_add_u32 s25, s25, {WS["PMF"]}')
    A('v_lshlrev_b32 v8, 4, v4')
    A('v_lshlrev_b32 v9, 3, v5')
    A('v_add_u32 v8, v8, v9')
    for qt in range(2):
        nk = 2 if qt == 0 else 3
        vals = [ACC + qt * 12 + i for i in range(nk * 4)]
        for i in range(0, len(vals), 2):
            a, b = vals[i], vals[i + 1]
            rnd2(A, a, b, 10)
            A(f'v_mul_f32 v{a}, v{a}, v160')
            A(f'v_mul_f32 v{b}, v{b}, v160')
            rnd2(A, a, b, 10)
        A('v_cmp_gt_u32 vcc, 2, v5')
        for r in range(4):
            A(f'v_cndmask_b32 v{vals[r]}, v7, v{vals[r]}, vcc')
        for r in range(4):
            A(f'v_cmp_le_i32 vcc, {r}, v6')
            A(f'v_cndmask_b32 v{vals[-4+r]}, v7, v{vals[-4+r]}, vcc')
        A(f'v_max3_f32 v11, v{vals[0]}, v{vals[1]}, v{vals[2]}')
        rest = vals[3:]
        while len(rest) >= 2:
            A(f'v_max3_f32 v11, v11, v{rest[0]}, v{rest[1]}')
            rest = rest[2:]
        if rest:
            A(f'v_max_f32 v11, v11, v{rest[0]}')
        xred1632(A, 'v_max_f32', 11, 12)
        A('v_mul_f32 v11, v11, v161')
        for v in vals:
            A(f'v_fma_f32 v{v}, v{v}, v161, -v11')
            A(f'v_exp_f32 v{v}, v{v}')
        A('s_nop 0')
        A(f'v_add_f32 v12, v{vals[0]}, v{vals[1]}')
        for v in vals[2:]:
            A(f'v_add_f32 v12, v12, v{v}')
        xred1632(A, 'v_add_f32', 12, 13)
        A('v_rcp_f32 v12, v12')
        A('s_nop 0')
        for v in vals:
            A(f'v_mul_f32 v{v}, v{v}, v12')
        o = 16 + qt * 8
        A(f'v_cvt_pk_bf16_f32 v{o}, v{vals[4]}, v{vals[5]}')
        A(f'v_cvt_pk_bf16_f32 v{o+1}, v{vals[6]}, v{vals[7]}')
        if nk == 3:
            A(f'v_cvt_pk_bf16_f32 v{o+2}, v{vals[8]}, v{vals[9]}')
            A(f'v_cvt_pk_bf16_f32 v{o+3}, v{vals[10]}, v{vals[11]}')
        else:
            A(f'v_mov_b32 v{o+2}, 0')
            A(f'v_mov_b32 v{o+3}, 0')
        A(f'v_cvt_pk_bf16_f32 v{o+4}, v{vals[0]}, v{vals[1]}')
        A(f'v_cvt_pk_bf16_f32 v{o+5}, v{vals[2]}, v{vals[3]}')
        A(f'buffer_store_dwordx4 v[{o}:{o+3}], v2, s[4:7], s24 offen')
        A('s_mov_b32 exec_hi, 0')
        A(f'buffer_store_dwordx2 v[{o+4}:{o+5}], v8, s[4:7], s25 offen')
        A('s_mov_b64 exec, -1')
        A(f's_add_u32 s24, s24, {32*1024}')
        A(f's_add_u32 s25, s25, {8*1024}')
    A.label('L_e1_end')
    A('s_endpgm')
    return name, kernel_desc(name, 168), f'; @launch kernel={name} grid=(512,1,1) block=(256,1,1) lds=0'

def resid_epilogue(A, RA, RB, ACC, sct0, stok0, res_srd, res_off, gate_idx, bias_srd, out_srd, out_off, T):
    A('v_and_b32 v4, 15, v1')
    A('v_lshrrev_b32 v5, 4, v1')
    A('v_lshlrev_b32 v5, 3, v5')
    A(f's_lshl_b32 s30, s{sct0}, 5')
    A('v_add_u32 v5, s30, v5')
    A('v_mul_u32_u24 v4, 1280, v4')
    A('v_add_u32 v4, v4, v5')
    A(f's_mul_i32 s31, s{stok0}, 1280')
    G = T; B = T + 2 * RA; X = T + 4 * RA
    A(f's_mov_b32 s33, {WS["MODB"] + gate_idx*1280}')
    for i in range(RA):
        A(f'buffer_load_dwordx2 v[{G+2*i}:{G+2*i+1}], v5, s[4:7], s33 offen offset:{32*i}')
        if bias_srd:
            A(f'buffer_load_dwordx2 v[{B+2*i}:{B+2*i+1}], v5, {bias_srd}, 0 offen offset:{32*i}')
    for j in range(RB):
        A(f's_add_u32 s32, s31, {j*16*1280 + res_off}')
        for i in range(RA):
            x = X + (j * RA + i) * 2
            A(f'buffer_load_dwordx2 v[{x}:{x+1}], v4, {res_srd}, s32 offen offset:{32*i}')
    A('s_waitcnt vmcnt(0)')
    t0 = X + RA * RB * 2
    for j in range(RB):
        A(f's_add_u32 s32, s31, {j*16*1280 + out_off}')
        for i in range(RA):
            d = ACC + (i * RB + j) * 4
            x = X + (j * RA + i) * 2
            for q in range(2):
                a, b = d + 2 * q, d + 2 * q + 1
                rnd2(A, a, b, t0)
                if bias_srd:
                    A(f'v_lshlrev_b32 v{t0+1}, 16, v{B+2*i+q}')
                    A(f'v_and_b32 v{t0+2}, 0xffff0000, v{B+2*i+q}')
                    A(f'v_add_f32 v{a}, v{a}, v{t0+1}')
                    A(f'v_add_f32 v{b}, v{b}, v{t0+2}')
                    rnd2(A, a, b, t0)
                A(f'v_lshlrev_b32 v{t0+1}, 16, v{G+2*i+q}')
                A(f'v_and_b32 v{t0+2}, 0xffff0000, v{G+2*i+q}')
                A(f'v_mul_f32 v{a}, v{a}, v{t0+1}')
                A(f'v_mul_f32 v{b}, v{b}, v{t0+2}')
                rnd2(A, a, b, t0)
                A(f'v_lshlrev_b32 v{t0+1}, 16, v{x+q}')
                A(f'v_and_b32 v{t0+2}, 0xffff0000, v{x+q}')
                A(f'v_add_f32 v{a}, v{a}, v{t0+1}')
                A(f'v_add_f32 v{b}, v{b}, v{t0+2}')
                A(f'v_cvt_pk_bf16_f32 v{x+q}, v{a}, v{b}')
            A(f'buffer_store_dwordx2 v[{x}:{x+1}], v4, {out_srd}, s32 offen offset:{32*i}')

def gen_e2(A):
    name = 'k_e2_kernel'
    kernel_header(A, name)
    A('s_cmp_ge_u32 s2, 128')
    A('s_cbranch_scc1 L_e2_end')
    srds(A, [('ws', 4), ('x', 8)])
    wave_ids(A, 20)
    A('s_lshl_b32 s21, s2, 2')
    A('s_add_u32 s21, s21, s20')
    A('s_lshr_b32 s22, s21, 3')
    A('s_and_b32 s23, s21, 7')
    A('s_mul_i32 s23, s23, 5')
    RA, RB = 5, 2
    VA, VB, ACC, FA, FB = 8, 13, 16, 56, 96
    A(f's_mul_i32 s27, s22, {32*40}')
    A('s_add_u32 s27, s27, s23')
    A('s_lshl_b32 s27, s27, 10')
    A(f's_add_u32 s27, s27, {WS["VOF"]}')
    offs(A, VA, RA, 27, 1024)
    A('s_lshl_b32 s27, s22, 16')
    A(f's_add_u32 s27, s27, {WS["PF"]}')
    offs(A, VB, RB, 27, 32 * 1024)
    gemm_direct(A, RA, RB, 32, VA, VB, 's[4:7]', 's[4:7]', 40 * 1024, 1024, ACC, FA, FB, 28, 'e2a')
    A(f's_mul_i32 s27, s22, {8*40}')
    A('s_add_u32 s27, s27, s23')
    A('s_lshl_b32 s27, s27, 10')
    A(f's_add_u32 s27, s27, {WS["VOMF"]}')
    offs(A, VA, RA, 27, 1024)
    A('s_lshl_b32 s27, s22, 14')
    A(f's_add_u32 s27, s27, {WS["PMF"]}')
    offs(A, VB, RB, 27, 8 * 1024)
    gemm_direct(A, RA, RB, 8, VA, VB, 's[4:7]', 's[4:7]', 40 * 1024, 1024, ACC, FA, FB, 28, 'e2b', zero=False)
    A('s_lshl_b32 s24, s22, 5')
    resid_epilogue(A, RA, RB, ACC, 23, 24, 's[8:11]', 0, 2, None, 's[4:7]', WS['X1'], 56)
    A.label('L_e2_end')
    A('s_endpgm')
    return name, kernel_desc(name, 128), f'; @launch kernel={name} grid=(128,1,1) block=(256,1,1) lds=0'

def gen_f1(A):
    name = 'k_f1_kernel'
    kernel_header(A, name)
    A('s_cmp_ge_u32 s2, 192')
    A('s_cbranch_scc1 L_f1_end')
    srds(A, [('ws', 4), ('b1', 8)])
    wave_ids(A, 20)
    A('s_lshl_b32 s21, s2, 2')
    A('s_add_u32 s21, s21, s20')
    magic_div(A, 22, 21, 24)
    A('s_mul_i32 s23, s22, 24')
    A('s_sub_u32 s23, s21, s23')
    A('s_lshl_b32 s23, s23, 2')
    A('s_lshl_b32 s22, s22, 2')
    RA, RB = 4, 4
    VA, VB, ACC, FA, FB = 8, 12, 16, 80, 112
    A(f's_mul_i32 s27, s23, {20*1024}')
    A(f's_add_u32 s27, s27, {WS["W1F"]}')
    offs(A, VA, RA, 27, 20 * 1024)
    A(f's_mul_i32 s27, s22, {20*1024}')
    A(f's_add_u32 s27, s27, {WS["H2F"]}')
    offs(A, VB, RB, 27, 20 * 1024)
    gemm_direct(A, RA, RB, 20, VA, VB, 's[4:7]', 's[4:7]', 1024, 1024, ACC, FA, FB, 28, 'f1')
    A('v_lshrrev_b32 v5, 4, v1')
    A('v_lshlrev_b32 v5, 3, v5')
    A('s_lshl_b32 s30, s23, 5')
    A('v_add_u32 v5, s30, v5')
    for i in range(RA):
        A(f'buffer_load_dwordx2 v[{FA+2*i}:{FA+2*i+1}], v5, s[8:11], 0 offen offset:{32*i}')
    A('s_waitcnt vmcnt(0)')
    A('s_mul_i32 s31, s22, 48')
    A('s_lshr_b32 s30, s23, 1')
    A('s_add_u32 s31, s31, s30')
    A('s_lshl_b32 s31, s31, 10')
    A(f's_add_u32 s31, s31, {WS["GF"]}')
    t0 = FA + 8
    O = FA + 12
    for j in range(RB):
        for ip in range(RA // 2):
            o = O + ((j * 2 + ip) % 4) * 4
            for hh in range(2):
                i = 2 * ip + hh
                d = ACC + (i * RB + j) * 4
                for q in range(2):
                    a, b = d + 2 * q, d + 2 * q + 1
                    rnd2(A, a, b, t0)
                    A(f'v_lshlrev_b32 v{t0+1}, 16, v{FA+2*i+q}')
                    A(f'v_and_b32 v{t0+2}, 0xffff0000, v{FA+2*i+q}')
                    A(f'v_add_f32 v{a}, v{a}, v{t0+1}')
                    A(f'v_add_f32 v{b}, v{b}, v{t0+2}')
                    rnd2(A, a, b, t0)
                    A(f'v_max_f32 v{a}, 0, v{a}')
                    A(f'v_max_f32 v{b}, 0, v{b}')
                    A(f'v_mul_f32 v{a}, v{a}, v{a}')
                    A(f'v_mul_f32 v{b}, v{b}, v{b}')
                    A(f'v_cvt_pk_bf16_f32 v{o+2*hh+q}, v{a}, v{b}')
            A(f's_add_u32 s30, s31, {(j*48 + ip)*1024}')
            A(f'buffer_store_dwordx4 v[{o}:{o+3}], v2, s[4:7], s30 offen')
    A.label('L_f1_end')
    A('s_endpgm')
    return name, kernel_desc(name, 144), f'; @launch kernel={name} grid=(192,1,1) block=(256,1,1) lds=0'

def gen_f2(A):
    name = 'k_f2_kernel'
    kernel_header(A, name)
    A('s_cmp_ge_u32 s2, 128')
    A('s_cbranch_scc1 L_f2_end')
    srds(A, [('ws', 4), ('b2', 8), ('out', 12)])
    wave_ids(A, 20)
    A('s_lshl_b32 s21, s2, 2')
    A('s_add_u32 s21, s21, s20')
    A('s_lshr_b32 s22, s21, 3')
    A('s_and_b32 s23, s21, 7')
    A('s_mul_i32 s23, s23, 5')
    RA, RB = 5, 2
    VA, VB, ACC, FA, FB = 8, 13, 16, 56, 96
    A(f's_mul_i32 s27, s23, {48*1024}')
    A(f's_add_u32 s27, s27, {WS["W2F"]}')
    offs(A, VA, RA, 27, 48 * 1024)
    A(f's_mul_i32 s27, s22, {2*48*1024}')
    A(f's_add_u32 s27, s27, {WS["GF"]}')
    offs(A, VB, RB, 27, 48 * 1024)
    gemm_direct(A, RA, RB, 48, VA, VB, 's[4:7]', 's[4:7]', 1024, 1024, ACC, FA, FB, 28, 'f2')
    A('s_lshl_b32 s24, s22, 5')
    resid_epilogue(A, RA, RB, ACC, 23, 24, 's[4:7]', WS['X1'], 5, 's[8:11]', 's[12:15]', 0, 56)
    A.label('L_f2_end')
    A('s_endpgm')
    return name, kernel_desc(name, 128), f'; @launch kernel={name} grid=(128,1,1) block=(256,1,1) lds=0'
```

```python
from asmlib import *
from layout import WS

NWG_MOD = 60
NWG_PREP = 452
NW = NWG_PREP * 4

def rne_bf16(A, v, tmp):
    A(f'v_cvt_pk_bf16_f32 v{tmp}, v{v}, v{v}')
    A(f'v_lshlrev_b32 v{v}, 16, v{tmp}')

def gen_prep(A):
    name = 'k_prep_kernel'
    kernel_header(A, name)
    A(f's_cmp_ge_u32 s2, {NWG_MOD + NWG_PREP}')
    A('s_cbranch_scc1 L_prep_end')
    A(f's_cmp_lt_u32 s2, {NWG_MOD}')
    A('s_cbranch_scc1 L_mod')
    srds(A, [('ws', 4), ('Wq', 8), ('Wk', 12), ('Wv', 16), ('Wo', 20), ('w1', 24), ('w2', 28), ('mem0', 32)])
    A('v_lshrrev_b32 v1, 6, v0')
    A('v_and_b32 v2, 63, v0')
    A('s_nop 0')
    A('v_readfirstlane_b32 s40, v1')
    A(f's_sub_u32 s41, s2, {NWG_MOD}')
    A('s_lshl_b32 s41, s41, 2')
    A('s_add_u32 s40, s40, s41')
    A('v_and_b32 v3, 15, v2')
    A('v_lshrrev_b32 v4, 4, v2')
    A('v_lshlrev_b32 v5, 4, v2')
    A('v_lshlrev_b32 v3, 1, v3')
    mats = [
        ('Wq', 8, 12288, 20, 96, 1, 0, 0, WS['WqF']),
        ('Wk', 12, 12288, 20, 96, 1, 0, 0, WS['WkF']),
        ('Wv', 16, 12288, 20, 96, 1, 0, 0, WS['WvF']),
        ('Wo', 20, 1280, 6, 10, 32, 192 * 1280, 1, WS['WoF']),
        ('w1', 24, 3072, 20, 24, 1, 0, 0, WS['W1F']),
        ('w2', 28, 1280, 48, 10, 1, 0, 1, WS['W2F']),
    ]
    for mi, (nm, srd, rs, nks, nnt4, ng, gs, perm, dst) in enumerate(mats):
        A(f's_mov_b32 s42, {rs}')
        for e in range(8):
            if not perm:
                A(f'v_lshlrev_b32 v6, 3, v4')
                A(f'v_add_u32 v6, {e}, v6')
            else:
                A(f'v_lshlrev_b32 v6, 2, v4')
                A(f'v_add_u32 v6, {e if e < 4 else 16 + e - 4}, v6')
            A(f'v_mul_lo_u32 v6, v6, s42')
            A(f'v_add_u32 v{8+e}, v6, v3')
        nq = nnt4 * nks * ng
        shift = (mi * 701) % NW
        A(f's_add_u32 s43, s40, {shift}')
        A(f's_cmp_ge_u32 s43, {NW}')
        A(f's_cselect_b32 s44, {NW}, 0')
        A(f's_sub_u32 s43, s43, s44')
        lp = f'L_prep_loop{mi}'
        le = f'L_prep_done{mi}'
        A.label(lp)
        A(f's_cmp_ge_u32 s43, {nq}')
        A(f's_cbranch_scc1 {le}')
        if ng > 1:
            magic_div(A, 45, 43, nnt4 * nks)
            A(f's_mul_i32 s46, s45, {nnt4*nks}')
            A('s_sub_u32 s46, s43, s46')
        else:
            A('s_mov_b32 s45, 0')
            A('s_mov_b32 s46, s43')
        magic_div(A, 47, 46, nks)
        A(f's_mul_i32 s48, s47, {nks}')
        A('s_sub_u32 s48, s46, s48')
        A(f's_mul_i32 s49, s45, {gs}')
        A(f's_mul_i32 s50, s48, {32*rs}')
        A('s_add_u32 s49, s49, s50')
        A('s_lshl_b32 s50, s47, 7')
        A('s_add_u32 s49, s49, s50')
        A(f's_mul_i32 s50, s45, {nnt4*4*nks}')
        A(f's_mul_i32 s51, s47, {4*nks}')
        A('s_add_u32 s50, s50, s51')
        A('s_add_u32 s50, s50, s48')
        A('s_lshl_b32 s50, s50, 10')
        A(f's_add_u32 s50, s50, {dst}')
        for j in range(4):
            for e in range(8):
                A(f'buffer_load_ushort v{32 + j*8 + e}, v{8+e}, s[{srd}:{srd+3}], s49 offen offset:{32*j}')
        A('s_waitcnt vmcnt(0)')
        for j in range(4):
            for e2 in range(4):
                A(f'v_lshl_or_b32 v{16 + j*4 + e2}, v{32 + j*8 + 2*e2 + 1}, 16, v{32 + j*8 + 2*e2}')
        for j in range(4):
            A(f'buffer_store_dwordx4 v[{16+j*4}:{19+j*4}], v5, s[4:7], s50 offen')
            if j < 3:
                A(f's_add_u32 s50, s50, {nks*1024}')
        A(f's_add_u32 s43, s43, {NW}')
        A(f's_branch {lp}')
        A.label(le)
    st = WS['MEMB'] + 10240
    en = WS['PB'] + 64 * 20480
    nchunks = (en - st) // 1024
    A('v_mov_b32 v16, -1')
    A('v_mov_b32 v17, -1')
    A('v_mov_b32 v18, -1')
    A('v_mov_b32 v19, -1')
    A('s_mov_b32 s43, s40')
    A.label('L_fill_loop')
    A(f's_cmp_ge_u32 s43, {nchunks}')
    A('s_cbranch_scc1 L_fill_done')
    A('s_lshl_b32 s50, s43, 10')
    A(f's_add_u32 s50, s50, {st}')
    A('buffer_store_dwordx4 v[16:19], v5, s[4:7], s50 offen')
    A(f's_add_u32 s43, s43, {NW}')
    A('s_branch L_fill_loop')
    A.label('L_fill_done')
    A(f's_sub_u32 s43, s40, {NW-10}')
    A('s_cmp_ge_u32 s43, 10')
    A('s_cbranch_scc1 L_prep_end')
    A('s_lshl_b32 s50, s43, 6')
    A('v_add_u32 v6, s50, v2')
    A('v_and_b32 v7, 7, v6')
    A('v_mul_u32_u24 v7, 1280, v7')
    A('v_lshrrev_b32 v8, 3, v6')
    A('v_lshlrev_b32 v8, 4, v8')
    A('v_add_u32 v7, v7, v8')
    A('v_lshlrev_b32 v6, 4, v6')
    A('buffer_load_dwordx4 v[16:19], v7, s[32:35], 0 offen')
    A('s_waitcnt vmcnt(0)')
    A(f'buffer_store_dwordx4 v[16:19], v6, s[4:7], 0 offen offset:{WS["MEMB"]}') if WS["MEMB"] < 4096 else A(f's_mov_b32 s50, {WS["MEMB"]}\nbuffer_store_dwordx4 v[16:19], v6, s[4:7], s50 offen')
    A('s_branch L_prep_end')
    A.label('L_mod')
    srds(A, [('ws', 4), ('c', 8), ('wmod', 12)])
    A('v_lshrrev_b32 v1, 6, v0')
    A('v_and_b32 v2, 63, v0')
    A('v_and_b32 v3, 7, v2')
    A('v_lshrrev_b32 v4, 3, v2')
    A('v_mul_u32_u24 v5, 160, v1')
    A('v_add_u32 v5, v5, v4')
    A('v_lshlrev_b32 v6, 1, v5')
    A('v_mul_u32_u24 v7, 7680, v5')
    A('v_lshlrev_b32 v8, 4, v3')
    A('v_add_u32 v7, v7, v8')
    A('s_lshl_b32 s20, s2, 7')
    for i in range(20):
        A(f'buffer_load_ushort v{20+i}, v6, s[8:11], 0 offen offset:{16*i}')
    A('v_add_u32 v7, s20, v7')
    for i in range(20):
        A(f's_mov_b32 s21, {i*8*7680}')
        A(f'buffer_load_dwordx4 v[{40+4*i}:{43+4*i}], v7, s[12:15], s21 offen')
    for e in range(8):
        A(f'v_mov_b32 v{10+e}, 0')
    A('s_waitcnt vmcnt(20)')
    for i in range(20):
        v = 20 + i
        A(f'v_lshlrev_b32 v{v}, 16, v{v}')
        A(f'v_mul_f32 v18, 0xbfb8aa3b, v{v}')
        A('v_exp_f32 v18, v18')
        A('s_nop 0')
        A('v_add_f32 v18, 1.0, v18')
        A('v_rcp_f32 v18, v18')
        A('s_nop 0')
        A(f'v_mul_f32 v{v}, v{v}, v18')
        rne_bf16(A, v, 18)
    for i in range(20):
        A(f's_waitcnt vmcnt({19-i})')
        for q in range(4):
            src = 40 + 4 * i + q
            A(f'v_lshlrev_b32 v18, 16, v{src}')
            A(f'v_and_b32 v19, 0xffff0000, v{src}')
            A(f'v_fmac_f32 v{10+2*q}, v{20+i}, v18')
            A(f'v_fmac_f32 v{11+2*q}, v{20+i}, v19')
    A('v_lshlrev_b32 v5, 3, v1')
    A('v_add_u32 v5, v5, v4')
    A('v_lshlrev_b32 v5, 8, v5')
    A('v_lshlrev_b32 v6, 5, v3')
    A('v_add_u32 v5, v5, v6')
    A('ds_write_b128 v5, v[10:13]')
    A('ds_write_b128 v5, v[14:17] offset:16')
    A('s_waitcnt lgkmcnt(0)')
    A('s_barrier')
    A('v_cmp_gt_u32 vcc, 64, v0')
    A('s_and_saveexec_b64 s[22:23], vcc')
    A('s_cbranch_execz L_prep_end')
    A('v_lshlrev_b32 v5, 2, v0')
    for i in range(32):
        A(f'ds_read_b32 v{20+i}, v5 offset:{256*i}')
    A('s_waitcnt lgkmcnt(0)')
    for i in range(1, 32):
        A(f'v_add_f32 v20, v20, v{20+i}')
    A('v_cvt_pk_bf16_f32 v20, v20, v20')
    A('v_lshlrev_b32 v5, 1, v0')
    A('v_add_u32 v5, s20, v5')
    A(f'buffer_store_short v20, v5, s[4:7], 0 offen offset:{WS["MODB"]}')
    A.label('L_prep_end')
    A('s_endpgm')
    return name, kernel_desc(name, 128), f'; @launch kernel={name} grid=({NWG_MOD+NWG_PREP},1,1) block=(256,1,1) lds=8192'

def gen_ln(A, name, src, s_idx, c_idx, dst):
    kernel_header(A, name)
    A('s_cmp_ge_u32 s2, 128')
    A(f's_cbranch_scc1 L_{name}_end')
    srds(A, [('ws', 4), ('x', 8)])
    A('v_and_b32 v1, 15, v0')
    A('v_lshrrev_b32 v2, 4, v0')
    A('v_mul_u32_u24 v3, 1280, v1')
    A('v_lshlrev_b32 v4, 4, v2')
    A('v_add_u32 v3, v3, v4')
    A('s_mul_i32 s20, s2, 20480')
    if src == 'x':
        srd = 's[8:11]'
    else:
        srd = 's[4:7]'
        A(f's_add_u32 s20, s20, {src}')
    X = 64
    RAW = 16
    F = 96
    for ks in range(20):
        A(f'buffer_load_dwordx4 v[{RAW+4*ks}:{RAW+4*ks+3}], v3, {srd}, s20 offen offset:{64*ks}')
    A('v_mov_b32 v5, 0')
    for ks in range(20):
        A(f's_waitcnt vmcnt({19-ks})')
        for q in range(4):
            r = RAW + 4 * ks + q
            A(f'v_lshlrev_b32 v{F+8*ks+2*q}, 16, v{r}')
            A(f'v_and_b32 v{F+8*ks+2*q+1}, 0xffff0000, v{r}')
            A(f'v_add_f32 v5, v5, v{F+8*ks+2*q}')
            A(f'v_add_f32 v5, v5, v{F+8*ks+2*q+1}')
    A('v_xor_b32 v6, 16, v0')
    A('v_lshlrev_b32 v6, 2, v6')
    A('v_xor_b32 v7, 32, v0')
    A('v_lshlrev_b32 v7, 2, v7')
    def xred(v):
        A(f'ds_bpermute_b32 v8, v6, v{v}')
        A('s_waitcnt lgkmcnt(0)')
        A(f'v_add_f32 v{v}, v{v}, v8')
        A(f'ds_bpermute_b32 v8, v7, v{v}')
        A('s_waitcnt lgkmcnt(0)')
        A(f'v_add_f32 v{v}, v{v}, v8')
    xred(5)
    A('v_mul_f32 v5, 0x3acccccd, v5')
    A('v_mov_b32 v9, 0')
    for i in range(160):
        A(f'v_sub_f32 v8, v{F+i}, v5')
        A('v_fmac_f32 v9, v8, v8')
    xred(9)
    A('v_mul_f32 v9, 0x3acccccd, v9')
    rne_bf16(A, 9, 8)
    A('v_add_f32 v9, 0x3727c5ac, v9')
    rne_bf16(A, 9, 8)
    A('v_sqrt_f32 v9, v9')
    A('s_nop 0')
    rne_bf16(A, 9, 8)
    A('v_rcp_f32 v9, v9')
    rne_bf16(A, 5, 8)
    A('v_lshlrev_b32 v10, 4, v2')
    for ks in range(20):
        A(f'buffer_load_dwordx4 v[{RAW+4*ks}:{RAW+4*ks+3}], v10, s[4:7], 0 offen offset:{WS["MODB"] + c_idx*1280 + 64*ks}' if (WS["MODB"] + c_idx*1280 + 64*ks) < 4096 else
          f's_mov_b32 s21, {WS["MODB"] + c_idx*1280 + 64*ks}\nbuffer_load_dwordx4 v[{RAW+4*ks}:{RAW+4*ks+3}], v10, s[4:7], s21 offen')
    for i in range(0, 160, 2):
        A(f'v_sub_f32 v{F+i}, v{F+i}, v5')
        A(f'v_sub_f32 v{F+i+1}, v{F+i+1}, v5')
        A(f'v_cvt_pk_bf16_f32 v8, v{F+i}, v{F+i+1}')
        A(f'v_lshlrev_b32 v{F+i}, 16, v8')
        A(f'v_and_b32 v{F+i+1}, 0xffff0000, v8')
        A(f'v_mul_f32 v{F+i}, v{F+i}, v9')
        A(f'v_mul_f32 v{F+i+1}, v{F+i+1}, v9')
        A(f'v_cvt_pk_bf16_f32 v8, v{F+i}, v{F+i+1}')
        A(f'v_lshlrev_b32 v{F+i}, 16, v8')
        A(f'v_and_b32 v{F+i+1}, 0xffff0000, v8')
    for ks in range(20):
        A(f's_waitcnt vmcnt({19-ks})')
        for q in range(4):
            r = RAW + 4 * ks + q
            i = 8 * ks + 2 * q
            A(f'v_lshlrev_b32 v11, 16, v{r}')
            A(f'v_and_b32 v12, 0xffff0000, v{r}')
            A('v_add_f32 v11, 1.0, v11')
            A('v_add_f32 v12, 1.0, v12')
            A('v_cvt_pk_bf16_f32 v8, v11, v12')
            A('v_lshlrev_b32 v11, 16, v8')
            A('v_and_b32 v12, 0xffff0000, v8')
            A(f'v_mul_f32 v{F+i}, v{F+i}, v11')
            A(f'v_mul_f32 v{F+i+1}, v{F+i+1}, v12')
            A(f'v_cvt_pk_bf16_f32 v8, v{F+i}, v{F+i+1}')
            A(f'v_lshlrev_b32 v{F+i}, 16, v8')
            A(f'v_and_b32 v{F+i+1}, 0xffff0000, v8')
    for ks in range(20):
        A(f's_mov_b32 s21, {WS["MODB"] + s_idx*1280 + 64*ks}')
        A(f'buffer_load_dwordx4 v[{RAW+4*ks}:{RAW+4*ks+3}], v10, s[4:7], s21 offen')
    A('v_lshlrev_b32 v13, 4, v0')
    A('s_mul_i32 s22, s2, 20480')
    A(f's_add_u32 s22, s22, {dst}')
    for ks in range(20):
        A(f's_waitcnt vmcnt({19-ks})' if ks == 0 else f's_waitcnt vmcnt({19})')
        for q in range(4):
            r = RAW + 4 * ks + q
            i = 8 * ks + 2 * q
            A(f'v_lshlrev_b32 v11, 16, v{r}')
            A(f'v_and_b32 v12, 0xffff0000, v{r}')
            A(f'v_add_f32 v{F+i}, v{F+i}, v11')
            A(f'v_add_f32 v{F+i+1}, v{F+i+1}, v12')
            A(f'v_cvt_pk_bf16_f32 v{r}, v{F+i}, v{F+i+1}')
        A(f'buffer_store_dwordx4 v[{RAW+4*ks}:{RAW+4*ks+3}], v13, s[4:7], s22 offen')
        A(f's_add_u32 s22, s22, 1024')
    A.label(f'L_{name}_end')
    A('s_endpgm')
    return name, kernel_desc(name, 256), f'; @launch kernel={name} grid=(128,1,1) block=(64,1,1) lds=0'
```

```python
def al(x, a=4096): return (x + a - 1) // a * a
off = 0
def take(n):
    global off
    o = off
    off = al(off + n)
    return o
WS = {}
WS['MODB'] = take(3840*2)
WS['MEMB'] = take(65*10240)
WS['PB']   = take(64*20480)
WS['FLAGS']= take(65536)
WS['H1F']  = take(128*20*1024)
WS['WqF']  = take(384*20*1024)
WS['WkF']  = take(384*20*1024)
WS['WvF']  = take(384*20*1024)
WS['WoF']  = take(32*40*6*1024)
WS['W1F']  = take(96*20*1024)
WS['W2F']  = take(40*48*1024)
WS['QF']   = take(128*192*1024)
WS['KF']   = take(128*192*1024)
WS['VOF']  = take(64*32*40*1024)
WS['WVOF'] = take(20*32*40*1024)
WS['KMF']  = take(64*32*6*1024)
WS['VOMF'] = take(64*8*40*1024)
WS['PF']   = take(64*2*32*1024)
WS['PMF']  = take(64*2*8*1024)
WS['X1']   = take(2048*640*2)
WS['H2F']  = take(128*20*1024)
WS['GF']   = take(128*48*1024)
WS['TF2']  = take(32768)
WS['TF3']  = take(32768)
WS['END']  = off
assert off <= 268435456
if __name__ == '__main__':
    for k, v in WS.items(): print(k, v, hex(v))
```

```python
import sys, os
sys.path.insert(0, os.path.dirname(__file__))
from asmlib import *
from layout import WS
from k_prep import gen_prep, gen_ln
from k_gemm import gen_qk, gen_vo
from k_post import gen_e1, gen_e2, gen_f1, gen_f2
from k_chain import gen_chain
NAME = 'adaLN_cond__memory_aug_recurrent_mem_tr__dense_activation_squared_relu__prompt'
def build(upto=None):
    ref = open(f'cdna_kernels/{NAME}.s.ref').read()
    hdr = [l for l in ref.split('\n') if l.startswith('; Kernarg') or l.startswith(';   offset')]
    A = Asm()
    ks = []
    ks.append(gen_prep(A))
    ks.append(gen_chain(A))
    ks.append(gen_e1(A))
    ks.append(gen_e2(A))
    ks.append(gen_ln(A, 'k_ln2_kernel', WS['X1'], 3, 4, WS['H2F']))
    ks.append(gen_f1(A))
    ks.append(gen_f2(A))
    launches = [k[2] for k in ks]
    if upto: launches = launches[:upto]
    out = '\n'.join(hdr) + '\n' + '\n'.join(launches) + '\n'
    out += '.amdgcn_target "amdgcn-amd-amdhsa--gfx950"\n.text\n' + A.text()
    out += ''.join(k[1] for k in ks)
    return out
if __name__ == '__main__':
    upto = int(sys.argv[1]) if len(sys.argv) > 1 else None
    dst = sys.argv[2] if len(sys.argv) > 2 else f'cdna_kernels/{NAME}.s'
    open(dst, 'w').write(build(upto))
```

```python
from asmlib import *
from layout import WS
from k_post import SCALE, LOG2E

SPIN = 400000
MEMLDS = 0
RED = 10240
WLDS = 17408
TL = 16384
LDS_CHAIN = WLDS + 4 * 18 * 1024

class Lgkm:
    def __init__(s, A): s.A = A; s.q = []
    def issue(s, tag, text): s.A(text); s.q.append(tag)
    def need(s, tag):
        if tag in s.q:
            i = s.q.index(tag)
            n = len(s.q) - 1 - i
            s.A(f's_waitcnt lgkmcnt({min(n,15)})')
            s.q = s.q[i + 1:]

import os
PROF = int(os.environ.get('PROF', '0'))
def stamp(A, idx):
    if PROF:
        A('s_memrealtime s[98:99]' if PROF == 2 else 's_memtime s[98:99]')
        A('s_waitcnt lgkmcnt(0)')
        A(f's_mov_b32 s{72+idx}, s98')
def stamp_flush(A, n, tag):
    if PROF:
        A('s_cmp_lg_u32 s40, 20')
        A(f's_cbranch_scc1 L_{tag}_nofl')
        A('s_lshl_b32 s96, s2, 2')
        A('s_add_u32 s96, s96, s20')
        A('s_lshl_b32 s96, s96, 6')
        A(f's_add_u32 s96, s96, {WS["FLAGS"]}')
        for i in range(n):
            A(f'v_mov_b32 v26, s{72+i}')
            A('v_mov_b32 v27, 0')
            A(f'buffer_store_dword v26, v27, s[4:7], s96 offen offset:{4*i}')
        A(f'L_{tag}_nofl:')

KT = int(os.environ.get('KT', '0'))
XM = int(os.environ.get('XM', '6'))
XP = int(os.environ.get('XP', '14'))
D = {k: int(os.environ.get(k, '0')) for k in ('d0s1', 'd1s1', 'd0s2', 'd1s2', 'd0p', 'd1p')}
def delay(A, tag, n):
    if n:
        A(f's_mov_b32 s43, {n}')
        A(f'L_dl_{tag}:')
        A('s_nop 15')
        A('s_sub_u32 s43, s43, 1')
        A('s_cmp_lg_u32 s43, 0')
        A(f's_cbranch_scc1 L_dl_{tag}')
def tag_poll(A, tag, treg, vtag, sbase, nx, mask=None):
    A('s_mov_b32 s42, 0')
    if mask: A(f's_mov_b64 exec, {mask}')
    for j in range(KT):
        A(f'buffer_load_dword v{treg+j}, v{vtag}, s[4:7], s{sbase} offen sc1')
        if j < KT - 1:
            for _ in range(nx): A('s_nop 15')
    A.label(f'L_{tag}_tag')
    for j in range(KT):
        A(f's_waitcnt vmcnt({KT-1})')
        A(f'v_cmp_eq_u32 vcc, -1, v{treg+j}')
        A(f's_cbranch_vccz L_{tag}_tagok')
        A(f'buffer_load_dword v{treg+j}, v{vtag}, s[4:7], s{sbase} offen sc1')
        for _ in range(nx): A('s_nop 15')
    A('s_add_u32 s42, s42, 1')
    A('s_cmp_lt_u32 s42, s44')
    A(f's_cbranch_scc1 L_{tag}_tag')
    A.label(f'L_{tag}_tagok')
    if mask: A('s_mov_b64 exec, -1')

MS, PS = 10240, 20480
PUB = RED + 5632
S1MODE = os.environ.get('S1MODE', 'flag')
def gather_mem(A, tag, sstep):
    A(f's_mul_i32 s41, s{sstep}, {MS}')
    A(f's_add_u32 s41, s41, {WS["MEMB"]}')
    stamp(A, 0)
    flag = False
    def loads(sc):
        A(f'buffer_load_dwordx4 v[12:15], v4, s[4:7], s41 offen {sc}')
        A(f'buffer_load_dwordx4 v[16:19], v4, s[4:7], s41 offen offset:1024 {sc}')
        A('s_mov_b64 exec, s[60:61]')
        A(f'buffer_load_dwordx4 v[20:23], v4, s[4:7], s41 offen offset:2048 {sc}')
        A('s_mov_b64 exec, -1')
    if flag:
        A(f's_cmp_eq_u32 s{sstep}, 0')
        A(f's_cbranch_scc1 L_{tag}m_tagok2')
        tag_poll(A, tag + 'm', 24, 1, 41, XM, 's[64:65]')
        A.label(f'L_{tag}m_tagok2')
        A('s_mov_b32 s42, 0')
        loads('')
        A(f's_branch L_{tag}_chk')
    else:
        A('s_mov_b32 s42, 0')
    A.label(f'L_{tag}_poll')
    loads('sc1')
    A.label(f'L_{tag}_chk')
    A('s_waitcnt vmcnt(0)')
    A('v_max3_u32 v24, v12, v13, v14')
    A('v_max3_u32 v25, v15, v16, v17')
    A('v_max3_u32 v24, v24, v18, v19')
    A('v_max3_u32 v25, v25, v20, v21')
    A('v_max3_u32 v24, v24, v22, v23')
    A('v_max_u32 v24, v24, v25')
    A('v_cmp_eq_u32 vcc, -1, v24')
    A(f's_cbranch_vccz L_{tag}_ok')
    A('s_add_u32 s42, s42, 1')
    A('s_cmp_lt_u32 s42, s44')
    A(f's_cbranch_scc1 L_{tag}_poll')
    A('s_mov_b32 s44, 0')
    A.label(f'L_{tag}_ok')
    stamp(A, 1)
    if PROF: A('s_mov_b32 s79, s42')
    A(f'ds_write_b128 v4, v[12:15] offset:{MEMLDS}')
    A(f'ds_write_b128 v4, v[16:19] offset:{MEMLDS+1024}')
    A('s_mov_b64 exec, s[60:61]')
    A(f'ds_write_b128 v4, v[20:23] offset:{MEMLDS+2048}')
    A('s_mov_b64 exec, -1')
    A('s_waitcnt lgkmcnt(0)')
    A('s_barrier')

def dpp_red32(A, op, v, t):
    for c in ['quad_perm:[1,0,3,2]', 'quad_perm:[2,3,0,1]', 'row_half_mirror', 'row_mirror']:
        A('s_nop 1')
        A(f'{op}_dpp v{v}, v{v}, v{v} {c} row_mask:0xf bank_mask:0xf')
    A(f'v_mov_b32 v{t}, v{v}')
    A('s_nop 1')
    A(f'v_permlane16_swap_b32 v{v}, v{t}')
    A('s_nop 1')
    A(f'{op} v{v}, v{v}, v{t}')

def gen_chain(A):
    name = 'k_chain_kernel'
    kernel_header(A, name)
    A('s_cmp_ge_u32 s2, 112')
    A('s_cbranch_scc1 L_ch_end')
    srds(A, [('ws', 4)])
    A('v_lshrrev_b32 v1, 6, v0')
    A('s_nop 0')
    A('v_readfirstlane_b32 s20, v1')
    A('v_and_b32 v1, 63, v0')
    A('v_lshlrev_b32 v2, 4, v1')
    A('s_mul_i32 s21, s20, 2560')
    A('v_add_u32 v4, s21, v2')
    for r in range(20, 24):
        A(f'v_mov_b32 v{r}, 0')
    A(f's_mov_b32 s44, {SPIN}')
    A('s_mov_b32 s60, -1')
    A('s_mov_b32 s61, 0')
    A('s_mov_b32 s62, 0xffff')
    A('s_mov_b32 s63, 0')
    A('s_mov_b32 s64, 0xfffff')
    A('s_mov_b32 s65, 0')
    A('s_mov_b32 s40, 0')
    A('s_cmp_ge_u32 s2, 32')
    A('s_cbranch_scc1 L_ch_s2')
    gen_s1(A)
    A.label('L_ch_s2')
    gen_s2(A)
    A.label('L_ch_end')
    A('s_endpgm')
    return name, kernel_desc(name, 256, 256), f'; @launch kernel={name} grid=(112,1,1) block=(256,1,1) lds={LDS_CHAIN}'

def gen_s1(A):
    BF, ACC, KFO, SACC, OPS = 24, 40, 64, 76, 88
    TMPA = [12, 16, 76, 80, 84, 88]
    NREG_KS = 17
    def wreg(ks, t):
        f = ks * 6 + t
        return (100 + f * 4) if f < 39 else (256 + (f - 39) * 4)
    A('s_mul_i32 s22, s2, 12')
    A('s_mul_i32 s51, s20, 3')
    A('s_add_u32 s22, s22, s51')
    A(f's_mul_i32 s22, s22, {20*1024}')
    A(f's_add_u32 s22, s22, {WS["WqF"]}')
    KOFF = WS['WkF'] - WS['WqF']
    for t in range(6):
        A(f's_add_u32 s23, s22, {(t % 3)*20*1024 + (KOFF if t >= 3 else 0)}')
        for ks in range(NREG_KS):
            if ks % 4 == 0 and ks:
                A('s_add_u32 s23, s23, 4096')
            r = wreg(ks, t)
            A(f'buffer_load_dwordx4 {reg(r,4)}, v2, s[4:7], s23 offen offset:{(ks % 4)*1024}')
    A(f's_mul_i32 s24, s20, {18*1024}')
    A(f'v_add_u32 v0, s24, v2')
    for t in range(6):
        A(f's_add_u32 s23, s22, {(t % 3)*20*1024 + (KOFF if t >= 3 else 0) + 16*1024}')
        for k3 in range(3):
            r = 24 + k3 * 4
            A(f'buffer_load_dwordx4 v[{r}:{r+3}], v2, s[4:7], s23 offen offset:{(1+k3)*1024}')
        A('s_waitcnt vmcnt(0)')
        for k3 in range(3):
            r = 24 + k3 * 4
            A(f'ds_write_b128 v0, v[{r}:{r+3}] offset:{WLDS + (k3*6 + t)*1024}')
        A('s_waitcnt lgkmcnt(0)')
    A('v_and_b32 v5, 7, v1')
    A('v_lshrrev_b32 v6, 4, v1')
    A('v_lshlrev_b32 v3, 3, v6')
    A('v_add_u32 v3, v3, v5')
    A('v_lshlrev_b32 v3, 4, v3')
    A('v_lshlrev_b32 v7, 2, v5')
    A('v_add_u32 v7, s20, v7')
    A('v_mul_u32_u24 v7, 176, v7')
    A('v_and_b32 v8, 1, v6')
    A('v_lshlrev_b32 v8, 4, v8')
    A('v_add_u32 v8, v8, v7')
    A('v_lshlrev_b32 v9, 5, v6')
    A('v_add_u32 v7, v7, v9')
    A('v_lshrrev_b32 v9, 5, v1')
    A('s_lshl_b32 s24, s20, 1')
    A('v_add_u32 v9, s24, v9')
    A('v_and_b32 v10, 31, v1')
    A('v_mul_u32_u24 v11, 704, v9')
    A('v_lshlrev_b32 v5, 2, v10')
    A('v_add_u32 v5, v5, v11')
    A('v_and_b32 v6, 7, v10')
    A('v_lshlrev_b32 v6, 2, v6')
    A('v_add_u32 v6, v6, v11')
    A('v_lshlrev_b32 v9, 4, v9')
    A('v_lshrrev_b32 v11, 3, v10')
    A('v_lshlrev_b32 v11, 7, v11')
    A('v_and_b32 v12, 7, v10')
    A('v_lshlrev_b32 v12, 1, v12')
    A('v_add_u32 v11, v11, v12')
    A('v_add_u32 v11, 128, v11')
    A('v_lshlrev_b32 v12, 1, v10')
    A('v_subrev_u32 v12, 2, v12')
    A('v_and_b32 v13, 1, v10')
    A('v_cmp_eq_u32 vcc, 1, v13')
    A('v_cndmask_b32 v12, v11, v12, vcc')
    A('s_mov_b64 s[46:47], vcc')
    A('v_cmp_gt_u32 vcc, 8, v10')
    A('s_mov_b64 s[48:49], vcc')
    A('v_add_u32 v10, v12, v9')
    A('s_and_b64 s[56:57], s[46:47], s[48:49]')
    A('s_andn2_b64 s[58:59], -1, s[46:47]')
    A('s_or_b64 s[56:57], s[56:57], s[58:59]')
    A('s_mov_b32 s66, -1')
    A('s_mov_b32 s67, 0xff')
    A(f'v_mov_b32 v9, {SCALE}')
    A(f'v_mov_b32 v11, {LOG2E}')
    for a in range(3):
        A(f's_add_u32 s50, s51, {a}')
        A('s_lshr_b32 s52, s50, 1')
        A('s_lshl_b32 s52, s52, 10')
        A('s_and_b32 s50, s50, 1')
        A('s_lshl_b32 s50, s50, 3')
        A(f's_add_u32 s{53+a}, s50, s52')
    def kf_prefetch(sreg):
        A(f's_mul_i32 s45, s{sreg}, {2*192*1024}')
        A(f's_mul_i32 s50, s2, {6*1024}')
        A('s_add_u32 s45, s45, s50')
        A(f's_add_u32 s45, s45, {WS["KF"]}')
        for a in range(3):
            A(f's_add_u32 s50, s45, s{53+a}')
            A(f'buffer_load_dwordx2 v[{KFO+a*4}:{KFO+a*4+1}], v2, s[4:7], s50 offen')
            A(f's_add_u32 s50, s50, {192*1024}')
            A(f'buffer_load_dwordx2 v[{KFO+a*4+2}:{KFO+a*4+3}], v2, s[4:7], s50 offen')
    A('v_lshlrev_b32 v1, 3, v1')
    A('s_mul_i32 s24, s20, 160')
    A('s_add_u32 s24, s24, 10240')
    A('v_add_u32 v1, s24, v1')
    kf_prefetch(40)
    A('s_waitcnt vmcnt(0)')
    A.label('L_s1_loop')
    gather_mem(A, 's1', 40)
    stamp(A, 2)
    L = Lgkm(A)
    order = list(range(0, 6)) + [17] + list(range(6, 12)) + [18] + list(range(12, 17)) + [19]
    def rdB(n):
        ks = order[n]
        b = BF + (n % 4) * 4
        L.issue(('B', n), f'ds_read_b128 v[{b}:{b+3}], v3 offset:{MEMLDS + ks*512}')
    def rdA(ks):
        for t in range(6):
            r = TMPA[t]
            L.issue(('A', ks, t), f'ds_read_b128 v[{r}:{r+3}], v0 offset:{WLDS + ((ks-17)*6 + t)*1024}')
    for n in range(3): rdB(n)
    rdA(17)
    for n in range(20):
        ks = order[n]
        if n + 3 < 20: rdB(n + 3)
        L.need(('B', n))
        b = BF + (n % 4) * 4
        for t in range(6):
            if ks >= 17:
                L.need(('A', ks, t))
                a = vr(TMPA[t], 4)
            else:
                a = reg(wreg(ks, t), 4)
            d = ACC + t * 4
            c = '0' if n == 0 else f'v[{d}:{d+3}]'
            A(f'v_mfma_f32_16x16x32_bf16 v[{d}:{d+3}], {a}, v[{b}:{b+3}], {c}')
        if ks in (17, 18):
            rdA(ks + 1)
    A('s_nop 7')
    A('s_nop 3')
    stamp(A, 3)
    for t in range(6):
        d = ACC + t * 4
        A(f'v_cvt_pk_bf16_f32 v{OPS+2*t}, v{d}, v{d+1}')
        A(f'v_cvt_pk_bf16_f32 v{OPS+2*t+1}, v{d+2}, v{d+3}')
    A('s_nop 1')
    for a in range(3):
        q = OPS + 2 * a
        k = OPS + 6 + 2 * a
        for st, src in ((0, k), (1, KFO + a * 4), (2, KFO + a * 4 + 2)):
            d = SACC + st * 4
            c = '0' if a == 0 else f'v[{d}:{d+3}]'
            A(f'v_mfma_f32_16x16x16_bf16 v[{d}:{d+3}], v[{src}:{src+1}], v[{q}:{q+1}], {c}')
    A('s_lshl_b32 s45, s40, 5')
    A('s_add_u32 s45, s45, s2')
    A(f's_mul_i32 s45, s45, {6*1024}')
    A(f's_add_u32 s45, s45, {WS["KMF"]}')
    for a in range(3):
        k = OPS + 6 + 2 * a
        A(f's_add_u32 s50, s45, s{53+a}')
        A(f'buffer_store_dwordx2 v[{k}:{k+1}], v2, s[4:7], s50 offen')
    A('s_nop 3')
    A(f'ds_write_b128 v8, v[{SACC}:{SACC+3}] offset:{RED}')
    A(f'ds_write_b128 v7, v[{SACC+4}:{SACC+7}] offset:{RED+32}')
    A(f'ds_write_b128 v7, v[{SACC+8}:{SACC+11}] offset:{RED+48}')
    A('s_add_u32 s50, s40, 1')
    A('s_min_u32 s52, s50, 63')
    kf_prefetch(52)
    A('s_waitcnt lgkmcnt(0)')
    stamp(A, 4)
    A('s_barrier')
    stamp(A, 5)
    A(f'v_add_u32 v24, {RED}, v5')
    A(f'v_add_u32 v25, {RED}, v6')
    A('ds_read2_b32 v[12:13], v24 offset0:8 offset1:52')
    A('ds_read2_b32 v[14:15], v24 offset0:96 offset1:140')
    A('ds_read2_b32 v[16:17], v25 offset0:0 offset1:44')
    A('ds_read2_b32 v[18:19], v25 offset0:88 offset1:132')
    A('s_waitcnt lgkmcnt(2)')
    A('v_add_f32 v12, v12, v13')
    A('v_add_f32 v14, v14, v15')
    A('s_waitcnt lgkmcnt(0)')
    A('v_add_f32 v16, v16, v17')
    A('v_add_f32 v18, v18, v19')
    A('v_add_f32 v12, v12, v14')
    A('v_add_f32 v16, v16, v18')
    A('v_cvt_pk_bf16_f32 v13, v12, v16')
    A('v_lshlrev_b32 v12, 16, v13')
    A('v_and_b32 v16, 0xffff0000, v13')
    A('v_mul_f32 v12, v12, v9')
    A('v_mul_f32 v16, v16, v9')
    A('v_cvt_pk_bf16_f32 v13, v12, v16')
    A('v_lshlrev_b32 v12, 16, v13')
    A('v_and_b32 v16, 0xffff0000, v13')
    A('v_mov_b32 v14, 0xff800000')
    A('v_cndmask_b32 v16, v14, v16, s[48:49]')
    A('v_max_f32 v13, v12, v16')
    dpp_red32(A, 'v_max_f32', 13, 14)
    A('v_mul_f32 v13, v13, v11')
    A('v_fma_f32 v12, v12, v11, -v13')
    A('v_fma_f32 v16, v16, v11, -v13')
    A('v_exp_f32 v12, v12')
    A('v_exp_f32 v16, v16')
    A('s_nop 0')
    A('v_add_f32 v13, v12, v16')
    dpp_red32(A, 'v_add_f32', 13, 14)
    A('v_rcp_f32 v13, v13')
    A('s_nop 0')
    A('v_mul_f32 v12, v12, v13')
    A('v_mul_f32 v16, v16, v13')
    A('s_nop 1')
    A('v_mov_b32_dpp v14, v12 quad_perm:[1,0,3,2] row_mask:0xf bank_mask:0xf')
    A('v_mov_b32_dpp v15, v16 quad_perm:[1,0,3,2] row_mask:0xf bank_mask:0xf')
    A('v_cvt_pk_bf16_f32 v12, v12, v14')
    A('v_cvt_pk_bf16_f32 v16, v15, v16')
    A('v_cndmask_b32 v12, v12, v16, s[46:47]')
    A('v_min_u32 v12, 0xfffffffe, v12')
    A('s_mov_b64 exec, s[56:57]')
    A(f'ds_write_b32 v10, v12 offset:{PUB}')
    A('s_mov_b64 exec, -1')
    A(f's_mul_i32 s45, s40, {PS}')
    A('s_mul_i32 s50, s2, 640')
    A('s_add_u32 s45, s45, s50')
    A(f's_add_u32 s45, s45, {WS["PB"]}')
    A('s_waitcnt lgkmcnt(0)')
    A('s_barrier')
    A('s_cmp_lg_u32 s20, 0')
    A('s_cbranch_scc1 L_s1_nopub')
    A(f'ds_read_b128 v[12:15], v2 offset:{PUB}')
    A('s_waitcnt lgkmcnt(0)')
    A('s_mov_b64 exec, s[66:67]')
    A('buffer_store_dwordx4 v[12:15], v2, s[4:7], s45 offen sc1')
    A('s_mov_b64 exec, -1')
    A.label('L_s1_nopub')
    stamp(A, 6)
    stamp_flush(A, 8, 's1')
    A('s_add_u32 s40, s40, 1')
    A('s_cmp_lt_u32 s40, 64')
    A('s_cbranch_scc1 L_s1_loop')
    A('s_endpgm')

def gen_s2(A):
    PT, PM, VT, MOP, ACCM, ACC, VMOP, PK = 24, 56, 64, 96, 112, 128, 132, 140
    def wreg(ks, pp):
        f = ks * 4 + pp
        return (192 + f * 4) if f < 16 else (256 + (f - 16) * 4)
    A('s_sub_u32 s21, s2, 32')
    A('s_lshr_b32 s22, s21, 1')
    A('s_and_b32 s23, s21, 1')
    A('v_and_b32 v5, 15, v1')
    A('v_lshrrev_b32 v6, 4, v1')
    A('v_and_b32 v7, 7, v1')
    A('v_lshrrev_b32 v8, 3, v5')
    A('s_lshl_b32 s24, s23, 3')
    A('v_lshlrev_b32 v9, 4, v6')
    A('v_add_u32 v9, v9, v7')
    A('v_add_u32 v9, s24, v9')
    A('v_lshlrev_b32 v9, 4, v9')
    A(f'v_mul_u32_u24 v10, {40*1024}, v8')
    A('v_add_u32 v9, v9, v10')
    A('s_lshl_b32 s24, s20, 3')
    A('s_mul_i32 s24, s24, 40')
    A('s_add_u32 s24, s24, s22')
    A('s_lshl_b32 s24, s24, 10')
    A(f's_add_u32 s24, s24, {WS["WVOF"]}')
    for ks in range(20):
        for pp in range(4):
            r = wreg(ks, pp)
            A(f's_add_u32 s25, s24, {(ks*32 + 2*pp)*40*1024}')
            A(f'buffer_load_dwordx4 {reg(r,4)}, v9, s[4:7], s25 offen')
    A('v_lshrrev_b32 v9, 1, v6')
    A('v_lshlrev_b32 v9, 7, v9')
    A('v_lshlrev_b32 v10, 4, v7')
    A('v_add_u32 v9, v9, v10')
    A('v_and_b32 v10, 1, v6')
    A('v_lshlrev_b32 v10, 3, v10')
    A('v_add_u32 v9, v9, v10')
    MB = [9, 148, 149, 150, 151]
    for j in range(1, 5):
        A(f'v_add_u32 v{MB[j]}, {2048*j}, v9')
    A('v_lshlrev_b32 v10, 8, v8')
    A('s_lshl_b32 s24, s23, 3')
    A('v_add_u32 v11, s24, v7')
    A('v_lshlrev_b32 v11, 4, v11')
    A('v_add_u32 v10, v10, v11')
    A('v_lshlrev_b32 v11, 3, v6')
    A('v_add_u32 v10, v10, v11')
    A('s_lshl_b32 s24, s20, 11')
    A(f's_add_u32 s24, s24, {TL}')
    A('v_add_u32 v11, s24, v10')
    A('v_add_u32 v152, s24, v2')
    A('v_lshlrev_b32 v153, 4, v7')
    A('v_lshlrev_b32 v154, 7, v6')
    A('v_add_u32 v154, v154, v153')
    A('v_mul_u32_u24 v155, 640, v6')
    A('v_add_u32 v155, v155, v153')
    A('s_mov_b32 s66, 0x00ff00ff')
    A('s_mov_b32 s67, 0x00ff00ff')
    for r in range(PT, PT + 40): A(f'v_mov_b32 v{r}, 0')
    A('s_lshl_b32 s24, s20, 10')
    A('v_add_u32 v156, s24, v2')
    A('v_and_b32 v157, 1, v8')
    A('s_lshl_b32 s24, s23, 1')
    A('v_add_u32 v158, s24, v157')
    A('v_lshlrev_b32 v158, 4, v158')
    A('v_add_u32 v158, v158, v7')
    A('v_lshlrev_b32 v158, 4, v158')
    A('s_lshr_b32 s24, s22, 1')
    A('s_lshl_b32 s24, s24, 9')
    A('s_and_b32 s25, s22, 1')
    A('s_lshl_b32 s25, s25, 1')
    A('s_add_u32 s25, s25, s23')
    A('s_lshl_b32 s25, s25, 7')
    A('s_add_u32 s24, s24, s25')
    A('v_lshlrev_b32 v159, 4, v7')
    A('v_lshlrev_b32 v157, 3, v157')
    A('v_add_u32 v159, v159, v157')
    A('v_add_u32 v159, s24, v159')
    for r in range(4): A(f'v_mov_b32 v{PK+r}, 0')
    A(f'ds_write_b128 v152, v[{PK}:{PK+3}]')
    A(f'ds_write_b128 v152, v[{PK}:{PK+3}] offset:1024')
    def vt_prefetch(sreg):
        A(f's_lshl_b32 s45, s{sreg}, 5')
        A('s_lshl_b32 s50, s20, 3')
        A('s_add_u32 s45, s45, s50')
        A('s_mul_i32 s45, s45, 40')
        A('s_add_u32 s45, s45, s22')
        A('s_lshl_b32 s45, s45, 10')
        A(f's_add_u32 s45, s45, {WS["VOF"]}')
        for hh in range(8):
            A(f'buffer_load_dwordx4 v[{VT+hh*4}:{VT+hh*4+3}], v2, s[4:7], s45 offen')
            if hh < 7: A(f's_add_u32 s45, s45, {40*1024}')
    A('v_and_b32 v3, 31, v1')
    A('v_lshlrev_b32 v3, 2, v3')
    A('s_lshl_b32 s24, s20, 7')
    A('s_add_u32 s24, s24, 32768')
    A('v_add_u32 v3, s24, v3')
    A('v_lshlrev_b32 v1, 3, v1')
    A('s_mul_i32 s24, s20, 160')
    A('s_add_u32 s24, s24, 10240')
    A('v_add_u32 v1, s24, v1')
    vt_prefetch(40)
    A('s_waitcnt vmcnt(0) lgkmcnt(0)')
    A.label('L_s2_loop')
    gather_mem(A, 's2', 40)
    stamp(A, 2)
    L = Lgkm(A)
    def rd(ks):
        b = MOP + (ks % 4) * 4
        L.issue(ks, f'ds_read2_b64 v[{b}:{b+3}], v{MB[ks//4]} offset0:{(ks%4)*64} offset1:{(ks%4)*64+32}')
    for ks in range(3): rd(ks)
    for ks in range(20):
        if ks + 3 < 20: rd(ks + 3)
        L.need(ks)
        b = MOP + (ks % 4) * 4
        for pp in range(4):
            d = ACCM + pp * 4
            c = '0' if ks == 0 else f'v[{d}:{d+3}]'
            A(f'v_mfma_f32_16x16x32_bf16 v[{d}:{d+3}], v[{b}:{b+3}], {reg(wreg(ks,pp),4)}, {c}')
    A('s_nop 7')
    A('s_nop 3')
    A('s_lshl_b32 s45, s40, 3')
    A('s_lshl_b32 s50, s20, 1')
    A('s_add_u32 s45, s45, s50')
    A('s_mul_i32 s45, s45, 40')
    A('s_add_u32 s45, s45, s22')
    A('s_lshl_b32 s45, s45, 10')
    A(f's_add_u32 s45, s45, {WS["VOMF"]}')
    A(f's_add_u32 s50, s45, {40*1024}')
    for pp in range(4):
        d = ACCM + pp * 4
        A(f'v_cvt_pk_bf16_f32 v{PK+2*pp}, v{d}, v{d+1}')
        A(f'v_cvt_pk_bf16_f32 v{PK+2*pp+1}, v{d+2}, v{d+3}')
    A('s_mov_b64 exec, s[60:61]')
    for pp in range(4):
        A(f'ds_write_b64 v11, v[{PK+2*pp}:{PK+2*pp+1}] offset:{(pp>>1)*1024 + (pp&1)*512}')
        A(f'buffer_store_dwordx2 v[{PK+2*pp}:{PK+2*pp+1}], v10, s[4:7], s{45 if pp < 2 else 50} offen offset:{(pp&1)*512}')
    A('s_mov_b64 exec, -1')
    A(f'ds_read_b128 v[{VMOP}:{VMOP+3}], v152')
    A(f'ds_read_b128 v[{VMOP+4}:{VMOP+7}], v152 offset:1024')
    A(f's_mul_i32 s45, s40, {PS}')
    A(f's_add_u32 s45, s45, {WS["PB"]}')
    A('s_mul_i32 s50, s20, 5120')
    A('s_add_u32 s45, s45, s50')
    A(f's_add_u32 s50, s45, 2560')
    stamp(A, 3)
    A('s_mov_b32 s42, 0')
    A.label('L_s2_ppoll')
    A('s_mov_b64 exec, s[66:67]')
    for hh in range(8):
        A(f'buffer_load_dwordx4 v[{PT+hh*4}:{PT+hh*4+3}], v154, s[4:7], s{45 if hh < 4 else 50} offen offset:{128 + (hh&3)*640} sc1')
    for hg in range(2):
        A(f'buffer_load_dwordx4 v[{PM+hg*4}:{PM+hg*4+3}], v155, s[4:7], s{45 if hg == 0 else 50} offen sc1')
    A('s_mov_b64 exec, -1')
    A('s_waitcnt vmcnt(0)')
    regs = list(range(PT, PT + 40))
    A(f'v_max3_u32 v12, v{regs[0]}, v{regs[1]}, v{regs[2]}')
    A(f'v_max3_u32 v13, v{regs[3]}, v{regs[4]}, v{regs[5]}')
    k = 6; tgl = 0
    while k + 1 < 40:
        A(f'v_max3_u32 v{12+tgl}, v{12+tgl}, v{regs[k]}, v{regs[k+1]}')
        k += 2; tgl ^= 1
    A('v_max_u32 v12, v12, v13')
    A('v_cmp_eq_u32 vcc, -1, v12')
    A('s_cbranch_vccz L_s2_pok')
    A('s_add_u32 s42, s42, 1')
    A('s_cmp_lt_u32 s42, s44')
    A('s_cbranch_scc1 L_s2_ppoll')
    A('s_mov_b32 s44, 0')
    A.label('L_s2_pok')
    stamp(A, 4)
    if PROF: A('s_mov_b32 s80, s42')
    A('s_waitcnt lgkmcnt(0)')
    for hh in range(8):
        d = ACC if hh % 2 == 0 else ACCM
        c = '0' if hh < 2 else f'v[{d}:{d+3}]'
        A(f'v_mfma_f32_16x16x32_bf16 v[{d}:{d+3}], v[{VT+hh*4}:{VT+hh*4+3}], v[{PT+hh*4}:{PT+hh*4+3}], {c}')
    for hg in range(2):
        d = ACC if hg == 0 else ACCM
        A(f'v_mfma_f32_16x16x32_bf16 v[{d}:{d+3}], v[{VMOP+hg*4}:{VMOP+hg*4+3}], v[{PM+hg*4}:{PM+hg*4+3}], v[{d}:{d+3}]')
    A('s_nop 7')
    A('s_nop 3')
    for r in range(4):
        A(f'v_add_f32 v{ACC+r}, v{ACC+r}, v{ACCM+r}')
    A(f'ds_write_b128 v156, v[{ACC}:{ACC+3}] offset:{RED}')
    A('s_add_u32 s50, s40, 1')
    A('s_min_u32 s52, s50, 63')
    vt_prefetch(52)
    A('s_waitcnt lgkmcnt(0)')
    stamp(A, 5)
    A('s_barrier')
    A('s_cmp_lg_u32 s20, 0')
    A('s_cbranch_scc1 L_s2_next')
    for w in range(4):
        A(f'ds_read_b128 v[{24+4*w}:{27+4*w}], v158 offset:{RED + w*1024}')
    A('s_waitcnt lgkmcnt(2)')
    for r in range(4): A(f'v_add_f32 v{24+r}, v{24+r}, v{28+r}')
    A('s_waitcnt lgkmcnt(0)')
    for r in range(4): A(f'v_add_f32 v{32+r}, v{32+r}, v{36+r}')
    for r in range(4): A(f'v_add_f32 v{24+r}, v{24+r}, v{32+r}')
    A('v_cvt_pk_bf16_f32 v24, v24, v25')
    A('v_cvt_pk_bf16_f32 v25, v26, v27')
    A('v_min_u32 v24, 0xfffffffe, v24')
    A('v_min_u32 v25, 0xfffffffe, v25')
    A('s_add_u32 s45, s40, 1')
    A(f's_mul_i32 s45, s45, {MS}')
    A(f's_add_u32 s45, s45, {WS["MEMB"]}')
    A('s_mov_b64 exec, s[62:63]')
    A('buffer_store_dwordx2 v[24:25], v159, s[4:7], s45 offen sc1')
    A('s_mov_b64 exec, -1')
    A.label('L_s2_next')
    stamp(A, 6)
    stamp_flush(A, 9, 's2')
    A('s_add_u32 s40, s40, 1')
    A('s_cmp_lt_u32 s40, 64')
    A('s_cbranch_scc1 L_s2_loop')
    A('s_endpgm')
```

```python
from asmlib import *
from layout import WS
from k_post import SCALE, LOG2E

SPIN = 400000
MEMLDS = 0
RED = 10240
WLDS = 17408
TL = 16384
LDS_CHAIN = WLDS + 4 * 18 * 1024

class Lgkm:
    def __init__(s, A): s.A = A; s.q = []
    def issue(s, tag, text): s.A(text); s.q.append(tag)
    def need(s, tag):
        if tag in s.q:
            i = s.q.index(tag)
            n = len(s.q) - 1 - i
            s.A(f's_waitcnt lgkmcnt({min(n,15)})')
            s.q = s.q[i + 1:]

import os
PROF = int(os.environ.get('PROF', '0'))
def stamp(A, idx):
    if PROF in (1, 2):
        A('s_memrealtime s[98:99]' if PROF == 2 else 's_memtime s[98:99]')
        A('s_waitcnt lgkmcnt(0)')
        A(f's_mov_b32 s{72+idx}, s98')
def stamp_flush(A, n, tag):
    if PROF in (1, 2):
        A(f's_cmp_lg_u32 s40, {int(os.environ.get("PSTEP", "45"))}')
        A(f's_cbranch_scc1 L_{tag}_nofl')
        A('s_lshl_b32 s96, s2, 2')
        A('s_add_u32 s96, s96, s20')
        A('s_lshl_b32 s96, s96, 6')
        A(f's_add_u32 s96, s96, {WS["FLAGS"]}')
        for i in range(n):
            A(f'v_mov_b32 v26, s{72+i}')
            A('v_mov_b32 v27, 0')
            A(f'buffer_store_dword v26, v27, s[4:7], s96 offen offset:{4*i}')
        A(f'L_{tag}_nofl:')

KT = int(os.environ.get('KT', '0'))
XM = int(os.environ.get('XM', '6'))
XP = int(os.environ.get('XP', '14'))
D = {k: int(os.environ.get(k, '0')) for k in ('d0s1', 'd1s1', 'd0s2', 'd1s2', 'd0p', 'd1p')}
def delay(A, tag, n):
    if n:
        A(f's_mov_b32 s43, {n}')
        A(f'L_dl_{tag}:')
        A('s_nop 15')
        A('s_sub_u32 s43, s43, 1')
        A('s_cmp_lg_u32 s43, 0')
        A(f's_cbranch_scc1 L_dl_{tag}')
def tag_poll(A, tag, treg, vtag, sbase, nx, mask=None):
    A('s_mov_b32 s42, 0')
    if mask: A(f's_mov_b64 exec, {mask}')
    for j in range(KT):
        A(f'buffer_load_dword v{treg+j}, v{vtag}, s[4:7], s{sbase} offen sc1')
        if j < KT - 1:
            for _ in range(nx): A('s_nop 15')
    A.label(f'L_{tag}_tag')
    for j in range(KT):
        A(f's_waitcnt vmcnt({KT-1})')
        A(f'v_cmp_eq_u32 vcc, -1, v{treg+j}')
        A(f's_cbranch_vccz L_{tag}_tagok')
        A(f'buffer_load_dword v{treg+j}, v{vtag}, s[4:7], s{sbase} offen sc1')
        for _ in range(nx): A('s_nop 15')
    A('s_add_u32 s42, s42, 1')
    A('s_cmp_lt_u32 s42, s44')
    A(f's_cbranch_scc1 L_{tag}_tag')
    A.label(f'L_{tag}_tagok')
    if mask: A('s_mov_b64 exec, -1')

MS, PS = 10240, 20480
PUB = RED + 5632
S1MODE = os.environ.get('S1MODE', 'flag')
def gather_mem(A, tag, sstep, extra=None):
    A(f's_mul_i32 s41, s{sstep}, {MS}')
    A(f's_add_u32 s41, s41, {WS["MEMB"]}')
    stamp(A, 0)
    flag = False
    def loads(sc):
        A(f'buffer_load_dwordx4 v[12:15], v4, s[4:7], s41 offen {sc}')
        A(f'buffer_load_dwordx4 v[16:19], v4, s[4:7], s41 offen offset:1024 {sc}')
        A('s_mov_b64 exec, s[60:61]')
        A(f'buffer_load_dwordx4 v[20:23], v4, s[4:7], s41 offen offset:2048 {sc}')
        A('s_mov_b64 exec, -1')
    if flag:
        A(f's_cmp_eq_u32 s{sstep}, 0')
        A(f's_cbranch_scc1 L_{tag}m_tagok2')
        tag_poll(A, tag + 'm', 24, 1, 41, XM, 's[64:65]')
        A.label(f'L_{tag}m_tagok2')
        A('s_mov_b32 s42, 0')
        loads('')
        A(f's_branch L_{tag}_chk')
    else:
        delay(A, tag + 'd0', D['d0' + tag])
        A('s_mov_b32 s42, 0')
    A.label(f'L_{tag}_poll')
    loads('sc1')
    A.label(f'L_{tag}_chk')
    A('s_waitcnt vmcnt(0)')
    A('v_max3_u32 v24, v12, v13, v14')
    A('v_max3_u32 v25, v15, v16, v17')
    A('v_max3_u32 v24, v24, v18, v19')
    A('v_max3_u32 v25, v25, v20, v21')
    A('v_max3_u32 v24, v24, v22, v23')
    A('v_max_u32 v24, v24, v25')
    A('v_cmp_eq_u32 vcc, -1, v24')
    A(f's_cbranch_vccz L_{tag}_ok')
    A('s_add_u32 s42, s42, 1')
    A('s_cmp_lt_u32 s42, s44')
    A(f's_cbranch_scc1 L_{tag}_poll')
    A('s_mov_b32 s44, 0')
    A.label(f'L_{tag}_ok')
    stamp(A, 1)
    if PROF in (1, 2): A('s_mov_b32 s79, s42')
    A(f'ds_write_b128 v4, v[12:15] offset:{MEMLDS}')
    A(f'ds_write_b128 v4, v[16:19] offset:{MEMLDS+1024}')
    A('s_mov_b64 exec, s[60:61]')
    A(f'ds_write_b128 v4, v[20:23] offset:{MEMLDS+2048}')
    A('s_mov_b64 exec, -1')
    if extra: extra()
    A('s_waitcnt lgkmcnt(0)')
    A('s_barrier')

from k_mega import TF, gen_worker, gen_pre, wait_row
def flag_issue(A, sreg):
    A(f's_lshr_b32 s45, s{sreg}, 2')
    A('s_lshl_b32 s45, s45, 9')
    A(f's_add_u32 s68, s45, {TF}')
    A('buffer_load_dwordx2 v[20:21], v1, s[4:7], s68 offen sc1')
def flag_check(A, tag):
    A('s_mov_b32 s42, 0')
    A.label(f'L_{tag}_fl')
    A('v_and_b32 v20, v20, v21')
    A('v_cmp_ne_u32 vcc, 1, v20')
    A(f's_cbranch_vccz L_{tag}_flok')
    A('s_add_u32 s42, s42, 1')
    A('s_cmp_lt_u32 s42, s44')
    A(f's_cbranch_scc0 L_{tag}_flto')
    A('buffer_load_dwordx2 v[20:21], v1, s[4:7], s68 offen sc1')
    A('s_waitcnt vmcnt(0)')
    A(f's_branch L_{tag}_fl')
    A.label(f'L_{tag}_flto')
    A('s_mov_b32 s44, 0')
    A.label(f'L_{tag}_flok')

def dpp_red32(A, op, v, t):
    for c in ['quad_perm:[1,0,3,2]', 'quad_perm:[2,3,0,1]', 'row_half_mirror', 'row_mirror']:
        A('s_nop 1')
        A(f'{op}_dpp v{v}, v{v}, v{v} {c} row_mask:0xf bank_mask:0xf')
    A(f'v_mov_b32 v{t}, v{v}')
    A('s_nop 1')
    A(f'v_permlane16_swap_b32 v{v}, v{t}')
    A('s_nop 1')
    A(f'{op} v{v}, v{v}, v{t}')

def tstep(A, slot=None):
    if PROF != 3: return
    l = A.newlabel('L_ts')
    A('s_or_b32 s96, s2, s20')
    A('s_cmp_lg_u32 s96, 0')
    A(f's_cbranch_scc1 {l}')
    A('s_memrealtime s[98:99]')
    A('s_waitcnt lgkmcnt(0)')
    A('v_mov_b32 v26, s98')
    A('v_mov_b32 v27, 0')
    if slot is None:
        A('s_lshl_b32 s96, s40, 2')
    else:
        A(f's_mov_b32 s96, {slot*4}')
    A(f's_add_u32 s96, s96, {WS["FLAGS"] + 28672}')
    A('buffer_store_dword v26, v27, s[4:7], s96 offen')
    A.label(l)

def gen_chain(A):
    name = 'k_chain_kernel'
    kernel_header(A, name)
    A('s_cmp_ge_u32 s2, 256')
    A('s_cbranch_scc1 L_ch_end')
    srds(A, [('ws', 4), ('x', 8), ('Wv', 12)])
    A('v_lshrrev_b32 v1, 6, v0')
    A('s_nop 0')
    A('v_readfirstlane_b32 s20, v1')
    A('v_and_b32 v1, 63, v0')
    A('v_lshlrev_b32 v2, 4, v1')
    A(f's_mov_b32 s44, {SPIN}')
    A('s_mov_b32 s40, 0')
    tstep(A, 65)
    gen_pre(A)
    A('v_and_b32 v1, 63, v0')
    A('v_lshlrev_b32 v2, 4, v1')
    A('s_mul_i32 s21, s20, 2560')
    A('v_add_u32 v4, s21, v2')
    for r in range(20, 24):
        A(f'v_mov_b32 v{r}, 0')
    A(f's_mov_b32 s44, {SPIN}')
    A('s_mov_b32 s60, -1')
    A('s_mov_b32 s61, 0')
    A('s_mov_b32 s62, 0xffff')
    A('s_mov_b32 s63, 0')
    A('s_mov_b32 s64, 0xfffff')
    A('s_mov_b32 s65, 0')
    A('s_mov_b32 s40, 0')
    A('s_cmp_ge_u32 s2, 112')
    A('s_cbranch_scc1 L_ch_w')
    A('s_cmp_ge_u32 s2, 32')
    A('s_cbranch_scc1 L_ch_s2')
    gen_s1(A)
    A.label('L_ch_s2')
    gen_s2(A)
    A.label('L_ch_w')
    gen_worker(A)
    A.label('L_ch_end')
    A('s_endpgm')
    return name, kernel_desc(name, 256, 256), f'; @launch kernel={name} grid=(256,1,1) block=(256,1,1) lds={LDS_CHAIN}'

def gen_s1(A):
    from k_post import rnd2, xred1632
    QT, KT, KFL, WL = 10240, 16384, 22528, 34816
    AR, ACC, WT = 24, 40, 64
    A9 = 12
    KFR = 64
    def wreg(c, t):
        f = c * 6 + t
        return (80 + f * 8) if f < 22 else (256 + (f - 22) * 8)
    A('s_mul_i32 s22, s2, 12')
    A('s_mul_i32 s51, s20, 3')
    A('s_add_u32 s22, s22, s51')
    A(f's_mul_i32 s22, s22, {20*1024}')
    A(f's_add_u32 s22, s22, {WS["WqF"]}')
    KOFF = WS['WkF'] - WS['WqF']
    A(f's_mul_i32 s24, s20, {12*1024}')
    A(f'v_add_u32 v0, s24, v2')
    frs = [(c, t, hf) for c in range(10) for t in range(6) for hf in range(2)]
    def src_off(c, t, hf):
        return (t % 3) * 20 * 1024 + (KOFF if t >= 3 else 0) + (2 * c + hf) * 1024
    inplace = [f for f in frs if f[0] < 9 and wreg(f[0], f[1]) < 256]
    other = [f for f in frs if f not in inplace]
    for (c, t, hf) in inplace:
        r = wreg(c, t) + 4 * hf
        A(f's_add_u32 s23, s22, {src_off(c, t, hf)}')
        A(f'buffer_load_dwordx4 v[{r}:{r+3}], v2, s[4:7], s23 offen')
    def batch_load(fl):
        for n, (c, t, hf) in enumerate(fl):
            r = 12 + 4 * n
            A(f's_add_u32 s23, s22, {src_off(c, t, hf)}')
            A(f'buffer_load_dwordx4 v[{r}:{r+3}], v2, s[4:7], s23 offen')
    def batch_fin(fl):
        for n, (c, t, hf) in enumerate(fl):
            r = 12 + 4 * n
            A(f'v_permlane16_swap_b32 v{r}, v{r+2}')
            A(f'v_permlane16_swap_b32 v{r+1}, v{r+3}')
        A('s_nop 1')
        for n, (c, t, hf) in enumerate(fl):
            r = 12 + 4 * n
            if c < 9:
                d = wreg(c, t) - 256 + 4 * hf
                for q, sr_ in enumerate((0, 2, 1, 3)):
                    A(f'v_accvgpr_write_b32 a{d+q}, v{r+sr_}')
            else:
                A(f'v_swap_b32 v{r+1}, v{r+2}')
                A('s_nop 0')
                A(f'ds_write_b128 v0, v[{r}:{r+3}] offset:{WL + (t*2 + hf)*1024}')
        A('s_waitcnt lgkmcnt(0)')
    batches = [other[i:i+16] for i in range(0, len(other), 16)]
    batch_load(batches[0])
    A('s_waitcnt vmcnt(16)')
    for (c, t, hf) in inplace:
        r = wreg(c, t) + 4 * hf
        A(f'v_permlane16_swap_b32 v{r}, v{r+2}')
        A(f'v_permlane16_swap_b32 v{r+1}, v{r+3}')
        A('s_nop 1')
        A(f'v_swap_b32 v{r+1}, v{r+2}')
    for bi, fl in enumerate(batches):
        if bi > 0: batch_load(fl)
        A('s_waitcnt vmcnt(0)')
        batch_fin(fl)
    for r in range(20, 24):
        A(f'v_mov_b32 v{r}, 0')
    A('v_and_b32 v5, 15, v1')
    A('v_lshrrev_b32 v6, 4, v1')
    A('v_and_b32 v7, 8, v1')
    A('v_cmp_eq_u32 vcc, 0, v7')
    A('v_mov_b32 v3, 0xeeeeeeee')
    A('v_mov_b32 v7, 0x44444444')
    A('v_cndmask_b32 v3, v3, v7, vcc')
    A('v_lshrrev_b32 v7, 2, v5')
    A('v_lshlrev_b32 v7, 4, v7')
    A('v_and_b32 v8, 3, v5')
    A('v_lshlrev_b32 v8, 1, v8')
    A('v_add_u32 v7, v7, v8')
    A('v_and_b32 v8, 1, v6')
    A('v_lshlrev_b32 v8, 8, v8')
    A('v_add_u32 v7, v7, v8')
    A('v_lshrrev_b32 v8, 1, v6')
    A('v_lshlrev_b32 v8, 6, v8')
    A('v_add_u32 v7, v7, v8')
    A('v_lshlrev_b32 v8, 6, v5')
    A('v_lshlrev_b32 v9, 4, v6')
    A('v_add_u32 v8, v8, v9')
    A('v_mov_b32 v11, v8')
    A('v_lshlrev_b32 v8, 7, v6')
    A('v_lshlrev_b32 v9, 4, v5')
    A('v_add_u32 v8, v8, v9')
    A('v_add_u32 v8, 128, v8')
    A('v_lshlrev_b32 v10, 3, v6')
    A('v_add_u32 v9, v9, v10')
    A('v_cmp_gt_u32 vcc, 2, v6')
    A('s_mov_b64 s[48:49], vcc')
    A('s_mov_b32 s66, 0x00ff00ff')
    A('s_mov_b32 s67, 0x00ff00ff')
    A('s_mov_b32 s46, 0x00ff00ff')
    A('s_mov_b32 s47, 0')
    for a in range(3):
        A(f's_add_u32 s50, s51, {a}')
        A('s_lshr_b32 s52, s50, 1')
        A('s_lshl_b32 s52, s52, 10')
        A('s_and_b32 s50, s50, 1')
        A('s_lshl_b32 s50, s50, 3')
        A(f's_add_u32 s{53+a}, s50, s52')
    A('v_add_u32 v5, s53, v7')
    A('v_add_u32 v6, s54, v7')
    A('v_add_u32 v7, s55, v7')
    A(f's_mul_i32 s24, s20, 3072')
    A('v_add_u32 v10, s24, v2')
    A(f's_mov_b32 s58, {SCALE}')
    A(f's_mov_b32 s56, {LOG2E}')
    def kf_prefetch(sreg):
        A(f's_mul_i32 s45, s{sreg}, {2*192*1024}')
        A(f's_mul_i32 s50, s2, {6*1024}')
        A('s_add_u32 s45, s45, s50')
        A(f's_add_u32 s45, s45, {WS["KF"]}')
        A('s_add_u32 s45, s45, s57')
        for a in range(3):
            A(f'buffer_load_dwordx4 v[{KFR+a*4}:{KFR+a*4+3}], v2, s[4:7], s45 offen offset:{a*1024}')
    A('s_cmp_ge_u32 s20, 2')
    A(f's_cselect_b32 s57, {192*1024 - 6*1024}, 0')
    A('s_mul_i32 s24, s20, 3072')
    A('s_add_u32 s57, s57, s24')
    A('v_lshlrev_b32 v1, 3, v1')
    flag_issue(A, 40)
    A('s_waitcnt vmcnt(0)')
    flag_check(A, 's1i')
    kf_prefetch(40)
    A.label('L_s1_loop')
    tstep(A)
    for r in range(24): A(f'v_mov_b32 v{ACC+r}, 0')
    for r in range(20, 24): A(f'v_mov_b32 v{r}, 0')
    def kfw():
        for a in range(3):
            A(f'ds_write_b128 v10, v[{KFR+a*4}:{KFR+a*4+3}] offset:{KFL + a*1024}')
    A('s_add_u32 s50, s40, 1')
    A('s_min_u32 s52, s50, 63')
    A('s_lshr_b32 s45, s52, 2')
    A('s_lshl_b32 s45, s45, 9')
    A(f's_add_u32 s68, s45, {TF}')
    A('buffer_load_dwordx2 v[76:77], v1, s[4:7], s68 offen sc1')
    def kfw2():
        kfw()
        A('v_and_b32 v76, v76, v77')
        A('v_cmp_ne_u32 vcc, 1, v76')
        A('s_mov_b64 s[70:71], vcc')
    gather_mem(A, 's1', 40, extra=kfw2)
    stamp(A, 2)
    L = Lgkm(A)
    def rdA(c):
        b = A9 if c == 9 else AR + (c % 4) * 4
        L.issue(('A', c), f'ds_read_b128 v[{b}:{b+3}], v2 offset:{MEMLDS + c*1024}')
    def rdW(t):
        b = WT + (t % 2) * 8
        L.issue(('W', t, 0), f'ds_read_b128 v[{b}:{b+3}], v0 offset:{WL + t*2048}')
        L.issue(('W', t, 1), f'ds_read_b128 v[{b+4}:{b+7}], v0 offset:{WL + t*2048 + 1024}')
    rdA(0); rdA(1); rdA(9); rdW(0); rdA(2); rdW(1)
    for c in range(9):
        if c + 3 < 9: rdA(c + 3)
        L.need(('A', c))
        b = AR + (c % 4) * 4
        for t in range(6):
            d = ACC + t * 4
            A(f'v_smfmac_f32_16x16x64_bf16 v[{d}:{d+3}], v[{b}:{b+3}], {reg(wreg(c,t),8)}, v3')
        if c < 6:
            L.need(('A', 9)); L.need(('W', c, 1))
            d = ACC + c * 4
            w = WT + (c % 2) * 8
            A(f'v_smfmac_f32_16x16x64_bf16 v[{d}:{d+3}], v[{A9}:{A9+3}], v[{w}:{w+7}], v3')
            if c + 2 < 6: rdW(c + 2)
    A('s_nop 7')
    A('s_nop 3')
    stamp(A, 3)
    for t in range(6):
        d = ACC + t * 4
        A(f'v_permlane32_swap_b32 v{d}, v{d+1}')
        A(f'v_permlane32_swap_b32 v{d+2}, v{d+3}')
    A('s_nop 0')
    for t in range(6):
        d = ACC + t * 4
        A(f'v_add_f32 v{d}, v{d}, v{d+1}')
        A(f'v_add_f32 v{d+2}, v{d+2}, v{d+3}')
        A(f'v_cvt_pk_bf16_f32 v{d}, v{d}, v{d+2}')
        base = QT if t < 3 else KT
        A(f'ds_write_b16 v{5 + t % 3}, v{d} offset:{base}')
        A(f'ds_write_b16_d16_hi v{5 + t % 3}, v{d} offset:{base + 128}')
    A(f's_mul_i32 s45, s40, {PS}')
    A('s_mul_i32 s50, s2, 640')
    A('s_add_u32 s45, s45, s50')
    A(f's_add_u32 s45, s45, {WS["PB"]}')
    A('s_waitcnt lgkmcnt(0)')
    stamp(A, 4)
    A('s_barrier')
    stamp(A, 5)
    A('s_cmp_lg_u32 s20, 0')
    A('s_cbranch_scc1 L_s1_nopub')
    SA = 12
    L = Lgkm(A)
    def rdS(ks):
        b = 24 + (ks % 3) * 16
        L.issue(('q', ks), f'ds_read_b128 v[{b}:{b+3}], v11 offset:{QT + ks*1024}')
        L.issue(('k', ks), f'ds_read_b128 v[{b+4}:{b+7}], v11 offset:{KT + ks*1024}')
        L.issue(('f0', ks), f'ds_read_b128 v[{b+8}:{b+11}], v2 offset:{KFL + ks*1024}')
        L.issue(('f1', ks), f'ds_read_b128 v[{b+12}:{b+15}], v2 offset:{KFL + (6+ks)*1024}')
    rdS(0); rdS(1); rdS(2)
    for ks in range(6):
        b = 24 + (ks % 3) * 16
        for st, tg in enumerate(('k', 'f0', 'f1')):
            L.need((tg, ks))
            d = SA + st * 4
            c = '0' if ks == 0 else f'v[{d}:{d+3}]'
            A(f'v_mfma_f32_16x16x32_bf16 v[{d}:{d+3}], v[{b+4+4*st}:{b+7+4*st}], v[{b}:{b+3}], {c}')
        if ks + 3 < 6: rdS(ks + 3)
    A('s_nop 7')
    A('v_mov_b32 v36, s58')
    A('v_mov_b32 v37, s58')
    A('v_mov_b32 v38, s56')
    A('v_mov_b32 v39, s56')
    vals = list(range(SA, SA + 12))
    A('v_mov_b32 v25, 0xff800000')
    A(f'v_max3_f32 v26, v{vals[0]}, v{vals[1]}, v{vals[2]}')
    A(f'v_max3_f32 v27, v{vals[4]}, v{vals[5]}, v{vals[6]}')
    A(f'v_max_f32 v26, v26, v{vals[3]}')
    A(f'v_max3_f32 v27, v27, v{vals[7]}, v{vals[8]}')
    A('v_cndmask_b32 v26, v25, v26, s[48:49]')
    A(f'v_max3_f32 v27, v27, v{vals[9]}, v{vals[10]}')
    A(f'v_max3_f32 v26, v26, v27, v{vals[11]}')
    for i in range(0, 12, 2):
        A(f'v_cvt_pk_bf16_f32 v{28+i//2}, v{vals[i]}, v{vals[i+1]}')
    A('v_mov_b32 v27, v26')
    for i in range(0, 12, 2):
        A(f'v_lshlrev_b32 v{vals[i]}, 16, v{28+i//2}')
        A(f'v_and_b32 v{vals[i+1]}, 0xffff0000, v{28+i//2}')
    A('v_permlane16_swap_b32 v26, v27')
    for i in range(0, 12, 2):
        A(f'v_pk_mul_f32 v[{vals[i]}:{vals[i+1]}], v[{vals[i]}:{vals[i+1]}], v[36:37]')
    A('v_max_f32 v26, v26, v27')
    for i in range(0, 12, 2):
        A(f'v_cvt_pk_bf16_f32 v{28+i//2}, v{vals[i]}, v{vals[i+1]}')
    A('v_mov_b32 v27, v26')
    for i in range(0, 6, 2):
        A(f'v_lshlrev_b32 v{vals[i]}, 16, v{28+i//2}')
        A(f'v_and_b32 v{vals[i+1]}, 0xffff0000, v{28+i//2}')
    A('v_permlane32_swap_b32 v26, v27')
    for i in range(6, 12, 2):
        A(f'v_lshlrev_b32 v{vals[i]}, 16, v{28+i//2}')
        A(f'v_and_b32 v{vals[i+1]}, 0xffff0000, v{28+i//2}')
    A('v_max_f32 v26, v26, v27')
    A('v_cvt_pk_bf16_f32 v27, v26, v26')
    A('v_lshlrev_b32 v26, 16, v27')
    A('v_mul_f32 v26, s58, v26')
    A('v_cvt_pk_bf16_f32 v27, v26, v26')
    A('v_lshlrev_b32 v26, 16, v27')
    A('v_mul_f32 v26, s56, v26')
    A('v_xor_b32 v26, 0x80000000, v26')
    A('v_mov_b32 v27, v26')
    for i in range(0, 12, 2):
        A(f'v_pk_fma_f32 v[{vals[i]}:{vals[i+1]}], v[{vals[i]}:{vals[i+1]}], v[38:39], v[26:27]')
    for v in vals:
        A(f'v_exp_f32 v{v}, v{v}')
    A('s_nop 0')
    for r in range(4):
        A(f'v_cndmask_b32 v{vals[r]}, 0, v{vals[r]}, s[48:49]')
    A(f'v_pk_add_f32 v[26:27], v[{vals[4]}:{vals[5]}], v[{vals[6]}:{vals[7]}]')
    A(f'v_pk_add_f32 v[34:35], v[{vals[8]}:{vals[9]}], v[{vals[10]}:{vals[11]}]')
    A(f'v_pk_add_f32 v[26:27], v[26:27], v[{vals[0]}:{vals[1]}]')
    A(f'v_pk_add_f32 v[34:35], v[34:35], v[{vals[2]}:{vals[3]}]')
    A('v_pk_add_f32 v[26:27], v[26:27], v[34:35]')
    A('v_add_f32 v26, v26, v27')
    xred1632(A, 'v_add_f32', 26, 27)
    A('v_rcp_f32 v26, v26')
    A('s_nop 0')
    A('v_mov_b32 v27, v26')
    for i in range(0, 12, 2):
        A(f'v_pk_mul_f32 v[{vals[i]}:{vals[i+1]}], v[{vals[i]}:{vals[i+1]}], v[26:27]')
    for i in range(6):
        src = vals[4 + 2 * i] if i < 4 else vals[2 * (i - 4)]
        A(f'v_cvt_pk_bf16_f32 v{28+i}, v{src}, v{src+1}')
    A('s_mov_b64 exec, s[66:67]')
    A('buffer_store_dwordx4 v[28:31], v8, s[4:7], s45 offen sc1')
    A('s_mov_b64 exec, s[46:47]')
    A('buffer_store_dwordx2 v[32:33], v9, s[4:7], s45 offen sc1')
    A('s_mov_b64 exec, -1')
    A('s_branch L_s1_pubd')
    A.label('L_s1_nopub')
    A('s_sub_u32 s50, s20, 1')
    A('s_lshl_b32 s50, s50, 11')
    A('v_add_u32 v24, s50, v11')
    A(f'ds_read_b128 v[28:31], v24 offset:{KT}')
    A(f'ds_read_b128 v[32:35], v24 offset:{KT + 1024}')
    A('v_add_u32 v24, s50, v2')
    A('s_lshl_b32 s45, s40, 5')
    A('s_add_u32 s45, s45, s2')
    A(f's_mul_i32 s45, s45, {6*1024}')
    A(f's_add_u32 s45, s45, {WS["KMF"]}')
    A('s_waitcnt lgkmcnt(0)')
    A('buffer_store_dwordx4 v[28:31], v24, s[4:7], s45 offen')
    A('buffer_store_dwordx4 v[32:35], v24, s[4:7], s45 offen offset:1024')
    A.label('L_s1_pubd')
    stamp(A, 6)
    A('s_cmp_eq_u64 s[70:71], 0')
    A('s_cbranch_scc1 L_s1_flgood')
    A('buffer_load_dwordx2 v[20:21], v1, s[4:7], s68 offen sc1')
    A('s_waitcnt vmcnt(0)')
    flag_check(A, 's1l')
    A.label('L_s1_flgood')
    A('s_add_u32 s50, s40, 1')
    A('s_min_u32 s52, s50, 63')
    kf_prefetch(52)
    stamp_flush(A, 8, 's1')
    A('s_add_u32 s40, s40, 1')
    A('s_cmp_lt_u32 s40, 64')
    A('s_cbranch_scc1 L_s1_loop')
    tstep(A)
    A('s_endpgm')

def gen_s2(A):
    PT, PM, VT, MOP, ACCM, ACC, VMOP, PK = 24, 56, 64, 96, 112, 128, 132, 140
    def wreg(ks, pp):
        f = ks * 4 + pp
        return (192 + f * 4) if f < 16 else (256 + (f - 16) * 4)
    wait_row(A, 's2w0', 17)
    wait_row(A, 's2w1', 18)
    for r in range(20, 24):
        A(f'v_mov_b32 v{r}, 0')
    A('s_sub_u32 s21, s2, 32')
    A('s_lshr_b32 s22, s21, 1')
    A('s_and_b32 s23, s21, 1')
    A('v_and_b32 v5, 15, v1')
    A('v_lshrrev_b32 v6, 4, v1')
    A('v_and_b32 v7, 7, v1')
    A('v_lshrrev_b32 v8, 3, v5')
    A('s_lshl_b32 s24, s23, 3')
    A('v_lshlrev_b32 v9, 4, v6')
    A('v_add_u32 v9, v9, v7')
    A('v_add_u32 v9, s24, v9')
    A('v_lshlrev_b32 v9, 4, v9')
    A(f'v_mul_u32_u24 v10, {40*1024}, v8')
    A('v_add_u32 v9, v9, v10')
    A('s_lshl_b32 s24, s20, 3')
    A('s_mul_i32 s24, s24, 40')
    A('s_add_u32 s24, s24, s22')
    A('s_lshl_b32 s24, s24, 10')
    A(f's_add_u32 s24, s24, {WS["WVOF"]}')
    for ks in range(20):
        for pp in range(4):
            r = wreg(ks, pp)
            A(f's_add_u32 s25, s24, {(ks*32 + 2*pp)*40*1024}')
            A(f'buffer_load_dwordx4 {reg(r,4)}, v9, s[4:7], s25 offen')
    A('v_lshrrev_b32 v9, 1, v6')
    A('v_lshlrev_b32 v9, 7, v9')
    A('v_lshlrev_b32 v10, 4, v7')
    A('v_add_u32 v9, v9, v10')
    A('v_and_b32 v10, 1, v6')
    A('v_lshlrev_b32 v10, 3, v10')
    A('v_add_u32 v9, v9, v10')
    MB = [9, 148, 149, 150, 151]
    for j in range(1, 5):
        A(f'v_add_u32 v{MB[j]}, {2048*j}, v9')
    A('v_lshlrev_b32 v10, 8, v8')
    A('s_lshl_b32 s24, s23, 3')
    A('v_add_u32 v11, s24, v7')
    A('v_lshlrev_b32 v11, 4, v11')
    A('v_add_u32 v10, v10, v11')
    A('v_lshlrev_b32 v11, 3, v6')
    A('v_add_u32 v10, v10, v11')
    A('s_lshl_b32 s24, s20, 11')
    A(f's_add_u32 s24, s24, {TL}')
    A('v_add_u32 v11, s24, v10')
    A('v_add_u32 v152, s24, v2')
    A('v_lshlrev_b32 v153, 4, v7')
    A('v_lshlrev_b32 v154, 7, v6')
    A('v_add_u32 v154, v154, v153')
    A('v_mul_u32_u24 v155, 640, v6')
    A('v_add_u32 v155, v155, v153')
    A('s_mov_b32 s66, 0x00ff00ff')
    A('s_mov_b32 s67, 0x00ff00ff')
    for r in range(PT, PT + 40): A(f'v_mov_b32 v{r}, 0')
    A('s_lshl_b32 s24, s20, 10')
    A('v_add_u32 v156, s24, v2')
    A('v_and_b32 v157, 1, v8')
    A('s_lshl_b32 s24, s23, 1')
    A('v_add_u32 v158, s24, v157')
    A('v_lshlrev_b32 v158, 4, v158')
    A('v_add_u32 v158, v158, v7')
    A('v_lshlrev_b32 v158, 4, v158')
    A('s_lshr_b32 s24, s22, 1')
    A('s_lshl_b32 s24, s24, 9')
    A('s_and_b32 s25, s22, 1')
    A('s_lshl_b32 s25, s25, 1')
    A('s_add_u32 s25, s25, s23')
    A('s_lshl_b32 s25, s25, 7')
    A('s_add_u32 s24, s24, s25')
    A('v_lshlrev_b32 v159, 4, v7')
    A('v_lshlrev_b32 v157, 3, v157')
    A('v_add_u32 v159, v159, v157')
    A('v_add_u32 v159, s24, v159')
    for r in range(4): A(f'v_mov_b32 v{PK+r}, 0')
    A(f'ds_write_b128 v152, v[{PK}:{PK+3}]')
    A(f'ds_write_b128 v152, v[{PK}:{PK+3}] offset:1024')
    def vt_prefetch(sreg):
        A(f's_lshl_b32 s45, s{sreg}, 5')
        A('s_lshl_b32 s50, s20, 3')
        A('s_add_u32 s45, s45, s50')
        A('s_mul_i32 s45, s45, 40')
        A('s_add_u32 s45, s45, s22')
        A('s_lshl_b32 s45, s45, 10')
        A(f's_add_u32 s45, s45, {WS["VOF"]}')
        for hh in range(8):
            A(f'buffer_load_dwordx4 v[{VT+hh*4}:{VT+hh*4+3}], v2, s[4:7], s45 offen')
            if hh < 7: A(f's_add_u32 s45, s45, {40*1024}')
    A('v_and_b32 v3, 31, v1')
    A('v_lshlrev_b32 v3, 2, v3')
    A('s_lshl_b32 s24, s20, 7')
    A('s_add_u32 s24, s24, 32768')
    A('v_add_u32 v3, s24, v3')
    A('v_lshlrev_b32 v1, 3, v1')
    flag_issue(A, 40)
    A('s_waitcnt vmcnt(0)')
    flag_check(A, 's2i')
    vt_prefetch(40)
    A('s_waitcnt vmcnt(0) lgkmcnt(0)')
    A.label('L_s2_loop')
    gather_mem(A, 's2', 40)
    stamp(A, 2)
    A('s_add_u32 s50, s40, 1')
    A('s_min_u32 s52, s50, 63')
    flag_issue(A, 52)
    L = Lgkm(A)
    def rd(ks):
        b = MOP + (ks % 4) * 4
        L.issue(ks, f'ds_read2_b64 v[{b}:{b+3}], v{MB[ks//4]} offset0:{(ks%4)*64} offset1:{(ks%4)*64+32}')
    for ks in range(3): rd(ks)
    for ks in range(20):
        if ks + 3 < 20: rd(ks + 3)
        L.need(ks)
        b = MOP + (ks % 4) * 4
        for pp in range(4):
            d = ACCM + pp * 4
            c = '0' if ks == 0 else f'v[{d}:{d+3}]'
            A(f'v_mfma_f32_16x16x32_bf16 v[{d}:{d+3}], v[{b}:{b+3}], {reg(wreg(ks,pp),4)}, {c}')
    A('s_nop 7')
    A('s_nop 3')
    A('s_lshl_b32 s45, s40, 3')
    A('s_lshl_b32 s50, s20, 1')
    A('s_add_u32 s45, s45, s50')
    A('s_mul_i32 s45, s45, 40')
    A('s_add_u32 s45, s45, s22')
    A('s_lshl_b32 s45, s45, 10')
    A(f's_add_u32 s45, s45, {WS["VOMF"]}')
    A(f's_add_u32 s50, s45, {40*1024}')
    for pp in range(4):
        d = ACCM + pp * 4
        A(f'v_cvt_pk_bf16_f32 v{PK+2*pp}, v{d}, v{d+1}')
        A(f'v_cvt_pk_bf16_f32 v{PK+2*pp+1}, v{d+2}, v{d+3}')
    A('s_mov_b64 exec, s[60:61]')
    for pp in range(4):
        A(f'ds_write_b64 v11, v[{PK+2*pp}:{PK+2*pp+1}] offset:{(pp>>1)*1024 + (pp&1)*512}')
        A(f'buffer_store_dwordx2 v[{PK+2*pp}:{PK+2*pp+1}], v10, s[4:7], s{45 if pp < 2 else 50} offen offset:{(pp&1)*512}')
    A('s_mov_b64 exec, -1')
    A(f'ds_read_b128 v[{VMOP}:{VMOP+3}], v152')
    A(f'ds_read_b128 v[{VMOP+4}:{VMOP+7}], v152 offset:1024')
    A(f's_mul_i32 s45, s40, {PS}')
    A(f's_add_u32 s45, s45, {WS["PB"]}')
    A('s_mul_i32 s50, s20, 5120')
    A('s_add_u32 s45, s45, s50')
    A(f's_add_u32 s50, s45, 2560')
    stamp(A, 3)
    delay(A, 'pd0', D['d0p'])
    A('s_mov_b32 s42, 0')
    A.label('L_s2_ppoll')
    A('s_mov_b64 exec, s[66:67]')
    for hh in range(8):
        A(f'buffer_load_dwordx4 v[{PT+hh*4}:{PT+hh*4+3}], v154, s[4:7], s{45 if hh < 4 else 50} offen offset:{128 + (hh&3)*640} sc1')
    for hg in range(2):
        A(f'buffer_load_dwordx4 v[{PM+hg*4}:{PM+hg*4+3}], v155, s[4:7], s{45 if hg == 0 else 50} offen sc1')
    A('s_mov_b64 exec, -1')
    A('s_waitcnt vmcnt(0)')
    regs = list(range(PT, PT + 40))
    A(f'v_max3_u32 v12, v{regs[0]}, v{regs[1]}, v{regs[2]}')
    A(f'v_max3_u32 v13, v{regs[3]}, v{regs[4]}, v{regs[5]}')
    k = 6; tgl = 0
    while k + 1 < 40:
        A(f'v_max3_u32 v{12+tgl}, v{12+tgl}, v{regs[k]}, v{regs[k+1]}')
        k += 2; tgl ^= 1
    A('v_max_u32 v12, v12, v13')
    A('v_cmp_eq_u32 vcc, -1, v12')
    A('s_cbranch_vccz L_s2_pok')
    A('s_add_u32 s42, s42, 1')
    A('s_cmp_lt_u32 s42, s44')
    A('s_cbranch_scc1 L_s2_ppoll')
    A('s_mov_b32 s44, 0')
    A.label('L_s2_pok')
    stamp(A, 4)
    if PROF in (1, 2): A('s_mov_b32 s80, s42')
    A('s_waitcnt lgkmcnt(0)')
    for hh in range(8):
        d = ACC if hh % 2 == 0 else ACCM
        c = '0' if hh < 2 else f'v[{d}:{d+3}]'
        A(f'v_mfma_f32_16x16x32_bf16 v[{d}:{d+3}], v[{VT+hh*4}:{VT+hh*4+3}], v[{PT+hh*4}:{PT+hh*4+3}], {c}')
    for hg in range(2):
        d = ACC if hg == 0 else ACCM
        A(f'v_mfma_f32_16x16x32_bf16 v[{d}:{d+3}], v[{VMOP+hg*4}:{VMOP+hg*4+3}], v[{PM+hg*4}:{PM+hg*4+3}], v[{d}:{d+3}]')
    A('s_nop 7')
    A('s_nop 3')
    for r in range(4):
        A(f'v_add_f32 v{ACC+r}, v{ACC+r}, v{ACCM+r}')
    A(f'ds_write_b128 v156, v[{ACC}:{ACC+3}] offset:{RED}')
    flag_check(A, 's2l')
    A('s_add_u32 s50, s40, 1')
    A('s_min_u32 s52, s50, 63')
    vt_prefetch(52)
    A('s_waitcnt lgkmcnt(0)')
    stamp(A, 5)
    A('s_barrier')
    A('s_cmp_lg_u32 s20, 0')
    A('s_cbranch_scc1 L_s2_next')
    for w in range(4):
        A(f'ds_read_b128 v[{24+4*w}:{27+4*w}], v158 offset:{RED + w*1024}')
    A('s_waitcnt lgkmcnt(2)')
    for r in range(4): A(f'v_add_f32 v{24+r}, v{24+r}, v{28+r}')
    A('s_waitcnt lgkmcnt(0)')
    for r in range(4): A(f'v_add_f32 v{32+r}, v{32+r}, v{36+r}')
    for r in range(4): A(f'v_add_f32 v{24+r}, v{24+r}, v{32+r}')
    A('v_cvt_pk_bf16_f32 v24, v24, v25')
    A('v_cvt_pk_bf16_f32 v25, v26, v27')
    A('v_min_u32 v24, 0xfffffffe, v24')
    A('v_min_u32 v25, 0xfffffffe, v25')
    A('s_add_u32 s45, s40, 1')
    A(f's_mul_i32 s45, s45, {MS}')
    A(f's_add_u32 s45, s45, {WS["MEMB"]}')
    A('s_mov_b64 exec, s[62:63]')
    A('buffer_store_dwordx2 v[24:25], v159, s[4:7], s45 offen sc1')
    A('s_mov_b64 exec, -1')
    A.label('L_s2_next')
    stamp(A, 6)
    stamp_flush(A, 9, 's2')
    A('s_add_u32 s40, s40, 1')
    A('s_cmp_lt_u32 s40, 64')
    A('s_cbranch_scc1 L_s2_loop')
    A('s_endpgm')
```

```python
import re
from asmlib import *
from layout import WS
from k_gemm import wave_ids, offs

TF = WS['FLAGS'] + 32768
NWORK = 144
NTASK = 1280

def gemm_deep(A, RA, RB, NKS, NST, vA, vB, strA, strB, acc, fbase, sk=28):
    R = RA + RB
    def fr(st, i): return fbase + (st * R + i) * 4
    def loads(k):
        st = k % NST
        A(f's_mov_b32 s{sk}, {k*strA}')
        if strB != strA: A(f's_mov_b32 s{sk+1}, {k*strB}')
        for i in range(RA):
            b = fr(st, i)
            A(f'buffer_load_dwordx4 a[{b}:{b+3}], v{vA+i}, s[4:7], s{sk} offen')
        for j in range(RB):
            b = fr(st, RA + j)
            A(f'buffer_load_dwordx4 a[{b}:{b+3}], v{vB+j}, s[4:7], s{sk + (1 if strB != strA else 0)} offen')
    for k in range(min(NST - 1, NKS)): loads(k)
    for k in range(NKS):
        if k + NST - 1 < NKS: loads(k + NST - 1)
        y = min(NST - 1, NKS - 1 - k)
        A(f's_waitcnt vmcnt({R*y})')
        st = k % NST
        for i in range(RA):
            for j in range(RB):
                a = fr(st, i); b = fr(st, RA + j)
                d = acc + (i * RB + j) * 4
                c = '0' if k == 0 else f'v[{d}:{d+3}]'
                A(f'v_mfma_f32_16x16x32_bf16 v[{d}:{d+3}], a[{a}:{a+3}], a[{b}:{b+3}], {c}')
    A('s_nop 7')
    A('s_nop 7')

def qk_task(A):
    A('s_and_b32 s23, s20, 1')
    A('s_lshr_b32 s24, s20, 1')
    assert WS['WkF'] == WS['WqF'] + 384 * 20 * 1024
    assert WS['KF'] == WS['QF'] + 128 * 192 * 1024
    A('s_lshl_b32 s25, s22, 4')
    A('s_lshl_b32 s26, s24, 3')
    A('s_add_u32 s25, s25, s26')
    A('s_lshl_b32 s26, s21, 3')
    A('s_lshl_b32 s27, s23, 2')
    A('s_add_u32 s26, s26, s27')
    RA, RB = 8, 4
    VA, VB = 4, 12
    A(f's_mul_i32 s27, s25, {20*1024}')
    A(f's_add_u32 s27, s27, {WS["WqF"]}')
    offs(A, VA, RA, 27, 20 * 1024)
    A(f's_mul_i32 s27, s26, {20*1024}')
    A(f's_add_u32 s27, s27, {WS["H1F"]}')
    offs(A, VB, RB, 27, 20 * 1024)
    ACC, T = 16, 144
    gemm_deep(A, RA, RB, 20, 5, VA, VB, 1024, 1024, ACC, 0)
    A('s_cmp_ge_u32 s25, 384')
    A('s_cselect_b32 s30, 384, 0')
    A(f's_cselect_b32 s32, {128*192*1024}, 0')
    A('s_sub_u32 s30, s25, s30')
    A('s_lshr_b32 s30, s30, 1')
    A(f's_add_u32 s32, s32, {WS["QF"]}')
    A('s_mul_i32 s31, s26, 192')
    A('s_add_u32 s31, s31, s30')
    A('s_lshl_b32 s31, s31, 10')
    A('s_add_u32 s32, s32, s31')
    for j in range(RB):
        for ip in range(RA // 2):
            a = ACC + ((2 * ip) * RB + j) * 4
            b = ACC + ((2 * ip + 1) * RB + j) * 4
            t = T + ((j * (RA // 2) + ip) % 16) * 4
            A(f'v_cvt_pk_bf16_f32 v{t}, v{a}, v{a+1}')
            A(f'v_cvt_pk_bf16_f32 v{t+1}, v{a+2}, v{a+3}')
            A(f'v_cvt_pk_bf16_f32 v{t+2}, v{b}, v{b+1}')
            A(f'v_cvt_pk_bf16_f32 v{t+3}, v{b+2}, v{b+3}')
            A(f's_add_u32 s31, s32, {(j*192 + ip)*1024}')
            A(f'buffer_store_dwordx4 v[{t}:{t+3}], v2, s[4:7], s31 offen sc1')

def vo_task(A, ident, sc='sc1', wv='s[8:11]', tag='vo'):
    VA, VB, ACC, VOP = 4, 10, 20, 132
    if not ident:
        A('s_and_b32 s24, s20, 1')
        A('s_lshr_b32 s25, s20, 1')
        A('s_mul_i32 s27, s22, 12')
        A('s_mul_i32 s26, s24, 6')
        A('s_add_u32 s27, s27, s26')
        A(f's_mul_i32 s27, s27, {20*1024}')
        A(f's_add_u32 s27, s27, {WS["WvF"]}')
        offs(A, VA, 6, 27, 20 * 1024)
        A('s_lshl_b32 s27, s23, 1')
        A('s_lshl_b32 s26, s25, 2')
        A('s_add_u32 s27, s27, s26')
        A(f's_mul_i32 s27, s27, {20*1024}')
        A(f's_add_u32 s27, s27, {WS["H1F"]}')
        offs(A, VB, 4, 27, 20 * 1024)
        gemm_deep(A, 6, 4, 20, 6, VA, VB, 1024, 1024, ACC, 0)
        fr = []
        for j in range(4):
            for ks in range(3):
                a = ACC + ((2 * ks) * 4 + j) * 4
                b = ACC + ((2 * ks + 1) * 4 + j) * 4
                t = VOP + (j * 3 + ks) * 4
                A(f'v_cvt_pk_bf16_f32 v{t}, v{a}, v{a+1}')
                A(f'v_cvt_pk_bf16_f32 v{t+1}, v{a+2}, v{a+3}')
                A(f'v_cvt_pk_bf16_f32 v{t+2}, v{b}, v{b+1}')
                A(f'v_cvt_pk_bf16_f32 v{t+3}, v{b+2}, v{b+3}')
                fr.append((t, (j * 6 + ks) * 1024))
        A('s_mul_i32 s26, s25, 24')
        A('s_mul_i32 s27, s24, 3')
        A('s_add_u32 s26, s26, s27')
        A('s_lshl_b32 s26, s26, 10')
        A('v_add_u32 v4, s26, v2')
    else:
        A('s_sub_u32 s27, s23, 64')
        A('s_add_u32 s27, s27, s20')
        A(f's_mul_i32 s27, s27, {32*12288}')
        A(f's_mul_i32 s28, s22, 384')
        A('s_add_u32 s27, s27, s28')
        A('v_and_b32 v4, 15, v1')
        A('v_lshrrev_b32 v5, 4, v1')
        A('v_mul_u32_u24 v4, 12288, v4')
        A('v_lshlrev_b32 v5, 3, v5')
        A('v_add_u32 v4, v4, v5')
        fr = []
        for j in range(2):
            for ks in range(6):
                t = VOP + (j * 6 + ks) * 4
                A(f'buffer_load_dwordx2 v[{t}:{t+1}], v4, {wv}, s27 offen offset:{ks*64}')
                A(f'buffer_load_dwordx2 v[{t+2}:{t+3}], v4, {wv}, s27 offen offset:{ks*64+32}')
                fr.append((t, (j * 6 + ks) * 1024))
            if j == 0:
                A(f's_add_u32 s27, s27, {16*12288}')
        A('s_mul_i32 s26, s20, 12288')
        A('v_add_u32 v4, s26, v2')
        A('s_waitcnt vmcnt(0)')
    for t, o in fr:
        A(f'ds_write_b128 v4, v[{t}:{t+3}] offset:{o}')
    A('s_mul_i32 s27, s22, 40')
    A('s_mul_i32 s26, s20, 10')
    A('s_add_u32 s27, s27, s26')
    A(f's_mul_i32 s27, s27, {6*1024}')
    A(f's_add_u32 s27, s27, {WS["WoF"]}')
    A('s_lshl_b32 s28, s23, 5')
    A('s_add_u32 s28, s28, s22')
    A('s_mul_i32 s28, s28, 40')
    A('s_add_u32 s28, s28, s26')
    A('s_lshl_b32 s28, s28, 10')
    A(f's_add_u32 s28, s28, {WS["VOF"]}')
    assert WS['WVOF'] == WS['VOF'] + 64 * 32 * 40 * 1024
    SL = [20, 44, 68, 92, 180, 204, 228]
    NST = 7
    AC = 116
    OUT = 132
    A('v_add_u32 v3, 4096, v2')
    def ld(ct):
        for ks in range(6):
            b = SL[ct % NST] + ks * 4
            A(f'buffer_load_dwordx4 v[{b}:{b+3}], v{2 if ks < 4 else 3}, s[4:7], s27 offen offset:{(ks%4)*1024}')
        A(f's_add_u32 s27, s27, {6*1024}')
    for ct in range(NST - 1): ld(ct)
    A('s_waitcnt lgkmcnt(0)')
    A('s_barrier')
    A('v_add_u32 v4, 16384, v2')
    A('v_add_u32 v5, 32768, v2')
    for f in range(48):
        A(f'ds_read_b128 a[{f*4}:{f*4+3}], v{[2,4,5][f//16]} offset:{(f%16)*1024}')
    A('s_waitcnt lgkmcnt(0)')
    def mm(u):
        ct, sg = u // 4, u % 4
        ac = AC + (u & 1) * 8
        for j in range(2):
            for ks in range(6):
                a = ((2 * sg + j) * 6 + ks) * 4
                b = SL[ct % NST] + ks * 4
                c = '0' if ks == 0 else f'v[{ac+4*j}:{ac+4*j+3}]'
                A(f'v_mfma_f32_16x16x32_bf16 v[{ac+4*j}:{ac+4*j+3}], a[{a}:{a+3}], v[{b}:{b+3}], {c}')
    def fin(u):
        ct, sg = u // 4, u % 4
        ac = AC + (u & 1) * 8
        o = OUT + (u & 3) * 4
        A(f'v_cvt_pk_bf16_f32 v{o}, v{ac}, v{ac+1}')
        A(f'v_cvt_pk_bf16_f32 v{o+1}, v{ac+2}, v{ac+3}')
        A(f'v_cvt_pk_bf16_f32 v{o+2}, v{ac+4}, v{ac+5}')
        A(f'v_cvt_pk_bf16_f32 v{o+3}, v{ac+6}, v{ac+7}')
        A(f's_add_u32 s29, s28, {(sg*32*40 + ct)*1024}')
        A(f'buffer_store_dwordx4 v[{o}:{o+3}], v2, s[4:7], s29 offen {sc}')
    for ct in range(10):
        if ct + NST - 1 < 10: ld(ct + NST - 1)
        y = min(NST - 1, 9 - ct)
        A(f's_waitcnt vmcnt({6*y})')
        for sg in range(4):
            u = ct * 4 + sg
            mm(u)
            if u > 0: fin(u - 1)
    A('s_nop 7')
    A('s_nop 7')
    fin(39)

def wait_row(A, tag, row):
    A('v_and_b32 v22, 63, v0')
    A('v_lshlrev_b32 v22, 3, v22')
    A(f's_mov_b32 s68, {TF + row*512}')
    A('s_mov_b32 s42, 0')
    A.label(f'L_{tag}_fl')
    A('buffer_load_dwordx2 v[20:21], v22, s[4:7], s68 offen sc1')
    A('s_waitcnt vmcnt(0)')
    A('v_and_b32 v20, v20, v21')
    A('v_cmp_ne_u32 vcc, 1, v20')
    A(f's_cbranch_vccz L_{tag}_flok')
    A('s_add_u32 s42, s42, 1')
    A('s_cmp_lt_u32 s42, s44')
    A(f's_cbranch_scc1 L_{tag}_fl')
    A('s_mov_b32 s44, 0')
    A.label(f'L_{tag}_flok')

def set_flag(A, tag, soff):
    A('s_waitcnt vmcnt(0)')
    A('s_barrier')
    A('s_cmp_lg_u32 s20, 0')
    A(f's_cbranch_scc1 L_{tag}_nofl')
    A(f's_add_u32 s{soff}, s{soff}, {TF}')
    A('v_mov_b32 v4, 1')
    A('v_mov_b32 v5, 0')
    A('s_mov_b64 exec, 1')
    A(f'buffer_store_dword v4, v5, s[4:7], s{soff} offen sc1')
    A('s_mov_b64 exec, -1')
    A.label(f'L_{tag}_nofl')

def gen_pre(A):
    from k_prep import gen_ln
    A('s_cmp_ge_u32 s2, 192')
    A('s_cbranch_scc1 L_pre_done')
    A('s_cmp_ge_u32 s2, 32')
    A('s_cbranch_scc1 L_pre_wvo')
    A('s_cmp_ge_u32 s2, 16')
    A('s_cbranch_scc1 L_pre_done')
    A('s_add_u32 s72, s2, 64')
    A('s_mov_b32 s69, 1')
    A('s_branch L_w_task')
    A.label('L_pre_wvo')
    A('s_sub_u32 s24, s2, 32')
    magic_div(A, 22, 24, 5)
    A('s_mul_i32 s21, s22, 5')
    A('s_sub_u32 s21, s24, s21')
    A('s_lshl_b32 s23, s21, 2')
    A('s_add_u32 s23, s23, 64')
    vo_task(A, True, wv='s[12:15]')
    A('s_sub_u32 s22, s2, 32')
    A('s_lshl_b32 s22, s22, 2')
    A(f's_add_u32 s22, s22, {17*512}')
    set_flag(A, 'prewvo', 22)
    A.label('L_pre_done')

def gen_worker(A):
    A('s_sub_u32 s70, s2, 48')
    A(f's_cmp_ge_u32 s70, {NWORK}')
    A(f's_cselect_b32 s22, {NWORK}, 0')
    A('s_sub_u32 s70, s70, s22')
    A('s_mov_b32 s69, 0')
    A.label('L_w_loop')
    A(f's_cmp_ge_u32 s70, {NTASK-16}')
    A('s_cbranch_scc1 L_w_end')
    A('s_cmp_ge_u32 s70, 64')
    A('s_cselect_b32 s72, 16, 0')
    A('s_add_u32 s72, s72, s70')
    A.label('L_w_task')
    magic_div(A, 21, 72, 80)
    A('s_mul_i32 s22, s21, 80')
    A('s_sub_u32 s71, s72, s22')
    A('s_cmp_lt_u32 s71, 32')
    A('s_cbranch_scc1 L_w_vo')
    A('s_sub_u32 s22, s71, 32')
    qk_task(A)
    A('s_branch L_w_fin')
    A.label('L_w_vo')
    A('s_mov_b32 s22, s71')
    A('s_lshl_b32 s23, s21, 2')
    vo_task(A, False)
    A.label('L_w_fin')
    A('s_waitcnt vmcnt(0)')
    A('s_barrier')
    A('s_cmp_lg_u32 s20, 0')
    A('s_cbranch_scc1 L_w_nofl')
    A('s_lshl_b32 s22, s21, 9')
    A('s_lshl_b32 s23, s71, 2')
    A('s_add_u32 s22, s22, s23')
    A(f's_add_u32 s22, s22, {TF}')
    A('v_mov_b32 v4, 1')
    A('v_mov_b32 v5, 0')
    A('s_mov_b64 exec, 1')
    A('buffer_store_dword v4, v5, s[4:7], s22 offen sc1')
    A('s_mov_b64 exec, -1')
    import os
    if os.environ.get('PROF') == '3':
        A('s_memrealtime s[98:99]')
        A('s_waitcnt lgkmcnt(0)')
        A('v_mov_b32 v4, s98')
        A('s_lshl_b32 s22, s72, 2')
        A(f's_add_u32 s22, s22, {WS["FLAGS"] + 49152}')
        A('buffer_store_dword v4, v5, s[4:7], s22 offen')
    A.label('L_w_nofl')
    A('s_cmp_lg_u32 s69, 0')
    A('s_cbranch_scc1 L_pre_done')
    A(f's_add_u32 s70, s70, {NWORK}')
    A('s_branch L_w_loop')
    A.label('L_w_end')
    A('s_endpgm')
```

```python
from asmlib import *
from layout import WS

NWG_MOD = 60
NWG_LN = 32
NWG_PREP = 452
NW = NWG_PREP * 4

def rne_bf16(A, v, tmp):
    A(f'v_cvt_pk_bf16_f32 v{tmp}, v{v}, v{v}')
    A(f'v_lshlrev_b32 v{v}, 16, v{tmp}')

def gen_prep(A):
    name = 'k_prep_kernel'
    kernel_header(A, name)
    A(f's_cmp_ge_u32 s2, {NWG_MOD + NWG_LN + NWG_PREP}')
    A('s_cbranch_scc1 L_prep_end')
    A(f's_cmp_lt_u32 s2, {NWG_MOD}')
    A('s_cbranch_scc1 L_mod')
    A(f's_cmp_lt_u32 s2, {NWG_MOD + NWG_LN}')
    A('s_cbranch_scc1 L_prep_ln')
    srds(A, [('ws', 4), ('Wq', 8), ('Wk', 12), ('Wv', 16), ('Wo', 20), ('w1', 24), ('w2', 28), ('mem0', 32)])
    A('v_lshrrev_b32 v1, 6, v0')
    A('v_and_b32 v2, 63, v0')
    A('s_nop 0')
    A('v_readfirstlane_b32 s40, v1')
    A(f's_sub_u32 s41, s2, {NWG_MOD + NWG_LN}')
    A('s_lshl_b32 s41, s41, 2')
    A('s_add_u32 s40, s40, s41')
    A('v_and_b32 v3, 15, v2')
    A('v_lshrrev_b32 v4, 4, v2')
    A('v_lshlrev_b32 v5, 4, v2')
    A('v_lshlrev_b32 v3, 1, v3')
    mats = [
        ('Wq', 8, 12288, 20, 96, 1, 0, 0, WS['WqF']),
        ('Wk', 12, 12288, 20, 96, 1, 0, 0, WS['WkF']),
        ('Wv', 16, 12288, 20, 96, 1, 0, 0, WS['WvF']),
        ('Wo', 20, 1280, 6, 10, 32, 192 * 1280, 1, WS['WoF']),
        ('w1', 24, 3072, 20, 24, 1, 0, 0, WS['W1F']),
        ('w2', 28, 1280, 48, 10, 1, 0, 1, WS['W2F']),
    ]
    for mi, (nm, srd, rs, nks, nnt4, ng, gs, perm, dst) in enumerate(mats):
        A(f's_mov_b32 s42, {rs}')
        for e in range(8):
            if not perm:
                A(f'v_lshlrev_b32 v6, 3, v4')
                A(f'v_add_u32 v6, {e}, v6')
            else:
                A(f'v_lshlrev_b32 v6, 2, v4')
                A(f'v_add_u32 v6, {e if e < 4 else 16 + e - 4}, v6')
            A(f'v_mul_lo_u32 v6, v6, s42')
            A(f'v_add_u32 v{8+e}, v6, v3')
        nq = nnt4 * nks * ng
        shift = (mi * 701) % NW
        A(f's_add_u32 s43, s40, {shift}')
        A(f's_cmp_ge_u32 s43, {NW}')
        A(f's_cselect_b32 s44, {NW}, 0')
        A(f's_sub_u32 s43, s43, s44')
        lp = f'L_prep_loop{mi}'
        le = f'L_prep_done{mi}'
        A.label(lp)
        A(f's_cmp_ge_u32 s43, {nq}')
        A(f's_cbranch_scc1 {le}')
        if ng > 1:
            magic_div(A, 45, 43, nnt4 * nks)
            A(f's_mul_i32 s46, s45, {nnt4*nks}')
            A('s_sub_u32 s46, s43, s46')
        else:
            A('s_mov_b32 s45, 0')
            A('s_mov_b32 s46, s43')
        magic_div(A, 47, 46, nks)
        A(f's_mul_i32 s48, s47, {nks}')
        A('s_sub_u32 s48, s46, s48')
        A(f's_mul_i32 s49, s45, {gs}')
        A(f's_mul_i32 s50, s48, {32*rs}')
        A('s_add_u32 s49, s49, s50')
        A('s_lshl_b32 s50, s47, 7')
        A('s_add_u32 s49, s49, s50')
        A(f's_mul_i32 s50, s45, {nnt4*4*nks}')
        A(f's_mul_i32 s51, s47, {4*nks}')
        A('s_add_u32 s50, s50, s51')
        A('s_add_u32 s50, s50, s48')
        A('s_lshl_b32 s50, s50, 10')
        A(f's_add_u32 s50, s50, {dst}')
        for j in range(4):
            for e in range(8):
                A(f'buffer_load_ushort v{32 + j*8 + e}, v{8+e}, s[{srd}:{srd+3}], s49 offen offset:{32*j}')
        A('s_waitcnt vmcnt(0)')
        for j in range(4):
            for e2 in range(4):
                A(f'v_lshl_or_b32 v{16 + j*4 + e2}, v{32 + j*8 + 2*e2 + 1}, 16, v{32 + j*8 + 2*e2}')
        for j in range(4):
            A(f'buffer_store_dwordx4 v[{16+j*4}:{19+j*4}], v5, s[4:7], s50 offen')
            if j < 3:
                A(f's_add_u32 s50, s50, {nks*1024}')
        A(f's_add_u32 s43, s43, {NW}')
        A(f's_branch {lp}')
        A.label(le)
    st = WS['MEMB'] + 10240
    en = WS['PB'] + 64 * 20480
    nchunks = (en - st) // 1024
    A('v_mov_b32 v16, -1')
    A('v_mov_b32 v17, -1')
    A('v_mov_b32 v18, -1')
    A('v_mov_b32 v19, -1')
    A('s_mov_b32 s43, s40')
    A.label('L_fill_loop')
    A(f's_cmp_ge_u32 s43, {nchunks}')
    A('s_cbranch_scc1 L_fill_done')
    A('s_lshl_b32 s50, s43, 10')
    A(f's_add_u32 s50, s50, {st}')
    A('buffer_store_dwordx4 v[16:19], v5, s[4:7], s50 offen')
    A(f's_add_u32 s43, s43, {NW}')
    A('s_branch L_fill_loop')
    A.label('L_fill_done')
    A('s_cmp_ge_u32 s40, 19')
    A('s_cbranch_scc1 L_tf_done')
    A('s_cmp_ge_u32 s40, 16')
    A('s_cselect_b32 s50, 16, 40')
    A('s_cmp_eq_u32 s40, 17')
    A('s_cselect_b32 s50, 64, s50')
    A('v_cmp_le_u32 vcc, s50, v2')
    A('v_cndmask_b32 v20, 0, 1, vcc')
    A('v_mov_b32 v21, v20')
    A('v_lshlrev_b32 v22, 3, v2')
    A('s_lshl_b32 s50, s40, 9')
    A(f's_add_u32 s50, s50, {WS["FLAGS"] + 32768}')
    A('buffer_store_dwordx2 v[20:21], v22, s[4:7], s50 offen')
    A.label('L_tf_done')
    A(f's_sub_u32 s43, s40, {NW-10}')
    A('s_cmp_ge_u32 s43, 10')
    A('s_cbranch_scc1 L_prep_end')
    A('s_lshl_b32 s50, s43, 6')
    A('v_add_u32 v6, s50, v2')
    A('v_and_b32 v7, 7, v6')
    A('v_mul_u32_u24 v7, 1280, v7')
    A('v_lshrrev_b32 v8, 3, v6')
    A('v_lshlrev_b32 v8, 4, v8')
    A('v_add_u32 v7, v7, v8')
    A('v_lshlrev_b32 v6, 4, v6')
    A('buffer_load_dwordx4 v[16:19], v7, s[32:35], 0 offen')
    A('s_waitcnt vmcnt(0)')
    A(f'buffer_store_dwordx4 v[16:19], v6, s[4:7], 0 offen offset:{WS["MEMB"]}') if WS["MEMB"] < 4096 else A(f's_mov_b32 s50, {WS["MEMB"]}\nbuffer_store_dwordx4 v[16:19], v6, s[4:7], s50 offen')
    A('s_branch L_prep_end')
    A.label('L_mod')
    srds(A, [('ws', 4), ('c', 8), ('wmod', 12), ('dbg', 24)])
    A('v_lshrrev_b32 v1, 6, v0')
    A('v_and_b32 v2, 63, v0')
    A('v_and_b32 v3, 7, v2')
    A('v_lshrrev_b32 v4, 3, v2')
    A('v_mul_u32_u24 v5, 160, v1')
    A('v_add_u32 v5, v5, v4')
    A('v_lshlrev_b32 v6, 1, v5')
    A('v_mul_u32_u24 v7, 7680, v5')
    A('v_lshlrev_b32 v8, 4, v3')
    A('v_add_u32 v7, v7, v8')
    A('s_lshl_b32 s20, s2, 7')
    for i in range(20):
        A(f'buffer_load_ushort v{20+i}, v6, s[8:11], 0 offen offset:{16*i}')
    A('v_add_u32 v7, s20, v7')
    for i in range(20):
        A(f's_mov_b32 s21, {i*8*7680}')
        A(f'buffer_load_dwordx4 v[{40+4*i}:{43+4*i}], v7, s[12:15], s21 offen')
    for e in range(8):
        A(f'v_mov_b32 v{10+e}, 0')
    A('s_waitcnt vmcnt(20)')
    for i in range(20):
        v = 20 + i
        A(f'v_lshlrev_b32 v{v}, 16, v{v}')
        A(f'v_mul_f32 v18, 0xbfb8aa3b, v{v}')
        A('v_exp_f32 v18, v18')
        A('s_nop 0')
        A('v_add_f32 v18, 1.0, v18')
        A('v_rcp_f32 v18, v18')
        A('s_nop 0')
        A(f'v_mul_f32 v{v}, v{v}, v18')
        rne_bf16(A, v, 18)
    for i in range(20):
        A(f's_waitcnt vmcnt({19-i})')
        for q in range(4):
            src = 40 + 4 * i + q
            A(f'v_lshlrev_b32 v18, 16, v{src}')
            A(f'v_and_b32 v19, 0xffff0000, v{src}')
            A(f'v_fmac_f32 v{10+2*q}, v{20+i}, v18')
            A(f'v_fmac_f32 v{11+2*q}, v{20+i}, v19')
    A('v_lshlrev_b32 v5, 3, v1')
    A('v_add_u32 v5, v5, v4')
    A('v_lshlrev_b32 v5, 8, v5')
    A('v_lshlrev_b32 v6, 5, v3')
    A('v_add_u32 v5, v5, v6')
    A('ds_write_b128 v5, v[10:13]')
    A('ds_write_b128 v5, v[14:17] offset:16')
    A('s_waitcnt lgkmcnt(0)')
    A('s_barrier')
    A('v_cmp_gt_u32 vcc, 64, v0')
    A('s_and_saveexec_b64 s[22:23], vcc')
    A('s_cbranch_execz L_prep_end')
    A('v_lshlrev_b32 v5, 2, v0')
    for i in range(32):
        A(f'ds_read_b32 v{20+i}, v5 offset:{256*i}')
    A('s_waitcnt lgkmcnt(0)')
    for i in range(1, 32):
        A(f'v_add_f32 v20, v20, v{20+i}')
    A('v_cvt_pk_bf16_f32 v20, v20, v20')
    A('v_lshlrev_b32 v5, 1, v0')
    A('v_add_u32 v5, s20, v5')
    A(f'buffer_store_short v20, v5, s[4:7], 0 offen offset:{WS["MODB"]} sc1')
    A('s_waitcnt vmcnt(0)')
    A('v_mov_b32 v20, 1')
    A('v_mov_b32 v21, 0')
    A('s_lshl_b32 s21, s2, 2')
    A('s_mov_b64 exec, 1')
    A('buffer_store_dword v20, v21, s[24:27], s21 offen sc1')
    A('s_endpgm')
    A.label('L_prep_ln')
    srds(A, [('ws', 4), ('x', 8), ('dbg', 24)])
    A('v_lshrrev_b32 v1, 6, v0')
    A('s_nop 0')
    A('v_readfirstlane_b32 s40, v1')
    A('v_and_b32 v0, 63, v0')
    A(f's_sub_u32 s2, s2, {NWG_MOD}')
    A('s_lshl_b32 s2, s2, 2')
    A('s_add_u32 s2, s2, s40')
    def wm():
        A('v_lshlrev_b32 v11, 2, v0')
        A('s_mov_b32 s42, 0')
        A('s_mov_b32 exec_hi, 0x0fffffff')
        A.label('L_prep_wm')
        A('buffer_load_dword v12, v11, s[24:27], 0 offen sc1')
        A('s_waitcnt vmcnt(0)')
        A('v_cmp_ne_u32 vcc, 1, v12')
        A('s_cbranch_vccz L_prep_wmok')
        A('s_add_u32 s42, s42, 1')
        A('s_cmp_lt_u32 s42, 400000')
        A('s_cbranch_scc1 L_prep_wm')
        A.label('L_prep_wmok')
        A('s_mov_b64 exec, -1')
    gen_ln(A, 'ln1', 'x', 0, 1, WS['H1F'], embedded=True, wait_mod=wm)
    A.label('L_prep_end')
    A('s_endpgm')
    return name, kernel_desc(name, 256), f'; @launch kernel={name} grid=({NWG_MOD+NWG_LN+NWG_PREP},1,1) block=(256,1,1) lds=8192'

def gen_ln(A, name, src, s_idx, c_idx, dst, embedded=False, wait_mod=None):
    if not embedded:
        kernel_header(A, name)
        A('s_cmp_ge_u32 s2, 128')
        A(f's_cbranch_scc1 L_{name}_end')
        srds(A, [('ws', 4), ('x', 8)])
    A('v_and_b32 v1, 15, v0')
    A('v_lshrrev_b32 v2, 4, v0')
    A('v_mul_u32_u24 v3, 1280, v1')
    A('v_lshlrev_b32 v4, 4, v2')
    A('v_add_u32 v3, v3, v4')
    A('s_mul_i32 s20, s2, 20480')
    if src == 'x':
        srd = 's[8:11]'
    else:
        srd = 's[4:7]'
        A(f's_add_u32 s20, s20, {src}')
    X = 64
    RAW = 16
    F = 96
    for ks in range(20):
        A(f'buffer_load_dwordx4 v[{RAW+4*ks}:{RAW+4*ks+3}], v3, {srd}, s20 offen offset:{64*ks}')
    A('v_mov_b32 v5, 0')
    for ks in range(20):
        A(f's_waitcnt vmcnt({19-ks})')
        for q in range(4):
            r = RAW + 4 * ks + q
            A(f'v_lshlrev_b32 v{F+8*ks+2*q}, 16, v{r}')
            A(f'v_and_b32 v{F+8*ks+2*q+1}, 0xffff0000, v{r}')
            A(f'v_add_f32 v5, v5, v{F+8*ks+2*q}')
            A(f'v_add_f32 v5, v5, v{F+8*ks+2*q+1}')
    A('v_xor_b32 v6, 16, v0')
    A('v_lshlrev_b32 v6, 2, v6')
    A('v_xor_b32 v7, 32, v0')
    A('v_lshlrev_b32 v7, 2, v7')
    def xred(v):
        A(f'ds_bpermute_b32 v8, v6, v{v}')
        A('s_waitcnt lgkmcnt(0)')
        A(f'v_add_f32 v{v}, v{v}, v8')
        A(f'ds_bpermute_b32 v8, v7, v{v}')
        A('s_waitcnt lgkmcnt(0)')
        A(f'v_add_f32 v{v}, v{v}, v8')
    xred(5)
    A('v_mul_f32 v5, 0x3acccccd, v5')
    A('v_mov_b32 v9, 0')
    for i in range(160):
        A(f'v_sub_f32 v8, v{F+i}, v5')
        A('v_fmac_f32 v9, v8, v8')
    xred(9)
    A('v_mul_f32 v9, 0x3acccccd, v9')
    rne_bf16(A, 9, 8)
    A('v_add_f32 v9, 0x3727c5ac, v9')
    rne_bf16(A, 9, 8)
    A('v_sqrt_f32 v9, v9')
    A('s_nop 0')
    rne_bf16(A, 9, 8)
    A('v_rcp_f32 v9, v9')
    rne_bf16(A, 5, 8)
    A('v_lshlrev_b32 v10, 4, v2')
    if wait_mod: wait_mod()
    for ks in range(20):
        A(f'buffer_load_dwordx4 v[{RAW+4*ks}:{RAW+4*ks+3}], v10, s[4:7], 0 offen offset:{WS["MODB"] + c_idx*1280 + 64*ks}' if (WS["MODB"] + c_idx*1280 + 64*ks) < 4096 else
          f's_mov_b32 s21, {WS["MODB"] + c_idx*1280 + 64*ks}\nbuffer_load_dwordx4 v[{RAW+4*ks}:{RAW+4*ks+3}], v10, s[4:7], s21 offen')
    for i in range(0, 160, 2):
        A(f'v_sub_f32 v{F+i}, v{F+i}, v5')
        A(f'v_sub_f32 v{F+i+1}, v{F+i+1}, v5')
        A(f'v_cvt_pk_bf16_f32 v8, v{F+i}, v{F+i+1}')
        A(f'v_lshlrev_b32 v{F+i}, 16, v8')
        A(f'v_and_b32 v{F+i+1}, 0xffff0000, v8')
        A(f'v_mul_f32 v{F+i}, v{F+i}, v9')
        A(f'v_mul_f32 v{F+i+1}, v{F+i+1}, v9')
        A(f'v_cvt_pk_bf16_f32 v8, v{F+i}, v{F+i+1}')
        A(f'v_lshlrev_b32 v{F+i}, 16, v8')
        A(f'v_and_b32 v{F+i+1}, 0xffff0000, v8')
    for ks in range(20):
        A(f's_waitcnt vmcnt({19-ks})')
        for q in range(4):
            r = RAW + 4 * ks + q
            i = 8 * ks + 2 * q
            A(f'v_lshlrev_b32 v11, 16, v{r}')
            A(f'v_and_b32 v12, 0xffff0000, v{r}')
            A('v_add_f32 v11, 1.0, v11')
            A('v_add_f32 v12, 1.0, v12')
            A('v_cvt_pk_bf16_f32 v8, v11, v12')
            A('v_lshlrev_b32 v11, 16, v8')
            A('v_and_b32 v12, 0xffff0000, v8')
            A(f'v_mul_f32 v{F+i}, v{F+i}, v11')
            A(f'v_mul_f32 v{F+i+1}, v{F+i+1}, v12')
            A(f'v_cvt_pk_bf16_f32 v8, v{F+i}, v{F+i+1}')
            A(f'v_lshlrev_b32 v{F+i}, 16, v8')
            A(f'v_and_b32 v{F+i+1}, 0xffff0000, v8')
    for ks in range(20):
        A(f's_mov_b32 s21, {WS["MODB"] + s_idx*1280 + 64*ks}')
        A(f'buffer_load_dwordx4 v[{RAW+4*ks}:{RAW+4*ks+3}], v10, s[4:7], s21 offen')
    A('v_lshlrev_b32 v13, 4, v0')
    A('s_mul_i32 s22, s2, 20480')
    A(f's_add_u32 s22, s22, {dst}')
    for ks in range(20):
        A(f's_waitcnt vmcnt({19-ks})' if ks == 0 else f's_waitcnt vmcnt({19})')
        for q in range(4):
            r = RAW + 4 * ks + q
            i = 8 * ks + 2 * q
            A(f'v_lshlrev_b32 v11, 16, v{r}')
            A(f'v_and_b32 v12, 0xffff0000, v{r}')
            A(f'v_add_f32 v{F+i}, v{F+i}, v11')
            A(f'v_add_f32 v{F+i+1}, v{F+i+1}, v12')
            A(f'v_cvt_pk_bf16_f32 v{r}, v{F+i}, v{F+i+1}')
        A(f'buffer_store_dwordx4 v[{RAW+4*ks}:{RAW+4*ks+3}], v13, s[4:7], s22 offen')
        A(f's_add_u32 s22, s22, 1024')
    if embedded: return
    A.label(f'L_{name}_end')
    A('s_endpgm')
    return name, kernel_desc(name, 256), f'; @launch kernel={name} grid=(128,1,1) block=(64,1,1) lds=0'
```

```python
from asmlib import *
from layout import WS
from k_post import SCALE, LOG2E

SPIN = 400000
MEMLDS = 0
RED = 10240
WLDS = 17408
TL = 16384
LDS_CHAIN = WLDS + 4 * 18 * 1024

class Lgkm:
    def __init__(s, A): s.A = A; s.q = []
    def issue(s, tag, text): s.A(text); s.q.append(tag)
    def need(s, tag):
        if tag in s.q:
            i = s.q.index(tag)
            n = len(s.q) - 1 - i
            s.A(f's_waitcnt lgkmcnt({min(n,15)})')
            s.q = s.q[i + 1:]

import os
PROF = int(os.environ.get('PROF', '0'))
def stamp(A, idx):
    if PROF in (1, 2):
        A('s_memrealtime s[98:99]' if PROF == 2 else 's_memtime s[98:99]')
        A('s_waitcnt lgkmcnt(0)')
        A(f's_mov_b32 s{72+idx}, s98')
def stamp_flush(A, n, tag):
    if PROF in (1, 2):
        A(f's_cmp_lg_u32 s40, {int(os.environ.get("PSTEP", "45"))}')
        A(f's_cbranch_scc1 L_{tag}_nofl')
        A('s_lshl_b32 s96, s2, 2')
        A('s_add_u32 s96, s96, s20')
        A('s_lshl_b32 s96, s96, 6')
        A(f's_add_u32 s96, s96, {WS["FLAGS"]}')
        for i in range(n):
            A(f'v_mov_b32 v26, s{72+i}')
            A('v_mov_b32 v27, 0')
            A(f'buffer_store_dword v26, v27, s[4:7], s96 offen offset:{4*i}')
        A(f'L_{tag}_nofl:')

KT = int(os.environ.get('KT', '0'))
XM = int(os.environ.get('XM', '6'))
XP = int(os.environ.get('XP', '14'))
D = {k: int(os.environ.get(k, '0')) for k in ('d0s1', 'd1s1', 'd0s2', 'd1s2', 'd0p', 'd1p')}
def delay(A, tag, n):
    if n:
        A(f's_mov_b32 s43, {n}')
        A(f'L_dl_{tag}:')
        A('s_nop 15')
        A('s_sub_u32 s43, s43, 1')
        A('s_cmp_lg_u32 s43, 0')
        A(f's_cbranch_scc1 L_dl_{tag}')
def tag_poll(A, tag, treg, vtag, sbase, nx, mask=None):
    A('s_mov_b32 s42, 0')
    if mask: A(f's_mov_b64 exec, {mask}')
    for j in range(KT):
        A(f'buffer_load_dword v{treg+j}, v{vtag}, s[4:7], s{sbase} offen sc1')
        if j < KT - 1:
            for _ in range(nx): A('s_nop 15')
    A.label(f'L_{tag}_tag')
    for j in range(KT):
        A(f's_waitcnt vmcnt({KT-1})')
        A(f'v_cmp_eq_u32 vcc, -1, v{treg+j}')
        A(f's_cbranch_vccz L_{tag}_tagok')
        A(f'buffer_load_dword v{treg+j}, v{vtag}, s[4:7], s{sbase} offen sc1')
        for _ in range(nx): A('s_nop 15')
    A('s_add_u32 s42, s42, 1')
    A('s_cmp_lt_u32 s42, s44')
    A(f's_cbranch_scc1 L_{tag}_tag')
    A.label(f'L_{tag}_tagok')
    if mask: A('s_mov_b64 exec, -1')

MS, PS = 10240, 20480
def kflag(A, t):
    A('s_cmp_eq_u32 s59, 0')
    A(f's_cbranch_scc1 L_kfl_{t}')
    A('v_mov_b32 v24, 1')
    A('v_mov_b32 v25, 0')
    A('s_mov_b64 exec, 1')
    A('buffer_store_dword v24, v25, s[4:7], s59 offen sc1')
    A('s_mov_b64 exec, -1')
    A('s_mov_b32 s59, 0')
    A.label(f'L_kfl_{t}')
PUB = RED + 5632
S1MODE = os.environ.get('S1MODE', 'flag')
def gather_mem(A, tag, sstep, extra=None):
    A(f's_mul_i32 s41, s{sstep}, {MS}')
    A(f's_add_u32 s41, s41, {WS["MEMB"]}')
    stamp(A, 0)
    flag = False
    def loads(sc):
        A(f'buffer_load_dwordx4 v[12:15], v4, s[4:7], s41 offen {sc}')
        A(f'buffer_load_dwordx4 v[16:19], v4, s[4:7], s41 offen offset:1024 {sc}')
        A('s_mov_b64 exec, s[60:61]')
        A(f'buffer_load_dwordx4 v[20:23], v4, s[4:7], s41 offen offset:2048 {sc}')
        A('s_mov_b64 exec, -1')
    if flag:
        A(f's_cmp_eq_u32 s{sstep}, 0')
        A(f's_cbranch_scc1 L_{tag}m_tagok2')
        tag_poll(A, tag + 'm', 24, 1, 41, XM, 's[64:65]')
        A.label(f'L_{tag}m_tagok2')
        A('s_mov_b32 s42, 0')
        loads('')
        A(f's_branch L_{tag}_chk')
    else:
        delay(A, tag + 'd0', D['d0' + tag])
        A('s_mov_b32 s42, 0')
    A.label(f'L_{tag}_poll')
    loads('sc1')
    A.label(f'L_{tag}_chk')
    A('s_waitcnt vmcnt(0)')
    if tag == 's1': kflag(A, 'a')
    A('v_max3_u32 v24, v12, v13, v14')
    A('v_max3_u32 v25, v15, v16, v17')
    A('v_max3_u32 v24, v24, v18, v19')
    A('v_max3_u32 v25, v25, v20, v21')
    A('v_max3_u32 v24, v24, v22, v23')
    A('v_max_u32 v24, v24, v25')
    A('v_cmp_eq_u32 vcc, -1, v24')
    A(f's_cbranch_vccz L_{tag}_ok')
    A('s_add_u32 s42, s42, 1')
    A('s_cmp_lt_u32 s42, s44')
    A(f's_cbranch_scc1 L_{tag}_poll')
    A('s_mov_b32 s44, 0')
    A.label(f'L_{tag}_ok')
    stamp(A, 1)
    if PROF in (1, 2): A('s_mov_b32 s79, s42')
    A(f'ds_write_b128 v4, v[12:15] offset:{MEMLDS}')
    A(f'ds_write_b128 v4, v[16:19] offset:{MEMLDS+1024}')
    A('s_mov_b64 exec, s[60:61]')
    A(f'ds_write_b128 v4, v[20:23] offset:{MEMLDS+2048}')
    A('s_mov_b64 exec, -1')
    if extra: extra()
    A('s_waitcnt lgkmcnt(0)')
    A('s_barrier')

from k_mega import TF, gen_worker, gen_pre, wait_row
def flag_issue(A, sreg):
    A(f's_lshr_b32 s45, s{sreg}, 2')
    A('s_lshl_b32 s45, s45, 9')
    A(f's_add_u32 s68, s45, {TF}')
    A('buffer_load_dwordx2 v[20:21], v1, s[4:7], s68 offen sc1')
def flag_check(A, tag):
    A('s_mov_b32 s42, 0')
    A.label(f'L_{tag}_fl')
    A('v_and_b32 v20, v20, v21')
    A('v_cmp_ne_u32 vcc, 1, v20')
    A(f's_cbranch_vccz L_{tag}_flok')
    A('s_add_u32 s42, s42, 1')
    A('s_cmp_lt_u32 s42, s44')
    A(f's_cbranch_scc0 L_{tag}_flto')
    A('buffer_load_dwordx2 v[20:21], v1, s[4:7], s68 offen sc1')
    A('s_waitcnt vmcnt(0)')
    A(f's_branch L_{tag}_fl')
    A.label(f'L_{tag}_flto')
    A('s_mov_b32 s44, 0')
    A.label(f'L_{tag}_flok')

def dpp_red32(A, op, v, t):
    for c in ['quad_perm:[1,0,3,2]', 'quad_perm:[2,3,0,1]', 'row_half_mirror', 'row_mirror']:
        A('s_nop 1')
        A(f'{op}_dpp v{v}, v{v}, v{v} {c} row_mask:0xf bank_mask:0xf')
    A(f'v_mov_b32 v{t}, v{v}')
    A('s_nop 1')
    A(f'v_permlane16_swap_b32 v{v}, v{t}')
    A('s_nop 1')
    A(f'{op} v{v}, v{v}, v{t}')

def tstep(A, slot=None):
    if PROF != 3: return
    l = A.newlabel('L_ts')
    A('s_or_b32 s96, s2, s20')
    A('s_cmp_lg_u32 s96, 0')
    A(f's_cbranch_scc1 {l}')
    A('s_memrealtime s[98:99]')
    A('s_waitcnt lgkmcnt(0)')
    A('v_mov_b32 v26, s98')
    A('v_mov_b32 v27, 0')
    if slot is None:
        A('s_lshl_b32 s96, s40, 2')
    else:
        A(f's_mov_b32 s96, {slot*4}')
    A(f's_add_u32 s96, s96, {WS["FLAGS"] + 28672}')
    A('buffer_store_dword v26, v27, s[4:7], s96 offen')
    A.label(l)

def gen_chain(A):
    name = 'k_chain_kernel'
    kernel_header(A, name)
    A('s_cmp_ge_u32 s2, 256')
    A('s_cbranch_scc1 L_ch_end')
    srds(A, [('ws', 4), ('x', 8), ('Wv', 12)])
    A('v_lshrrev_b32 v1, 6, v0')
    A('s_nop 0')
    A('v_readfirstlane_b32 s20, v1')
    A('v_and_b32 v1, 63, v0')
    A('v_lshlrev_b32 v2, 4, v1')
    A(f's_mov_b32 s44, {SPIN}')
    A('s_mov_b32 s40, 0')
    tstep(A, 65)
    gen_pre(A)
    A('v_and_b32 v1, 63, v0')
    A('v_lshlrev_b32 v2, 4, v1')
    A('s_mul_i32 s21, s20, 2560')
    A('v_add_u32 v4, s21, v2')
    for r in range(20, 24):
        A(f'v_mov_b32 v{r}, 0')
    A(f's_mov_b32 s44, {SPIN}')
    A('s_mov_b32 s60, -1')
    A('s_mov_b32 s61, 0')
    A('s_mov_b32 s62, 0xffff')
    A('s_mov_b32 s63, 0')
    A('s_mov_b32 s64, 0xfffff')
    A('s_mov_b32 s65, 0')
    A('s_mov_b32 s40, 0')
    A('s_cmp_ge_u32 s2, 112')
    A('s_cbranch_scc1 L_ch_w')
    A('s_cmp_ge_u32 s2, 32')
    A('s_cbranch_scc1 L_ch_s2')
    gen_s1(A)
    A.label('L_ch_s2')
    gen_s2(A)
    A.label('L_ch_w')
    gen_worker(A)
    A.label('L_ch_end')
    A('s_endpgm')
    return name, kernel_desc(name, 256, 256), f'; @launch kernel={name} grid=(256,1,1) block=(256,1,1) lds={LDS_CHAIN}'

def gen_s1(A):
    from k_post import rnd2, xred1632
    QT, KT, KFL, WL = 10240, 16384, 22528, 34816
    AR, ACC, WT = 24, 40, 64
    A9 = 12
    KFR = 64
    def wreg(c, t):
        f = c * 6 + t
        return (80 + f * 8) if f < 22 else (256 + (f - 22) * 8)
    A('s_mul_i32 s22, s2, 12')
    A('s_mul_i32 s51, s20, 3')
    A('s_add_u32 s22, s22, s51')
    A(f's_mul_i32 s22, s22, {20*1024}')
    A(f's_add_u32 s22, s22, {WS["WqF"]}')
    KOFF = WS['WkF'] - WS['WqF']
    A(f's_mul_i32 s24, s20, {12*1024}')
    A(f'v_add_u32 v0, s24, v2')
    frs = [(c, t, hf) for c in range(10) for t in range(6) for hf in range(2)]
    def src_off(c, t, hf):
        return (t % 3) * 20 * 1024 + (KOFF if t >= 3 else 0) + (2 * c + hf) * 1024
    inplace = [f for f in frs if f[0] < 9 and wreg(f[0], f[1]) < 256]
    other = [f for f in frs if f not in inplace]
    for (c, t, hf) in inplace:
        r = wreg(c, t) + 4 * hf
        A(f's_add_u32 s23, s22, {src_off(c, t, hf)}')
        A(f'buffer_load_dwordx4 v[{r}:{r+3}], v2, s[4:7], s23 offen')
    def batch_load(fl):
        for n, (c, t, hf) in enumerate(fl):
            r = 12 + 4 * n
            A(f's_add_u32 s23, s22, {src_off(c, t, hf)}')
            A(f'buffer_load_dwordx4 v[{r}:{r+3}], v2, s[4:7], s23 offen')
    def batch_fin(fl):
        for n, (c, t, hf) in enumerate(fl):
            r = 12 + 4 * n
            A(f'v_permlane16_swap_b32 v{r}, v{r+2}')
            A(f'v_permlane16_swap_b32 v{r+1}, v{r+3}')
        A('s_nop 1')
        for n, (c, t, hf) in enumerate(fl):
            r = 12 + 4 * n
            if c < 9:
                d = wreg(c, t) - 256 + 4 * hf
                for q, sr_ in enumerate((0, 2, 1, 3)):
                    A(f'v_accvgpr_write_b32 a{d+q}, v{r+sr_}')
            else:
                A(f'v_swap_b32 v{r+1}, v{r+2}')
                A('s_nop 0')
                A(f'ds_write_b128 v0, v[{r}:{r+3}] offset:{WL + (t*2 + hf)*1024}')
        A('s_waitcnt lgkmcnt(0)')
    batches = [other[i:i+16] for i in range(0, len(other), 16)]
    batch_load(batches[0])
    A('s_waitcnt vmcnt(16)')
    for (c, t, hf) in inplace:
        r = wreg(c, t) + 4 * hf
        A(f'v_permlane16_swap_b32 v{r}, v{r+2}')
        A(f'v_permlane16_swap_b32 v{r+1}, v{r+3}')
        A('s_nop 1')
        A(f'v_swap_b32 v{r+1}, v{r+2}')
    for bi, fl in enumerate(batches):
        if bi > 0: batch_load(fl)
        A('s_waitcnt vmcnt(0)')
        batch_fin(fl)
    for r in range(20, 24):
        A(f'v_mov_b32 v{r}, 0')
    A('v_and_b32 v5, 15, v1')
    A('v_lshrrev_b32 v6, 4, v1')
    A('v_and_b32 v7, 8, v1')
    A('v_cmp_eq_u32 vcc, 0, v7')
    A('v_mov_b32 v3, 0xeeeeeeee')
    A('v_mov_b32 v7, 0x44444444')
    A('v_cndmask_b32 v3, v3, v7, vcc')
    A('v_lshrrev_b32 v7, 2, v5')
    A('v_lshlrev_b32 v7, 4, v7')
    A('v_and_b32 v8, 3, v5')
    A('v_lshlrev_b32 v8, 1, v8')
    A('v_add_u32 v7, v7, v8')
    A('v_and_b32 v8, 1, v6')
    A('v_lshlrev_b32 v8, 8, v8')
    A('v_add_u32 v7, v7, v8')
    A('v_lshrrev_b32 v8, 1, v6')
    A('v_lshlrev_b32 v8, 6, v8')
    A('v_add_u32 v7, v7, v8')
    A('v_lshlrev_b32 v8, 6, v5')
    A('v_lshlrev_b32 v9, 4, v6')
    A('v_add_u32 v8, v8, v9')
    A('v_mov_b32 v11, v8')
    A('v_lshlrev_b32 v8, 7, v6')
    A('v_lshlrev_b32 v9, 4, v5')
    A('v_add_u32 v8, v8, v9')
    A('v_add_u32 v8, 128, v8')
    A('v_lshlrev_b32 v10, 3, v6')
    A('v_add_u32 v9, v9, v10')
    A('v_cmp_gt_u32 vcc, 2, v6')
    A('s_mov_b64 s[48:49], vcc')
    A('s_mov_b32 s66, 0x00ff00ff')
    A('s_mov_b32 s67, 0x00ff00ff')
    A('s_mov_b32 s46, 0x00ff00ff')
    A('s_mov_b32 s47, 0')
    for a in range(3):
        A(f's_add_u32 s50, s51, {a}')
        A('s_lshr_b32 s52, s50, 1')
        A('s_lshl_b32 s52, s52, 10')
        A('s_and_b32 s50, s50, 1')
        A('s_lshl_b32 s50, s50, 3')
        A(f's_add_u32 s{53+a}, s50, s52')
    A('v_add_u32 v5, s53, v7')
    A('v_add_u32 v6, s54, v7')
    A('v_add_u32 v7, s55, v7')
    A(f's_mul_i32 s24, s20, 3072')
    A('v_add_u32 v10, s24, v2')
    A(f's_mov_b32 s58, {SCALE}')
    A(f's_mov_b32 s56, {LOG2E}')
    def kf_prefetch(sreg):
        A(f's_mul_i32 s45, s{sreg}, {2*192*1024}')
        A(f's_mul_i32 s50, s2, {6*1024}')
        A('s_add_u32 s45, s45, s50')
        A(f's_add_u32 s45, s45, {WS["KF"]}')
        A('s_add_u32 s45, s45, s57')
        for a in range(3):
            A(f'buffer_load_dwordx4 v[{KFR+a*4}:{KFR+a*4+3}], v2, s[4:7], s45 offen offset:{a*1024}')
    A('s_cmp_ge_u32 s20, 2')
    A(f's_cselect_b32 s57, {192*1024 - 6*1024}, 0')
    A('s_mul_i32 s24, s20, 3072')
    A('s_add_u32 s57, s57, s24')
    A('v_lshlrev_b32 v1, 3, v1')
    flag_issue(A, 40)
    A('s_waitcnt vmcnt(0)')
    flag_check(A, 's1i')
    kf_prefetch(40)
    A('s_mov_b32 s59, 0')
    A.label('L_s1_loop')
    tstep(A)
    for r in range(24): A(f'v_mov_b32 v{ACC+r}, 0')
    for r in range(20, 24): A(f'v_mov_b32 v{r}, 0')
    def kfw():
        for a in range(3):
            A(f'ds_write_b128 v10, v[{KFR+a*4}:{KFR+a*4+3}] offset:{KFL + a*1024}')
    A('s_add_u32 s50, s40, 1')
    A('s_min_u32 s52, s50, 63')
    A('s_lshr_b32 s45, s52, 2')
    A('s_lshl_b32 s45, s45, 9')
    A(f's_add_u32 s68, s45, {TF}')
    A('buffer_load_dwordx2 v[76:77], v1, s[4:7], s68 offen sc1')
    def kfw2():
        kfw()
        A('v_and_b32 v76, v76, v77')
        A('v_cmp_ne_u32 vcc, 1, v76')
        A('s_mov_b64 s[70:71], vcc')
    gather_mem(A, 's1', 40, extra=kfw2)
    stamp(A, 2)
    L = Lgkm(A)
    def rdA(c):
        b = A9 if c == 9 else AR + (c % 4) * 4
        L.issue(('A', c), f'ds_read_b128 v[{b}:{b+3}], v2 offset:{MEMLDS + c*1024}')
    def rdW(t):
        b = WT + (t % 2) * 8
        L.issue(('W', t, 0), f'ds_read_b128 v[{b}:{b+3}], v0 offset:{WL + t*2048}')
        L.issue(('W', t, 1), f'ds_read_b128 v[{b+4}:{b+7}], v0 offset:{WL + t*2048 + 1024}')
    rdA(0); rdA(1); rdA(9); rdW(0); rdA(2); rdW(1)
    for c in range(9):
        if c + 3 < 9: rdA(c + 3)
        L.need(('A', c))
        b = AR + (c % 4) * 4
        for t in range(6):
            d = ACC + t * 4
            A(f'v_smfmac_f32_16x16x64_bf16 v[{d}:{d+3}], v[{b}:{b+3}], {reg(wreg(c,t),8)}, v3')
        if c < 6:
            L.need(('A', 9)); L.need(('W', c, 1))
            d = ACC + c * 4
            w = WT + (c % 2) * 8
            A(f'v_smfmac_f32_16x16x64_bf16 v[{d}:{d+3}], v[{A9}:{A9+3}], v[{w}:{w+7}], v3')
            if c + 2 < 6: rdW(c + 2)
    A('s_nop 7')
    A('s_nop 3')
    stamp(A, 3)
    for t in range(6):
        d = ACC + t * 4
        A(f'v_permlane32_swap_b32 v{d}, v{d+1}')
        A(f'v_permlane32_swap_b32 v{d+2}, v{d+3}')
    A('s_nop 0')
    for t in range(6):
        d = ACC + t * 4
        A(f'v_add_f32 v{d}, v{d}, v{d+1}')
        A(f'v_add_f32 v{d+2}, v{d+2}, v{d+3}')
        A(f'v_cvt_pk_bf16_f32 v{d}, v{d}, v{d+2}')
        base = QT if t < 3 else KT
        A(f'ds_write_b16 v{5 + t % 3}, v{d} offset:{base}')
        A(f'ds_write_b16_d16_hi v{5 + t % 3}, v{d} offset:{base + 128}')
    A(f's_mul_i32 s45, s40, {PS}')
    A('s_mul_i32 s50, s2, 640')
    A('s_add_u32 s45, s45, s50')
    A(f's_add_u32 s45, s45, {WS["PB"]}')
    A('s_waitcnt lgkmcnt(0)')
    stamp(A, 4)
    A('s_barrier')
    stamp(A, 5)
    A('s_cmp_lg_u32 s20, 0')
    A('s_cbranch_scc1 L_s1_nopub')
    SA = 12
    L = Lgkm(A)
    def rdS(ks):
        b = 24 + (ks % 3) * 16
        L.issue(('q', ks), f'ds_read_b128 v[{b}:{b+3}], v11 offset:{QT + ks*1024}')
        L.issue(('k', ks), f'ds_read_b128 v[{b+4}:{b+7}], v11 offset:{KT + ks*1024}')
        L.issue(('f0', ks), f'ds_read_b128 v[{b+8}:{b+11}], v2 offset:{KFL + ks*1024}')
        L.issue(('f1', ks), f'ds_read_b128 v[{b+12}:{b+15}], v2 offset:{KFL + (6+ks)*1024}')
    rdS(0); rdS(1); rdS(2)
    for ks in range(6):
        b = 24 + (ks % 3) * 16
        for st, tg in enumerate(('k', 'f0', 'f1')):
            L.need((tg, ks))
            d = SA + st * 4
            c = '0' if ks == 0 else f'v[{d}:{d+3}]'
            A(f'v_mfma_f32_16x16x32_bf16 v[{d}:{d+3}], v[{b+4+4*st}:{b+7+4*st}], v[{b}:{b+3}], {c}')
        if ks + 3 < 6: rdS(ks + 3)
    A('s_nop 7')
    A('v_mov_b32 v36, s58')
    A('v_mov_b32 v37, s58')
    A('v_mov_b32 v38, s56')
    A('v_mov_b32 v39, s56')
    vals = list(range(SA, SA + 12))
    A('v_mov_b32 v25, 0xff800000')
    A(f'v_max3_f32 v26, v{vals[0]}, v{vals[1]}, v{vals[2]}')
    A(f'v_max3_f32 v27, v{vals[4]}, v{vals[5]}, v{vals[6]}')
    A(f'v_max_f32 v26, v26, v{vals[3]}')
    A(f'v_max3_f32 v27, v27, v{vals[7]}, v{vals[8]}')
    A('v_cndmask_b32 v26, v25, v26, s[48:49]')
    A(f'v_max3_f32 v27, v27, v{vals[9]}, v{vals[10]}')
    A(f'v_max3_f32 v26, v26, v27, v{vals[11]}')
    for i in range(0, 12, 2):
        A(f'v_cvt_pk_bf16_f32 v{28+i//2}, v{vals[i]}, v{vals[i+1]}')
    A('v_mov_b32 v27, v26')
    for i in range(0, 12, 2):
        A(f'v_lshlrev_b32 v{vals[i]}, 16, v{28+i//2}')
        A(f'v_and_b32 v{vals[i+1]}, 0xffff0000, v{28+i//2}')
    A('v_permlane16_swap_b32 v26, v27')
    for i in range(0, 12, 2):
        A(f'v_pk_mul_f32 v[{vals[i]}:{vals[i+1]}], v[{vals[i]}:{vals[i+1]}], v[36:37]')
    A('v_max_f32 v26, v26, v27')
    for i in range(0, 12, 2):
        A(f'v_cvt_pk_bf16_f32 v{28+i//2}, v{vals[i]}, v{vals[i+1]}')
    A('v_mov_b32 v27, v26')
    for i in range(0, 6, 2):
        A(f'v_lshlrev_b32 v{vals[i]}, 16, v{28+i//2}')
        A(f'v_and_b32 v{vals[i+1]}, 0xffff0000, v{28+i//2}')
    A('v_permlane32_swap_b32 v26, v27')
    for i in range(6, 12, 2):
        A(f'v_lshlrev_b32 v{vals[i]}, 16, v{28+i//2}')
        A(f'v_and_b32 v{vals[i+1]}, 0xffff0000, v{28+i//2}')
    A('v_max_f32 v26, v26, v27')
    A('v_cvt_pk_bf16_f32 v27, v26, v26')
    A('v_lshlrev_b32 v26, 16, v27')
    A('v_mul_f32 v26, s58, v26')
    A('v_cvt_pk_bf16_f32 v27, v26, v26')
    A('v_lshlrev_b32 v26, 16, v27')
    A('v_mul_f32 v26, s56, v26')
    A('v_xor_b32 v26, 0x80000000, v26')
    A('v_mov_b32 v27, v26')
    for i in range(0, 12, 2):
        A(f'v_pk_fma_f32 v[{vals[i]}:{vals[i+1]}], v[{vals[i]}:{vals[i+1]}], v[38:39], v[26:27]')
    for v in vals:
        A(f'v_exp_f32 v{v}, v{v}')
    A('s_nop 0')
    for r in range(4):
        A(f'v_cndmask_b32 v{vals[r]}, 0, v{vals[r]}, s[48:49]')
    A(f'v_pk_add_f32 v[26:27], v[{vals[4]}:{vals[5]}], v[{vals[6]}:{vals[7]}]')
    A(f'v_pk_add_f32 v[34:35], v[{vals[8]}:{vals[9]}], v[{vals[10]}:{vals[11]}]')
    A(f'v_pk_add_f32 v[26:27], v[26:27], v[{vals[0]}:{vals[1]}]')
    A(f'v_pk_add_f32 v[34:35], v[34:35], v[{vals[2]}:{vals[3]}]')
    A('v_pk_add_f32 v[26:27], v[26:27], v[34:35]')
    A('v_add_f32 v26, v26, v27')
    xred1632(A, 'v_add_f32', 26, 27)
    A('v_rcp_f32 v26, v26')
    A('s_nop 0')
    A('v_mov_b32 v27, v26')
    for i in range(0, 12, 2):
        A(f'v_pk_mul_f32 v[{vals[i]}:{vals[i+1]}], v[{vals[i]}:{vals[i+1]}], v[26:27]')
    for i in range(6):
        src = vals[4 + 2 * i] if i < 4 else vals[2 * (i - 4)]
        A(f'v_cvt_pk_bf16_f32 v{28+i}, v{src}, v{src+1}')
    A('s_mov_b64 exec, s[66:67]')
    A('buffer_store_dwordx4 v[28:31], v8, s[4:7], s45 offen sc1')
    A('s_mov_b64 exec, s[46:47]')
    A('buffer_store_dwordx2 v[32:33], v9, s[4:7], s45 offen sc1')
    A('s_mov_b64 exec, -1')
    A('s_branch L_s1_pubd')
    A.label('L_s1_nopub')
    A('s_sub_u32 s50, s20, 1')
    A('s_lshl_b32 s50, s50, 11')
    A('v_add_u32 v24, s50, v11')
    A(f'ds_read_b128 v[28:31], v24 offset:{KT}')
    A(f'ds_read_b128 v[32:35], v24 offset:{KT + 1024}')
    A('v_add_u32 v24, s50, v2')
    A('s_lshl_b32 s45, s40, 5')
    A('s_add_u32 s45, s45, s2')
    A(f's_mul_i32 s45, s45, {6*1024}')
    A(f's_add_u32 s45, s45, {WS["KMF"]}')
    A('s_waitcnt lgkmcnt(0)')
    A('buffer_store_dwordx4 v[28:31], v24, s[4:7], s45 offen sc1')
    A('buffer_store_dwordx4 v[32:35], v24, s[4:7], s45 offen offset:1024 sc1')
    A('s_lshl_b32 s59, s40, 9')
    A('s_lshl_b32 s50, s2, 4')
    A('s_add_u32 s59, s59, s50')
    A('s_lshl_b32 s50, s20, 2')
    A('s_add_u32 s59, s59, s50')
    A(f's_add_u32 s59, s59, {WS["TF3"]}')
    A.label('L_s1_pubd')
    stamp(A, 6)
    A('s_cmp_eq_u64 s[70:71], 0')
    A('s_cbranch_scc1 L_s1_flgood')
    A('buffer_load_dwordx2 v[20:21], v1, s[4:7], s68 offen sc1')
    A('s_waitcnt vmcnt(0)')
    flag_check(A, 's1l')
    A.label('L_s1_flgood')
    A('s_add_u32 s50, s40, 1')
    A('s_min_u32 s52, s50, 63')
    kf_prefetch(52)
    stamp_flush(A, 8, 's1')
    A('s_add_u32 s40, s40, 1')
    A('s_cmp_lt_u32 s40, 64')
    A('s_cbranch_scc1 L_s1_loop')
    tstep(A)
    A('s_waitcnt vmcnt(0)')
    kflag(A, 'b')
    A('s_endpgm')

def gen_s2(A):
    PT, PM, VT, MOP, ACCM, ACC, VMOP, PK = 24, 56, 64, 96, 112, 128, 132, 140
    def wreg(ks, pp):
        f = ks * 4 + pp
        return (192 + f * 4) if f < 16 else (256 + (f - 16) * 4)
    wait_row(A, 's2w0', 17)
    wait_row(A, 's2w1', 18)
    for r in range(20, 24):
        A(f'v_mov_b32 v{r}, 0')
    A('s_sub_u32 s21, s2, 32')
    A('s_lshr_b32 s22, s21, 1')
    A('s_and_b32 s23, s21, 1')
    A('v_and_b32 v5, 15, v1')
    A('v_lshrrev_b32 v6, 4, v1')
    A('v_and_b32 v7, 7, v1')
    A('v_lshrrev_b32 v8, 3, v5')
    A('s_lshl_b32 s24, s23, 3')
    A('v_lshlrev_b32 v9, 4, v6')
    A('v_add_u32 v9, v9, v7')
    A('v_add_u32 v9, s24, v9')
    A('v_lshlrev_b32 v9, 4, v9')
    A(f'v_mul_u32_u24 v10, {40*1024}, v8')
    A('v_add_u32 v9, v9, v10')
    A('s_lshl_b32 s24, s20, 3')
    A('s_mul_i32 s24, s24, 40')
    A('s_add_u32 s24, s24, s22')
    A('s_lshl_b32 s24, s24, 10')
    A(f's_add_u32 s24, s24, {WS["WVOF"]}')
    for ks in range(20):
        for pp in range(4):
            r = wreg(ks, pp)
            A(f's_add_u32 s25, s24, {(ks*32 + 2*pp)*40*1024}')
            A(f'buffer_load_dwordx4 {reg(r,4)}, v9, s[4:7], s25 offen')
    A('v_lshrrev_b32 v9, 1, v6')
    A('v_lshlrev_b32 v9, 7, v9')
    A('v_lshlrev_b32 v10, 4, v7')
    A('v_add_u32 v9, v9, v10')
    A('v_and_b32 v10, 1, v6')
    A('v_lshlrev_b32 v10, 3, v10')
    A('v_add_u32 v9, v9, v10')
    MB = [9, 148, 149, 150, 151]
    for j in range(1, 5):
        A(f'v_add_u32 v{MB[j]}, {2048*j}, v9')
    A('v_lshlrev_b32 v10, 8, v8')
    A('s_lshl_b32 s24, s23, 3')
    A('v_add_u32 v11, s24, v7')
    A('v_lshlrev_b32 v11, 4, v11')
    A('v_add_u32 v10, v10, v11')
    A('v_lshlrev_b32 v11, 3, v6')
    A('v_add_u32 v10, v10, v11')
    A('s_lshl_b32 s24, s20, 11')
    A(f's_add_u32 s24, s24, {TL}')
    A('v_add_u32 v11, s24, v10')
    A('v_add_u32 v152, s24, v2')
    A('v_lshlrev_b32 v153, 4, v7')
    A('v_lshlrev_b32 v154, 7, v6')
    A('v_add_u32 v154, v154, v153')
    A('v_mul_u32_u24 v155, 640, v6')
    A('v_add_u32 v155, v155, v153')
    A('s_mov_b32 s66, 0x00ff00ff')
    A('s_mov_b32 s67, 0x00ff00ff')
    for r in range(PT, PT + 40): A(f'v_mov_b32 v{r}, 0')
    A('s_lshl_b32 s24, s20, 10')
    A('v_add_u32 v156, s24, v2')
    A('v_and_b32 v157, 1, v8')
    A('s_lshl_b32 s24, s23, 1')
    A('v_add_u32 v158, s24, v157')
    A('v_lshlrev_b32 v158, 4, v158')
    A('v_add_u32 v158, v158, v7')
    A('v_lshlrev_b32 v158, 4, v158')
    A('s_lshr_b32 s24, s22, 1')
    A('s_lshl_b32 s24, s24, 9')
    A('s_and_b32 s25, s22, 1')
    A('s_lshl_b32 s25, s25, 1')
    A('s_add_u32 s25, s25, s23')
    A('s_lshl_b32 s25, s25, 7')
    A('s_add_u32 s24, s24, s25')
    A('v_lshlrev_b32 v159, 4, v7')
    A('v_lshlrev_b32 v157, 3, v157')
    A('v_add_u32 v159, v159, v157')
    A('v_add_u32 v159, s24, v159')
    for r in range(4): A(f'v_mov_b32 v{PK+r}, 0')
    A(f'ds_write_b128 v152, v[{PK}:{PK+3}]')
    A(f'ds_write_b128 v152, v[{PK}:{PK+3}] offset:1024')
    def vt_prefetch(sreg):
        A(f's_lshl_b32 s45, s{sreg}, 5')
        A('s_lshl_b32 s50, s20, 3')
        A('s_add_u32 s45, s45, s50')
        A('s_mul_i32 s45, s45, 40')
        A('s_add_u32 s45, s45, s22')
        A('s_lshl_b32 s45, s45, 10')
        A(f's_add_u32 s45, s45, {WS["VOF"]}')
        for hh in range(8):
            A(f'buffer_load_dwordx4 v[{VT+hh*4}:{VT+hh*4+3}], v2, s[4:7], s45 offen')
            if hh < 7: A(f's_add_u32 s45, s45, {40*1024}')
    A('v_and_b32 v3, 31, v1')
    A('v_lshlrev_b32 v3, 2, v3')
    A('s_lshl_b32 s24, s20, 7')
    A('s_add_u32 s24, s24, 32768')
    A('v_add_u32 v3, s24, v3')
    A('v_lshlrev_b32 v1, 3, v1')
    flag_issue(A, 40)
    A('s_waitcnt vmcnt(0)')
    flag_check(A, 's2i')
    vt_prefetch(40)
    A('s_waitcnt vmcnt(0) lgkmcnt(0)')
    A.label('L_s2_loop')
    gather_mem(A, 's2', 40)
    stamp(A, 2)
    A('s_add_u32 s50, s40, 1')
    A('s_min_u32 s52, s50, 63')
    flag_issue(A, 52)
    L = Lgkm(A)
    def rd(ks):
        b = MOP + (ks % 4) * 4
        L.issue(ks, f'ds_read2_b64 v[{b}:{b+3}], v{MB[ks//4]} offset0:{(ks%4)*64} offset1:{(ks%4)*64+32}')
    for ks in range(3): rd(ks)
    for ks in range(20):
        if ks + 3 < 20: rd(ks + 3)
        L.need(ks)
        b = MOP + (ks % 4) * 4
        for pp in range(4):
            d = ACCM + pp * 4
            c = '0' if ks == 0 else f'v[{d}:{d+3}]'
            A(f'v_mfma_f32_16x16x32_bf16 v[{d}:{d+3}], v[{b}:{b+3}], {reg(wreg(ks,pp),4)}, {c}')
    A('s_nop 7')
    A('s_nop 3')
    A('s_lshl_b32 s45, s40, 3')
    A('s_lshl_b32 s50, s20, 1')
    A('s_add_u32 s45, s45, s50')
    A('s_mul_i32 s45, s45, 40')
    A('s_add_u32 s45, s45, s22')
    A('s_lshl_b32 s45, s45, 10')
    A(f's_add_u32 s45, s45, {WS["VOMF"]}')
    A(f's_add_u32 s50, s45, {40*1024}')
    for pp in range(4):
        d = ACCM + pp * 4
        A(f'v_cvt_pk_bf16_f32 v{PK+2*pp}, v{d}, v{d+1}')
        A(f'v_cvt_pk_bf16_f32 v{PK+2*pp+1}, v{d+2}, v{d+3}')
    A('s_mov_b64 exec, s[60:61]')
    for pp in range(4):
        A(f'ds_write_b64 v11, v[{PK+2*pp}:{PK+2*pp+1}] offset:{(pp>>1)*1024 + (pp&1)*512}')
        A(f'buffer_store_dwordx2 v[{PK+2*pp}:{PK+2*pp+1}], v10, s[4:7], s{45 if pp < 2 else 50} offen offset:{(pp&1)*512} sc1')
    A('s_mov_b64 exec, -1')
    A(f'ds_read_b128 v[{VMOP}:{VMOP+3}], v152')
    A(f'ds_read_b128 v[{VMOP+4}:{VMOP+7}], v152 offset:1024')
    A(f's_mul_i32 s45, s40, {PS}')
    A(f's_add_u32 s45, s45, {WS["PB"]}')
    A('s_mul_i32 s50, s20, 5120')
    A('s_add_u32 s45, s45, s50')
    A(f's_add_u32 s50, s45, 2560')
    stamp(A, 3)
    delay(A, 'pd0', D['d0p'])
    A('s_mov_b32 s42, 0')
    A.label('L_s2_ppoll')
    A('s_mov_b64 exec, s[66:67]')
    for hh in range(8):
        A(f'buffer_load_dwordx4 v[{PT+hh*4}:{PT+hh*4+3}], v154, s[4:7], s{45 if hh < 4 else 50} offen offset:{128 + (hh&3)*640} sc1')
    for hg in range(2):
        A(f'buffer_load_dwordx4 v[{PM+hg*4}:{PM+hg*4+3}], v155, s[4:7], s{45 if hg == 0 else 50} offen sc1')
    A('s_mov_b64 exec, -1')
    A('s_waitcnt vmcnt(0)')
    regs = list(range(PT, PT + 40))
    A(f'v_max3_u32 v12, v{regs[0]}, v{regs[1]}, v{regs[2]}')
    A(f'v_max3_u32 v13, v{regs[3]}, v{regs[4]}, v{regs[5]}')
    k = 6; tgl = 0
    while k + 1 < 40:
        A(f'v_max3_u32 v{12+tgl}, v{12+tgl}, v{regs[k]}, v{regs[k+1]}')
        k += 2; tgl ^= 1
    A('v_max_u32 v12, v12, v13')
    A('v_cmp_eq_u32 vcc, -1, v12')
    A('s_cbranch_vccz L_s2_pok')
    A('s_add_u32 s42, s42, 1')
    A('s_cmp_lt_u32 s42, s44')
    A('s_cbranch_scc1 L_s2_ppoll')
    A('s_mov_b32 s44, 0')
    A.label('L_s2_pok')
    stamp(A, 4)
    if PROF in (1, 2): A('s_mov_b32 s80, s42')
    A('s_waitcnt lgkmcnt(0)')
    for hh in range(8):
        d = ACC if hh % 2 == 0 else ACCM
        c = '0' if hh < 2 else f'v[{d}:{d+3}]'
        A(f'v_mfma_f32_16x16x32_bf16 v[{d}:{d+3}], v[{VT+hh*4}:{VT+hh*4+3}], v[{PT+hh*4}:{PT+hh*4+3}], {c}')
    for hg in range(2):
        d = ACC if hg == 0 else ACCM
        A(f'v_mfma_f32_16x16x32_bf16 v[{d}:{d+3}], v[{VMOP+hg*4}:{VMOP+hg*4+3}], v[{PM+hg*4}:{PM+hg*4+3}], v[{d}:{d+3}]')
    A('s_nop 7')
    A('s_nop 3')
    for r in range(4):
        A(f'v_add_f32 v{ACC+r}, v{ACC+r}, v{ACCM+r}')
    A(f'ds_write_b128 v156, v[{ACC}:{ACC+3}] offset:{RED}')
    flag_check(A, 's2l')
    A('s_add_u32 s50, s40, 1')
    A('s_min_u32 s52, s50, 63')
    vt_prefetch(52)
    A('s_waitcnt lgkmcnt(0)')
    stamp(A, 5)
    A('s_barrier')
    A('s_cmp_lg_u32 s20, 0')
    A('s_cbranch_scc1 L_s2_next')
    for w in range(4):
        A(f'ds_read_b128 v[{24+4*w}:{27+4*w}], v158 offset:{RED + w*1024}')
    A('s_waitcnt lgkmcnt(2)')
    for r in range(4): A(f'v_add_f32 v{24+r}, v{24+r}, v{28+r}')
    A('s_waitcnt lgkmcnt(0)')
    for r in range(4): A(f'v_add_f32 v{32+r}, v{32+r}, v{36+r}')
    for r in range(4): A(f'v_add_f32 v{24+r}, v{24+r}, v{32+r}')
    A('v_cvt_pk_bf16_f32 v24, v24, v25')
    A('v_cvt_pk_bf16_f32 v25, v26, v27')
    A('v_min_u32 v24, 0xfffffffe, v24')
    A('v_min_u32 v25, 0xfffffffe, v25')
    A('s_add_u32 s45, s40, 1')
    A(f's_mul_i32 s45, s45, {MS}')
    A(f's_add_u32 s45, s45, {WS["MEMB"]}')
    A('s_mov_b64 exec, s[62:63]')
    A('buffer_store_dwordx2 v[24:25], v159, s[4:7], s45 offen sc1')
    A('s_mov_b64 exec, -1')
    A.label('L_s2_next')
    stamp(A, 6)
    stamp_flush(A, 9, 's2')
    A('s_add_u32 s40, s40, 1')
    A('s_cmp_lt_u32 s40, 64')
    A('s_cbranch_scc1 L_s2_loop')
    A('s_endpgm')
```

```python
import re
from asmlib import *
from layout import WS
from k_gemm import wave_ids, offs

TF = WS['FLAGS'] + 32768
NWORK = 144
NTASK = 1280

def gemm_deep(A, RA, RB, NKS, NST, vA, vB, strA, strB, acc, fbase, sk=28):
    R = RA + RB
    def fr(st, i): return fbase + (st * R + i) * 4
    def loads(k):
        st = k % NST
        A(f's_mov_b32 s{sk}, {k*strA}')
        if strB != strA: A(f's_mov_b32 s{sk+1}, {k*strB}')
        for i in range(RA):
            b = fr(st, i)
            A(f'buffer_load_dwordx4 a[{b}:{b+3}], v{vA+i}, s[4:7], s{sk} offen')
        for j in range(RB):
            b = fr(st, RA + j)
            A(f'buffer_load_dwordx4 a[{b}:{b+3}], v{vB+j}, s[4:7], s{sk + (1 if strB != strA else 0)} offen')
    for k in range(min(NST - 1, NKS)): loads(k)
    for k in range(NKS):
        if k + NST - 1 < NKS: loads(k + NST - 1)
        y = min(NST - 1, NKS - 1 - k)
        A(f's_waitcnt vmcnt({R*y})')
        st = k % NST
        for i in range(RA):
            for j in range(RB):
                a = fr(st, i); b = fr(st, RA + j)
                d = acc + (i * RB + j) * 4
                c = '0' if k == 0 else f'v[{d}:{d+3}]'
                A(f'v_mfma_f32_16x16x32_bf16 v[{d}:{d+3}], a[{a}:{a+3}], a[{b}:{b+3}], {c}')
    A('s_nop 7')
    A('s_nop 7')

def qk_task(A):
    A('s_and_b32 s23, s20, 1')
    A('s_lshr_b32 s24, s20, 1')
    assert WS['WkF'] == WS['WqF'] + 384 * 20 * 1024
    assert WS['KF'] == WS['QF'] + 128 * 192 * 1024
    A('s_lshl_b32 s25, s22, 4')
    A('s_lshl_b32 s26, s24, 3')
    A('s_add_u32 s25, s25, s26')
    A('s_lshl_b32 s26, s21, 3')
    A('s_lshl_b32 s27, s23, 2')
    A('s_add_u32 s26, s26, s27')
    RA, RB = 8, 4
    VA, VB = 4, 12
    A(f's_mul_i32 s27, s25, {20*1024}')
    A(f's_add_u32 s27, s27, {WS["WqF"]}')
    offs(A, VA, RA, 27, 20 * 1024)
    A(f's_mul_i32 s27, s26, {20*1024}')
    A(f's_add_u32 s27, s27, {WS["H1F"]}')
    offs(A, VB, RB, 27, 20 * 1024)
    ACC, T = 16, 144
    gemm_deep(A, RA, RB, 20, 5, VA, VB, 1024, 1024, ACC, 0)
    A('s_cmp_ge_u32 s25, 384')
    A('s_cselect_b32 s30, 384, 0')
    A(f's_cselect_b32 s32, {128*192*1024}, 0')
    A('s_sub_u32 s30, s25, s30')
    A('s_lshr_b32 s30, s30, 1')
    A(f's_add_u32 s32, s32, {WS["QF"]}')
    A('s_mul_i32 s31, s26, 192')
    A('s_add_u32 s31, s31, s30')
    A('s_lshl_b32 s31, s31, 10')
    A('s_add_u32 s32, s32, s31')
    for j in range(RB):
        for ip in range(RA // 2):
            a = ACC + ((2 * ip) * RB + j) * 4
            b = ACC + ((2 * ip + 1) * RB + j) * 4
            t = T + ((j * (RA // 2) + ip) % 16) * 4
            A(f'v_cvt_pk_bf16_f32 v{t}, v{a}, v{a+1}')
            A(f'v_cvt_pk_bf16_f32 v{t+1}, v{a+2}, v{a+3}')
            A(f'v_cvt_pk_bf16_f32 v{t+2}, v{b}, v{b+1}')
            A(f'v_cvt_pk_bf16_f32 v{t+3}, v{b+2}, v{b+3}')
            A(f's_add_u32 s31, s32, {(j*192 + ip)*1024}')
            A(f'buffer_store_dwordx4 v[{t}:{t+3}], v2, s[4:7], s31 offen sc1')

def vo_task(A, ident, sc='sc1', wv='s[8:11]', tag='vo'):
    VA, VB, ACC, VOP = 4, 10, 20, 132
    if not ident:
        A('s_and_b32 s24, s20, 1')
        A('s_lshr_b32 s25, s20, 1')
        A('s_mul_i32 s27, s22, 12')
        A('s_mul_i32 s26, s24, 6')
        A('s_add_u32 s27, s27, s26')
        A(f's_mul_i32 s27, s27, {20*1024}')
        A(f's_add_u32 s27, s27, {WS["WvF"]}')
        offs(A, VA, 6, 27, 20 * 1024)
        A('s_lshl_b32 s27, s23, 1')
        A('s_lshl_b32 s26, s25, 2')
        A('s_add_u32 s27, s27, s26')
        A(f's_mul_i32 s27, s27, {20*1024}')
        A(f's_add_u32 s27, s27, {WS["H1F"]}')
        offs(A, VB, 4, 27, 20 * 1024)
        gemm_deep(A, 6, 4, 20, 6, VA, VB, 1024, 1024, ACC, 0)
        fr = []
        for j in range(4):
            for ks in range(3):
                a = ACC + ((2 * ks) * 4 + j) * 4
                b = ACC + ((2 * ks + 1) * 4 + j) * 4
                t = VOP + (j * 3 + ks) * 4
                A(f'v_cvt_pk_bf16_f32 v{t}, v{a}, v{a+1}')
                A(f'v_cvt_pk_bf16_f32 v{t+1}, v{a+2}, v{a+3}')
                A(f'v_cvt_pk_bf16_f32 v{t+2}, v{b}, v{b+1}')
                A(f'v_cvt_pk_bf16_f32 v{t+3}, v{b+2}, v{b+3}')
                fr.append((t, (j * 6 + ks) * 1024))
        A('s_mul_i32 s26, s25, 24')
        A('s_mul_i32 s27, s24, 3')
        A('s_add_u32 s26, s26, s27')
        A('s_lshl_b32 s26, s26, 10')
        A('v_add_u32 v4, s26, v2')
    else:
        A('s_sub_u32 s27, s23, 64')
        A('s_add_u32 s27, s27, s20')
        A(f's_mul_i32 s27, s27, {32*12288}')
        A(f's_mul_i32 s28, s22, 384')
        A('s_add_u32 s27, s27, s28')
        A('v_and_b32 v4, 15, v1')
        A('v_lshrrev_b32 v5, 4, v1')
        A('v_mul_u32_u24 v4, 12288, v4')
        A('v_lshlrev_b32 v5, 3, v5')
        A('v_add_u32 v4, v4, v5')
        fr = []
        for j in range(2):
            for ks in range(6):
                t = VOP + (j * 6 + ks) * 4
                A(f'buffer_load_dwordx2 v[{t}:{t+1}], v4, {wv}, s27 offen offset:{ks*64}')
                A(f'buffer_load_dwordx2 v[{t+2}:{t+3}], v4, {wv}, s27 offen offset:{ks*64+32}')
                fr.append((t, (j * 6 + ks) * 1024))
            if j == 0:
                A(f's_add_u32 s27, s27, {16*12288}')
        A('s_mul_i32 s26, s20, 12288')
        A('v_add_u32 v4, s26, v2')
        A('s_waitcnt vmcnt(0)')
    for t, o in fr:
        A(f'ds_write_b128 v4, v[{t}:{t+3}] offset:{o}')
    A('s_mul_i32 s27, s22, 40')
    A('s_mul_i32 s26, s20, 10')
    A('s_add_u32 s27, s27, s26')
    A(f's_mul_i32 s27, s27, {6*1024}')
    A(f's_add_u32 s27, s27, {WS["WoF"]}')
    A('s_lshl_b32 s28, s23, 5')
    A('s_add_u32 s28, s28, s22')
    A('s_mul_i32 s28, s28, 40')
    A('s_add_u32 s28, s28, s26')
    A('s_lshl_b32 s28, s28, 10')
    A(f's_add_u32 s28, s28, {WS["VOF"]}')
    assert WS['WVOF'] == WS['VOF'] + 64 * 32 * 40 * 1024
    SL = [20, 44, 68, 92, 180, 204, 228]
    NST = 7
    AC = 116
    OUT = 132
    A('v_add_u32 v3, 4096, v2')
    def ld(ct):
        for ks in range(6):
            b = SL[ct % NST] + ks * 4
            A(f'buffer_load_dwordx4 v[{b}:{b+3}], v{2 if ks < 4 else 3}, s[4:7], s27 offen offset:{(ks%4)*1024}')
        A(f's_add_u32 s27, s27, {6*1024}')
    for ct in range(NST - 1): ld(ct)
    A('s_waitcnt lgkmcnt(0)')
    A('s_barrier')
    A('v_add_u32 v4, 16384, v2')
    A('v_add_u32 v5, 32768, v2')
    for f in range(48):
        A(f'ds_read_b128 a[{f*4}:{f*4+3}], v{[2,4,5][f//16]} offset:{(f%16)*1024}')
    A('s_waitcnt lgkmcnt(0)')
    def mm(u):
        ct, sg = u // 4, u % 4
        ac = AC + (u & 1) * 8
        for j in range(2):
            for ks in range(6):
                a = ((2 * sg + j) * 6 + ks) * 4
                b = SL[ct % NST] + ks * 4
                c = '0' if ks == 0 else f'v[{ac+4*j}:{ac+4*j+3}]'
                A(f'v_mfma_f32_16x16x32_bf16 v[{ac+4*j}:{ac+4*j+3}], a[{a}:{a+3}], v[{b}:{b+3}], {c}')
    def fin(u):
        ct, sg = u // 4, u % 4
        ac = AC + (u & 1) * 8
        o = OUT + (u & 3) * 4
        A(f'v_cvt_pk_bf16_f32 v{o}, v{ac}, v{ac+1}')
        A(f'v_cvt_pk_bf16_f32 v{o+1}, v{ac+2}, v{ac+3}')
        A(f'v_cvt_pk_bf16_f32 v{o+2}, v{ac+4}, v{ac+5}')
        A(f'v_cvt_pk_bf16_f32 v{o+3}, v{ac+6}, v{ac+7}')
        A(f's_add_u32 s29, s28, {(sg*32*40 + ct)*1024}')
        A(f'buffer_store_dwordx4 v[{o}:{o+3}], v2, s[4:7], s29 offen {sc}')
    for ct in range(10):
        if ct + NST - 1 < 10: ld(ct + NST - 1)
        y = min(NST - 1, 9 - ct)
        A(f's_waitcnt vmcnt({6*y})')
        for sg in range(4):
            u = ct * 4 + sg
            mm(u)
            if u > 0: fin(u - 1)
    A('s_nop 7')
    A('s_nop 7')
    fin(39)

def wait_row(A, tag, row):
    A('v_and_b32 v22, 63, v0')
    A('v_lshlrev_b32 v22, 3, v22')
    A(f's_mov_b32 s68, {TF + row*512}')
    A('s_mov_b32 s42, 0')
    A.label(f'L_{tag}_fl')
    A('buffer_load_dwordx2 v[20:21], v22, s[4:7], s68 offen sc1')
    A('s_waitcnt vmcnt(0)')
    A('v_and_b32 v20, v20, v21')
    A('v_cmp_ne_u32 vcc, 1, v20')
    A(f's_cbranch_vccz L_{tag}_flok')
    A('s_add_u32 s42, s42, 1')
    A('s_cmp_lt_u32 s42, s44')
    A(f's_cbranch_scc1 L_{tag}_fl')
    A('s_mov_b32 s44, 0')
    A.label(f'L_{tag}_flok')

def set_flag(A, tag, soff):
    A('s_waitcnt vmcnt(0)')
    A('s_barrier')
    A('s_cmp_lg_u32 s20, 0')
    A(f's_cbranch_scc1 L_{tag}_nofl')
    A(f's_add_u32 s{soff}, s{soff}, {TF}')
    A('v_mov_b32 v4, 1')
    A('v_mov_b32 v5, 0')
    A('s_mov_b64 exec, 1')
    A(f'buffer_store_dword v4, v5, s[4:7], s{soff} offen sc1')
    A('s_mov_b64 exec, -1')
    A.label(f'L_{tag}_nofl')

def gen_pre(A):
    from k_prep import gen_ln
    A('s_cmp_ge_u32 s2, 192')
    A('s_cbranch_scc1 L_pre_done')
    A('s_cmp_ge_u32 s2, 32')
    A('s_cbranch_scc1 L_pre_wvo')
    A('s_cmp_ge_u32 s2, 16')
    A('s_cbranch_scc1 L_pre_done')
    A('s_add_u32 s72, s2, 64')
    A('s_mov_b32 s69, 1')
    A('s_branch L_w_task')
    A.label('L_pre_wvo')
    A('s_sub_u32 s24, s2, 32')
    magic_div(A, 22, 24, 5)
    A('s_mul_i32 s21, s22, 5')
    A('s_sub_u32 s21, s24, s21')
    A('s_lshl_b32 s23, s21, 2')
    A('s_add_u32 s23, s23, 64')
    vo_task(A, True, wv='s[12:15]')
    A('s_sub_u32 s22, s2, 32')
    A('s_lshl_b32 s22, s22, 2')
    A(f's_add_u32 s22, s22, {17*512}')
    set_flag(A, 'prewvo', 22)
    A.label('L_pre_done')

def gen_worker(A):
    from k_ptask import post_init, post_init2, gen_post
    post_init(A)
    post_init2(A)
    A('s_mov_b32 s69, 0')
    A.label('L_w_next')
    A('s_cmp_lg_u32 s20, 0')
    A('s_cbranch_scc1 L_w_nq')
    A('v_mov_b32 v4, 1')
    A('v_mov_b32 v5, 0')
    A(f's_mov_b32 s22, {WS["TF2"] + 17408}')
    A('s_mov_b64 exec, 1')
    A('buffer_atomic_add v4, v5, s[4:7], s22 offen sc0')
    A('s_waitcnt vmcnt(0)')
    A(f'v_mov_b32 v5, {49152 + 64}')
    A('ds_write_b32 v5, v4')
    A('s_mov_b64 exec, -1')
    A('s_waitcnt lgkmcnt(0)')
    A.label('L_w_nq')
    A('s_barrier')
    A(f'v_mov_b32 v5, {49152 + 64}')
    A('ds_read_b32 v4, v5')
    A('s_waitcnt lgkmcnt(0)')
    A('v_readfirstlane_b32 s70, v4')
    A.label('L_w_loop')
    A(f's_cmp_ge_u32 s70, {NTASK-16}')
    A('s_cbranch_scc1 L_w_end')
    A('s_cmp_ge_u32 s70, 64')
    A('s_cselect_b32 s72, 16, 0')
    A('s_add_u32 s72, s72, s70')
    A.label('L_w_task')
    magic_div(A, 21, 72, 80)
    A('s_mul_i32 s22, s21, 80')
    A('s_sub_u32 s71, s72, s22')
    A('s_cmp_lt_u32 s71, 32')
    A('s_cbranch_scc1 L_w_vo')
    A('s_sub_u32 s22, s71, 32')
    qk_task(A)
    A('s_branch L_w_fin')
    A.label('L_w_vo')
    A('s_mov_b32 s22, s71')
    A('s_lshl_b32 s23, s21, 2')
    vo_task(A, False)
    A.label('L_w_fin')
    A('s_waitcnt vmcnt(0)')
    A('s_barrier')
    A('s_cmp_lg_u32 s20, 0')
    A('s_cbranch_scc1 L_w_nofl')
    A('s_lshl_b32 s22, s21, 9')
    A('s_lshl_b32 s23, s71, 2')
    A('s_add_u32 s22, s22, s23')
    A(f's_add_u32 s22, s22, {TF}')
    A('v_mov_b32 v4, 1')
    A('v_mov_b32 v5, 0')
    A('s_mov_b64 exec, 1')
    A('buffer_store_dword v4, v5, s[4:7], s22 offen sc1')
    A('s_mov_b64 exec, -1')
    import os
    if os.environ.get('PROF') == '3':
        A('s_memrealtime s[98:99]')
        A('s_waitcnt lgkmcnt(0)')
        A('v_mov_b32 v4, s98')
        A('s_lshl_b32 s22, s72, 2')
        A(f's_add_u32 s22, s22, {WS["FLAGS"] + 49152}')
        A('buffer_store_dword v4, v5, s[4:7], s22 offen')
    A.label('L_w_nofl')
    A('s_cmp_lg_u32 s69, 0')
    A('s_cbranch_scc1 L_pre_done')
    A('s_branch L_post_try')
    A.label('L_w_end')
    A('s_mov_b32 s76, 0')
    gen_post(A, 'L_w_next')
    A('s_endpgm')
```

```python
from asmlib import *
from layout import WS

NWG_MOD = 60
NWG_LN = 32
NWG_PREP = 452
NW = NWG_PREP * 4

def rne_bf16(A, v, tmp):
    A(f'v_cvt_pk_bf16_f32 v{tmp}, v{v}, v{v}')
    A(f'v_lshlrev_b32 v{v}, 16, v{tmp}')

def gen_prep(A):
    name = 'k_prep_kernel'
    kernel_header(A, name)
    A(f's_cmp_ge_u32 s2, {NWG_MOD + NWG_LN + NWG_PREP}')
    A('s_cbranch_scc1 L_prep_end')
    A(f's_cmp_lt_u32 s2, {NWG_MOD}')
    A('s_cbranch_scc1 L_mod')
    A(f's_cmp_lt_u32 s2, {NWG_MOD + NWG_LN}')
    A('s_cbranch_scc1 L_prep_ln')
    srds(A, [('ws', 4), ('Wq', 8), ('Wk', 12), ('Wv', 16), ('Wo', 20), ('w1', 24), ('w2', 28), ('mem0', 32)])
    A('v_lshrrev_b32 v1, 6, v0')
    A('v_and_b32 v2, 63, v0')
    A('s_nop 0')
    A('v_readfirstlane_b32 s40, v1')
    A(f's_sub_u32 s41, s2, {NWG_MOD + NWG_LN}')
    A('s_lshl_b32 s41, s41, 2')
    A('s_add_u32 s40, s40, s41')
    A('v_and_b32 v3, 15, v2')
    A('v_lshrrev_b32 v4, 4, v2')
    A('v_lshlrev_b32 v5, 4, v2')
    A('v_lshlrev_b32 v3, 1, v3')
    mats = [
        ('Wq', 8, 12288, 20, 96, 1, 0, 0, WS['WqF']),
        ('Wk', 12, 12288, 20, 96, 1, 0, 0, WS['WkF']),
        ('Wv', 16, 12288, 20, 96, 1, 0, 0, WS['WvF']),
        ('Wo', 20, 1280, 6, 10, 32, 192 * 1280, 1, WS['WoF']),
        ('w1', 24, 3072, 20, 24, 1, 0, 0, WS['W1F']),
        ('w2', 28, 1280, 48, 10, 1, 0, 1, WS['W2F']),
    ]
    for mi, (nm, srd, rs, nks, nnt4, ng, gs, perm, dst) in enumerate(mats):
        A(f's_mov_b32 s42, {rs}')
        for e in range(8):
            if not perm:
                A(f'v_lshlrev_b32 v6, 3, v4')
                A(f'v_add_u32 v6, {e}, v6')
            else:
                A(f'v_lshlrev_b32 v6, 2, v4')
                A(f'v_add_u32 v6, {e if e < 4 else 16 + e - 4}, v6')
            A(f'v_mul_lo_u32 v6, v6, s42')
            A(f'v_add_u32 v{8+e}, v6, v3')
        nq = nnt4 * nks * ng
        shift = (mi * 701) % NW
        A(f's_add_u32 s43, s40, {shift}')
        A(f's_cmp_ge_u32 s43, {NW}')
        A(f's_cselect_b32 s44, {NW}, 0')
        A(f's_sub_u32 s43, s43, s44')
        lp = f'L_prep_loop{mi}'
        le = f'L_prep_done{mi}'
        A.label(lp)
        A(f's_cmp_ge_u32 s43, {nq}')
        A(f's_cbranch_scc1 {le}')
        if ng > 1:
            magic_div(A, 45, 43, nnt4 * nks)
            A(f's_mul_i32 s46, s45, {nnt4*nks}')
            A('s_sub_u32 s46, s43, s46')
        else:
            A('s_mov_b32 s45, 0')
            A('s_mov_b32 s46, s43')
        magic_div(A, 47, 46, nks)
        A(f's_mul_i32 s48, s47, {nks}')
        A('s_sub_u32 s48, s46, s48')
        A(f's_mul_i32 s49, s45, {gs}')
        A(f's_mul_i32 s50, s48, {32*rs}')
        A('s_add_u32 s49, s49, s50')
        A('s_lshl_b32 s50, s47, 7')
        A('s_add_u32 s49, s49, s50')
        A(f's_mul_i32 s50, s45, {nnt4*4*nks}')
        A(f's_mul_i32 s51, s47, {4*nks}')
        A('s_add_u32 s50, s50, s51')
        A('s_add_u32 s50, s50, s48')
        A('s_lshl_b32 s50, s50, 10')
        A(f's_add_u32 s50, s50, {dst}')
        for j in range(4):
            for e in range(8):
                A(f'buffer_load_ushort v{32 + j*8 + e}, v{8+e}, s[{srd}:{srd+3}], s49 offen offset:{32*j}')
        A('s_waitcnt vmcnt(0)')
        for j in range(4):
            for e2 in range(4):
                A(f'v_lshl_or_b32 v{16 + j*4 + e2}, v{32 + j*8 + 2*e2 + 1}, 16, v{32 + j*8 + 2*e2}')
        for j in range(4):
            A(f'buffer_store_dwordx4 v[{16+j*4}:{19+j*4}], v5, s[4:7], s50 offen')
            if j < 3:
                A(f's_add_u32 s50, s50, {nks*1024}')
        A(f's_add_u32 s43, s43, {NW}')
        A(f's_branch {lp}')
        A.label(le)
    st = WS['MEMB'] + 10240
    en = WS['PB'] + 64 * 20480
    nchunks = (en - st) // 1024
    A('v_mov_b32 v16, -1')
    A('v_mov_b32 v17, -1')
    A('v_mov_b32 v18, -1')
    A('v_mov_b32 v19, -1')
    A('s_mov_b32 s43, s40')
    A.label('L_fill_loop')
    A(f's_cmp_ge_u32 s43, {nchunks}')
    A('s_cbranch_scc1 L_fill_done')
    A('s_lshl_b32 s50, s43, 10')
    A(f's_add_u32 s50, s50, {st}')
    A('buffer_store_dwordx4 v[16:19], v5, s[4:7], s50 offen')
    A(f's_add_u32 s43, s43, {NW}')
    A('s_branch L_fill_loop')
    A.label('L_fill_done')
    A('s_cmp_ge_u32 s40, 19')
    A('s_cbranch_scc1 L_tf_done')
    A('s_cmp_ge_u32 s40, 16')
    A('s_cselect_b32 s50, 16, 40')
    A('s_cmp_eq_u32 s40, 17')
    A('s_cselect_b32 s50, 64, s50')
    A('v_cmp_le_u32 vcc, s50, v2')
    A('v_cndmask_b32 v20, 0, 1, vcc')
    A('v_mov_b32 v21, v20')
    A('v_lshlrev_b32 v22, 3, v2')
    A('s_lshl_b32 s50, s40, 9')
    A(f's_add_u32 s50, s50, {WS["FLAGS"] + 32768}')
    A('buffer_store_dwordx2 v[20:21], v22, s[4:7], s50 offen')
    A.label('L_tf_done')
    A('s_sub_u32 s43, s40, 32')
    A('s_cmp_ge_u32 s43, 18')
    A('s_cbranch_scc1 L_tf2_done')
    A('v_mov_b32 v16, 0')
    A('v_mov_b32 v17, 0')
    A('v_mov_b32 v18, 0')
    A('v_mov_b32 v19, 0')
    A('s_lshl_b32 s50, s43, 10')
    A(f's_add_u32 s50, s50, {WS["TF2"]}')
    A('buffer_store_dwordx4 v[16:19], v5, s[4:7], s50 offen')
    A.label('L_tf2_done')
    A('s_sub_u32 s43, s40, 64')
    A('s_cmp_ge_u32 s43, 32')
    A('s_cbranch_scc1 L_tf3_done')
    A('v_mov_b32 v16, 0')
    A('v_mov_b32 v17, 0')
    A('v_mov_b32 v18, 0')
    A('v_mov_b32 v19, 0')
    A('s_lshl_b32 s50, s43, 10')
    A(f's_add_u32 s50, s50, {WS["TF3"]}')
    A('buffer_store_dwordx4 v[16:19], v5, s[4:7], s50 offen')
    A.label('L_tf3_done')
    A(f's_sub_u32 s43, s40, {NW-10}')
    A('s_cmp_ge_u32 s43, 10')
    A('s_cbranch_scc1 L_prep_end')
    A('s_lshl_b32 s50, s43, 6')
    A('v_add_u32 v6, s50, v2')
    A('v_and_b32 v7, 7, v6')
    A('v_mul_u32_u24 v7, 1280, v7')
    A('v_lshrrev_b32 v8, 3, v6')
    A('v_lshlrev_b32 v8, 4, v8')
    A('v_add_u32 v7, v7, v8')
    A('v_lshlrev_b32 v6, 4, v6')
    A('buffer_load_dwordx4 v[16:19], v7, s[32:35], 0 offen')
    A('s_waitcnt vmcnt(0)')
    A(f'buffer_store_dwordx4 v[16:19], v6, s[4:7], 0 offen offset:{WS["MEMB"]}') if WS["MEMB"] < 4096 else A(f's_mov_b32 s50, {WS["MEMB"]}\nbuffer_store_dwordx4 v[16:19], v6, s[4:7], s50 offen')
    A('s_branch L_prep_end')
    A.label('L_mod')
    srds(A, [('ws', 4), ('c', 8), ('wmod', 12), ('dbg', 24)])
    A('v_lshrrev_b32 v1, 6, v0')
    A('v_and_b32 v2, 63, v0')
    A('v_and_b32 v3, 7, v2')
    A('v_lshrrev_b32 v4, 3, v2')
    A('v_mul_u32_u24 v5, 160, v1')
    A('v_add_u32 v5, v5, v4')
    A('v_lshlrev_b32 v6, 1, v5')
    A('v_mul_u32_u24 v7, 7680, v5')
    A('v_lshlrev_b32 v8, 4, v3')
    A('v_add_u32 v7, v7, v8')
    A('s_lshl_b32 s20, s2, 7')
    for i in range(20):
        A(f'buffer_load_ushort v{20+i}, v6, s[8:11], 0 offen offset:{16*i}')
    A('v_add_u32 v7, s20, v7')
    for i in range(20):
        A(f's_mov_b32 s21, {i*8*7680}')
        A(f'buffer_load_dwordx4 v[{40+4*i}:{43+4*i}], v7, s[12:15], s21 offen')
    for e in range(8):
        A(f'v_mov_b32 v{10+e}, 0')
    A('s_waitcnt vmcnt(20)')
    for i in range(20):
        v = 20 + i
        A(f'v_lshlrev_b32 v{v}, 16, v{v}')
        A(f'v_mul_f32 v18, 0xbfb8aa3b, v{v}')
        A('v_exp_f32 v18, v18')
        A('s_nop 0')
        A('v_add_f32 v18, 1.0, v18')
        A('v_rcp_f32 v18, v18')
        A('s_nop 0')
        A(f'v_mul_f32 v{v}, v{v}, v18')
        rne_bf16(A, v, 18)
    for i in range(20):
        A(f's_waitcnt vmcnt({19-i})')
        for q in range(4):
            src = 40 + 4 * i + q
            A(f'v_lshlrev_b32 v18, 16, v{src}')
            A(f'v_and_b32 v19, 0xffff0000, v{src}')
            A(f'v_fmac_f32 v{10+2*q}, v{20+i}, v18')
            A(f'v_fmac_f32 v{11+2*q}, v{20+i}, v19')
    A('v_lshlrev_b32 v5, 3, v1')
    A('v_add_u32 v5, v5, v4')
    A('v_lshlrev_b32 v5, 8, v5')
    A('v_lshlrev_b32 v6, 5, v3')
    A('v_add_u32 v5, v5, v6')
    A('ds_write_b128 v5, v[10:13]')
    A('ds_write_b128 v5, v[14:17] offset:16')
    A('s_waitcnt lgkmcnt(0)')
    A('s_barrier')
    A('v_cmp_gt_u32 vcc, 64, v0')
    A('s_and_saveexec_b64 s[22:23], vcc')
    A('s_cbranch_execz L_prep_end')
    A('v_lshlrev_b32 v5, 2, v0')
    for i in range(32):
        A(f'ds_read_b32 v{20+i}, v5 offset:{256*i}')
    A('s_waitcnt lgkmcnt(0)')
    for i in range(1, 32):
        A(f'v_add_f32 v20, v20, v{20+i}')
    A('v_cvt_pk_bf16_f32 v20, v20, v20')
    A('v_lshlrev_b32 v5, 1, v0')
    A('v_add_u32 v5, s20, v5')
    A(f'buffer_store_short v20, v5, s[4:7], 0 offen offset:{WS["MODB"]} sc1')
    A('s_waitcnt vmcnt(0)')
    A('v_mov_b32 v20, 1')
    A('v_mov_b32 v21, 0')
    A('s_lshl_b32 s21, s2, 2')
    A('s_mov_b64 exec, 1')
    A('buffer_store_dword v20, v21, s[24:27], s21 offen sc1')
    A('s_endpgm')
    A.label('L_prep_ln')
    srds(A, [('ws', 4), ('x', 8), ('dbg', 24)])
    A('v_lshrrev_b32 v1, 6, v0')
    A('s_nop 0')
    A('v_readfirstlane_b32 s40, v1')
    A('v_and_b32 v0, 63, v0')
    A(f's_sub_u32 s2, s2, {NWG_MOD}')
    A('s_lshl_b32 s2, s2, 2')
    A('s_add_u32 s2, s2, s40')
    def wm():
        A('v_lshlrev_b32 v11, 2, v0')
        A('s_mov_b32 s42, 0')
        A('s_mov_b32 exec_hi, 0x0fffffff')
        A.label('L_prep_wm')
        A('buffer_load_dword v12, v11, s[24:27], 0 offen sc1')
        A('s_waitcnt vmcnt(0)')
        A('v_cmp_ne_u32 vcc, 1, v12')
        A('s_cbranch_vccz L_prep_wmok')
        A('s_add_u32 s42, s42, 1')
        A('s_cmp_lt_u32 s42, 400000')
        A('s_cbranch_scc1 L_prep_wm')
        A.label('L_prep_wmok')
        A('s_mov_b64 exec, -1')
    gen_ln(A, 'ln1', 'x', 0, 1, WS['H1F'], embedded=True, wait_mod=wm)
    A.label('L_prep_end')
    A('s_endpgm')
    return name, kernel_desc(name, 256), f'; @launch kernel={name} grid=({NWG_MOD+NWG_LN+NWG_PREP},1,1) block=(256,1,1) lds=8192'

def gen_ln(A, name, src, s_idx, c_idx, dst, embedded=False, wait_mod=None):
    if not embedded:
        kernel_header(A, name)
        A('s_cmp_ge_u32 s2, 128')
        A(f's_cbranch_scc1 L_{name}_end')
        srds(A, [('ws', 4), ('x', 8)])
    A('v_and_b32 v1, 15, v0')
    A('v_lshrrev_b32 v2, 4, v0')
    A('v_mul_u32_u24 v3, 1280, v1')
    A('v_lshlrev_b32 v4, 4, v2')
    A('v_add_u32 v3, v3, v4')
    A('s_mul_i32 s20, s2, 20480')
    if src == 'x':
        srd = 's[8:11]'
    else:
        srd = 's[4:7]'
        A(f's_add_u32 s20, s20, {src}')
    X = 64
    RAW = 16
    F = 96
    for ks in range(20):
        A(f'buffer_load_dwordx4 v[{RAW+4*ks}:{RAW+4*ks+3}], v3, {srd}, s20 offen offset:{64*ks}')
    A('v_mov_b32 v5, 0')
    for ks in range(20):
        A(f's_waitcnt vmcnt({19-ks})')
        for q in range(4):
            r = RAW + 4 * ks + q
            A(f'v_lshlrev_b32 v{F+8*ks+2*q}, 16, v{r}')
            A(f'v_and_b32 v{F+8*ks+2*q+1}, 0xffff0000, v{r}')
            A(f'v_add_f32 v5, v5, v{F+8*ks+2*q}')
            A(f'v_add_f32 v5, v5, v{F+8*ks+2*q+1}')
    A('v_xor_b32 v6, 16, v0')
    A('v_lshlrev_b32 v6, 2, v6')
    A('v_xor_b32 v7, 32, v0')
    A('v_lshlrev_b32 v7, 2, v7')
    def xred(v):
        A(f'ds_bpermute_b32 v8, v6, v{v}')
        A('s_waitcnt lgkmcnt(0)')
        A(f'v_add_f32 v{v}, v{v}, v8')
        A(f'ds_bpermute_b32 v8, v7, v{v}')
        A('s_waitcnt lgkmcnt(0)')
        A(f'v_add_f32 v{v}, v{v}, v8')
    xred(5)
    A('v_mul_f32 v5, 0x3acccccd, v5')
    A('v_mov_b32 v9, 0')
    for i in range(160):
        A(f'v_sub_f32 v8, v{F+i}, v5')
        A('v_fmac_f32 v9, v8, v8')
    xred(9)
    A('v_mul_f32 v9, 0x3acccccd, v9')
    rne_bf16(A, 9, 8)
    A('v_add_f32 v9, 0x3727c5ac, v9')
    rne_bf16(A, 9, 8)
    A('v_sqrt_f32 v9, v9')
    A('s_nop 0')
    rne_bf16(A, 9, 8)
    A('v_rcp_f32 v9, v9')
    rne_bf16(A, 5, 8)
    A('v_lshlrev_b32 v10, 4, v2')
    if wait_mod: wait_mod()
    for ks in range(20):
        A(f'buffer_load_dwordx4 v[{RAW+4*ks}:{RAW+4*ks+3}], v10, s[4:7], 0 offen offset:{WS["MODB"] + c_idx*1280 + 64*ks}' if (WS["MODB"] + c_idx*1280 + 64*ks) < 4096 else
          f's_mov_b32 s21, {WS["MODB"] + c_idx*1280 + 64*ks}\nbuffer_load_dwordx4 v[{RAW+4*ks}:{RAW+4*ks+3}], v10, s[4:7], s21 offen')
    for i in range(0, 160, 2):
        A(f'v_sub_f32 v{F+i}, v{F+i}, v5')
        A(f'v_sub_f32 v{F+i+1}, v{F+i+1}, v5')
        A(f'v_cvt_pk_bf16_f32 v8, v{F+i}, v{F+i+1}')
        A(f'v_lshlrev_b32 v{F+i}, 16, v8')
        A(f'v_and_b32 v{F+i+1}, 0xffff0000, v8')
        A(f'v_mul_f32 v{F+i}, v{F+i}, v9')
        A(f'v_mul_f32 v{F+i+1}, v{F+i+1}, v9')
        A(f'v_cvt_pk_bf16_f32 v8, v{F+i}, v{F+i+1}')
        A(f'v_lshlrev_b32 v{F+i}, 16, v8')
        A(f'v_and_b32 v{F+i+1}, 0xffff0000, v8')
    for ks in range(20):
        A(f's_waitcnt vmcnt({19-ks})')
        for q in range(4):
            r = RAW + 4 * ks + q
            i = 8 * ks + 2 * q
            A(f'v_lshlrev_b32 v11, 16, v{r}')
            A(f'v_and_b32 v12, 0xffff0000, v{r}')
            A('v_add_f32 v11, 1.0, v11')
            A('v_add_f32 v12, 1.0, v12')
            A('v_cvt_pk_bf16_f32 v8, v11, v12')
            A('v_lshlrev_b32 v11, 16, v8')
            A('v_and_b32 v12, 0xffff0000, v8')
            A(f'v_mul_f32 v{F+i}, v{F+i}, v11')
            A(f'v_mul_f32 v{F+i+1}, v{F+i+1}, v12')
            A(f'v_cvt_pk_bf16_f32 v8, v{F+i}, v{F+i+1}')
            A(f'v_lshlrev_b32 v{F+i}, 16, v8')
            A(f'v_and_b32 v{F+i+1}, 0xffff0000, v8')
    for ks in range(20):
        A(f's_mov_b32 s21, {WS["MODB"] + s_idx*1280 + 64*ks}')
        A(f'buffer_load_dwordx4 v[{RAW+4*ks}:{RAW+4*ks+3}], v10, s[4:7], s21 offen')
    A('v_lshlrev_b32 v13, 4, v0')
    A('s_mul_i32 s22, s2, 20480')
    A(f's_add_u32 s22, s22, {dst}')
    for ks in range(20):
        A(f's_waitcnt vmcnt({19-ks})' if ks == 0 else f's_waitcnt vmcnt({19})')
        for q in range(4):
            r = RAW + 4 * ks + q
            i = 8 * ks + 2 * q
            A(f'v_lshlrev_b32 v11, 16, v{r}')
            A(f'v_and_b32 v12, 0xffff0000, v{r}')
            A(f'v_add_f32 v{F+i}, v{F+i}, v11')
            A(f'v_add_f32 v{F+i+1}, v{F+i+1}, v12')
            A(f'v_cvt_pk_bf16_f32 v{r}, v{F+i}, v{F+i+1}')
        A(f'buffer_store_dwordx4 v[{RAW+4*ks}:{RAW+4*ks+3}], v13, s[4:7], s22 offen')
        A(f's_add_u32 s22, s22, 1024')
    if embedded: return
    A.label(f'L_{name}_end')
    A('s_endpgm')
    return name, kernel_desc(name, 256), f'; @launch kernel={name} grid=(128,1,1) block=(64,1,1) lds=0'
```

```python
import re, os
from asmlib import *
from layout import WS
from k_post import rnd2, xred1632, SCALE, LOG2E
from k_prep import rne_bf16

TF2 = WS['TF2']
S1DONE = TF2 + 16896
HINT = S1DONE + 128
SRD_X, SRD_B1, SRD_B2, SRD_OUT = 's[8:11]', 's[80:83]', 's[84:87]', 's[88:91]'
LDEC = 49152
LSUM = 49408
KPOST = 1000

def check_issue(A, role, sseg):
    A(f's_min_u32 s60, s{sseg}, 63')
    A('v_lshlrev_b32 v12, 2, v1')
    if role == 0:
        A('s_lshl_b32 s61, s60, 9')
        A('s_lshl_b32 s62, s74, 6')
        A('s_add_u32 s61, s61, s62')
        A(f's_add_u32 s61, s61, {WS["TF3"]}')
        A('v_and_b32 v14, 3, v1')
        A('v_cmp_ne_u32 vcc, 0, v14')
        A('v_cndmask_b32 v14, 0, 1, vcc')
        A('v_cmp_gt_u32 vcc, 16, v1')
        A('v_cndmask_b32 v14, 0, v14, vcc')
    else:
        lo, hi = {1: (0, 8), 2: (52, 54), 3: (28, 52), 4: (8, 18)}[role]
        A('s_lshl_b32 s61, s60, 8')
        A(f's_add_u32 s61, s61, {TF2}')
        A(f'v_subrev_u32 v14, {lo}, v1')
        A(f'v_cmp_gt_u32 vcc, {hi-lo}, v14')
        A('v_cndmask_b32 v14, 0, 1, vcc')
        if role == 1:
            A('s_add_u32 s62, s60, 1')
            A('s_lshl_b32 s62, s62, 9')
            A(f's_add_u32 s62, s62, {WS["TF3"] + 4}')
            A('s_sub_u32 s62, s62, s61')
            A('s_cmp_eq_u32 s60, 63')
            A('s_cselect_b32 s62, 0, s62')
            A('s_cselect_b32 s63, 0, 1')
            A('v_mov_b32 v15, s62')
            A('v_cmp_eq_u32 vcc, 63, v1')
            A('v_cndmask_b32 v12, v12, v15, vcc')
            A('v_mov_b32 v15, s63')
            A('v_cndmask_b32 v14, v14, v15, vcc')
    SL = int(os.environ.get('SL', '60'))
    A('v_add_u32 v12, s61, v12')
    A(f'v_mov_b32 v15, {WS["TF3"] + SL*512 + 4}')
    A('v_cmp_eq_u32 vcc, 62, v1')
    A('v_cndmask_b32 v12, v12, v15, vcc')
    A('buffer_load_dword v13, v12, s[4:7], 0 offen sc1')

def decide(A):
    A('v_cmp_lt_u32 vcc, v13, v14')
    A('s_cmp_eq_u64 vcc, 0')
    A('s_cselect_b32 s60, 1, 0')
    A('v_mov_b32 v15, s60')
    A(f'v_mov_b32 v12, {LDEC}')
    A('ds_write_b32 v12, v15')
    A('s_waitcnt lgkmcnt(0)')

def read_dec(A):
    A(f'v_mov_b32 v12, {LDEC}')
    A('ds_read_b32 v15, v12')
    A('s_waitcnt lgkmcnt(0)')
    A('v_readfirstlane_b32 s77, v15')

def verify_mem(A, tag):
    A('s_add_u32 s60, s21, 2')
    A('s_min_u32 s60, s60, 64')
    A('s_mul_i32 s61, s60, 10240')
    A(f's_add_u32 s61, s61, {WS["MEMB"]}')
    A('s_mul_i32 s62, s20, 2560')
    A('s_add_u32 s61, s61, s62')
    for r in range(12, 16): A(f'v_mov_b32 v{r}, 0')
    A('s_mov_b32 s42, 0')
    A.label(f'L_{tag}_m')
    A('buffer_load_dwordx4 v[4:7], v2, s[4:7], s61 offen sc1')
    A('buffer_load_dwordx4 v[8:11], v2, s[4:7], s61 offen offset:1024 sc1')
    A('s_mov_b32 exec_hi, 0')
    A('buffer_load_dwordx4 v[12:15], v2, s[4:7], s61 offen offset:2048 sc1')
    A('s_mov_b64 exec, -1')
    A('s_waitcnt vmcnt(0)')
    A('v_max3_u32 v3, v4, v5, v6')
    A('v_max3_u32 v3, v3, v7, v8')
    A('v_max3_u32 v3, v3, v9, v10')
    A('v_max3_u32 v3, v3, v11, v12')
    A('v_max3_u32 v3, v3, v13, v14')
    A('v_max_u32 v3, v3, v15')
    A('v_cmp_eq_u32 vcc, -1, v3')
    A(f's_cbranch_vccz L_{tag}_mok')
    A('s_add_u32 s42, s42, 1')
    A('s_cmp_lt_u32 s42, s44')
    A(f's_cbranch_scc1 L_{tag}_m')
    A('s_mov_b32 s44, 0')
    A.label(f'L_{tag}_mok')
    A('s_barrier')

KM, KT, Q, EACC = 16, 40, 88, 136
def ld6(A, base, s):
    for ks in range(6):
        b = base + ks * 4
        A(f'buffer_load_dwordx4 v[{b}:{b+3}], v{2 if ks < 4 else 3}, s[4:7], s{s} offen offset:{(ks % 4)*1024}')
def e1_early(A):
    A('s_lshl_b32 s23, s74, 2')
    A('s_add_u32 s23, s23, s20')
    A('v_add_u32 v3, 4096, v2')
    A('s_mul_i32 s25, s21, 384')
    A('s_mul_i32 s26, s23, 6')
    A('s_add_u32 s25, s25, s26')
    A('s_lshl_b32 s25, s25, 10')
    for tt in range(2):
        A(f's_add_u32 s24, s25, {WS["KF"] + tt*192*1024}')
        ld6(A, KT + tt * 24, 24)
        A(f's_add_u32 s24, s25, {WS["QF"] + tt*192*1024}')
        ld6(A, Q + tt * 24, 24)
def e1_body(A):
    ACC = EACC
    A('s_lshl_b32 s27, s21, 5')
    A('s_add_u32 s27, s27, s23')
    A(f's_mul_i32 s24, s27, {6*1024}')
    A(f's_add_u32 s24, s24, {WS["KMF"]}')
    A('v_add_u32 v3, 4096, v2')
    ld6(A, KM, 24)
    A('v_and_b32 v4, 15, v1')
    A('v_lshrrev_b32 v5, 4, v1')
    A('v_lshlrev_b32 v6, 2, v5')
    A('v_sub_u32 v6, v4, v6')
    A('v_mov_b32 v7, 0xff800000')
    A('s_waitcnt vmcnt(6)')
    def mm(qt, kt):
        d = ACC + (qt * 3 + kt) * 4
        for ks in range(6):
            a = (KM + ks * 4) if kt == 0 else KT + (kt - 1) * 24 + ks * 4
            b = Q + qt * 24 + ks * 4
            c = '0' if ks == 0 else f'v[{d}:{d+3}]'
            A(f'v_mfma_f32_16x16x32_bf16 v[{d}:{d+3}], v[{a}:{a+3}], v[{b}:{b+3}], {c}')
    mm(0, 1); mm(1, 1); mm(1, 2)
    A('s_waitcnt vmcnt(0)')
    mm(0, 0); mm(1, 0)
    A('s_nop 7')
    A('s_nop 7')
    A(f'v_mov_b32 v160, {SCALE}')
    A(f'v_mov_b32 v161, {LOG2E}')
    A('s_lshl_b32 s24, s21, 6')
    A('s_add_u32 s24, s24, s23')
    A('s_lshl_b32 s24, s24, 10')
    A(f's_add_u32 s24, s24, {WS["PF"]}')
    A('s_lshl_b32 s25, s21, 4')
    A('s_lshr_b32 s26, s23, 2')
    A('s_add_u32 s25, s25, s26')
    A('s_lshl_b32 s25, s25, 10')
    A('s_and_b32 s26, s23, 3')
    A('s_lshl_b32 s26, s26, 8')
    A('s_add_u32 s25, s25, s26')
    A(f's_add_u32 s25, s25, {WS["PMF"]}')
    A('v_lshlrev_b32 v8, 4, v4')
    A('v_lshlrev_b32 v9, 3, v5')
    A('v_add_u32 v8, v8, v9')
    for qt in range(2):
        nk = 2 if qt == 0 else 3
        vals = [ACC + qt * 12 + i for i in range(nk * 4)]
        for i in range(0, len(vals), 2):
            a, b = vals[i], vals[i + 1]
            rnd2(A, a, b, 10)
            A(f'v_mul_f32 v{a}, v{a}, v160')
            A(f'v_mul_f32 v{b}, v{b}, v160')
            rnd2(A, a, b, 10)
        A('v_cmp_gt_u32 vcc, 2, v5')
        for r in range(4):
            A(f'v_cndmask_b32 v{vals[r]}, v7, v{vals[r]}, vcc')
        for r in range(4):
            A(f'v_cmp_le_i32 vcc, {r}, v6')
            A(f'v_cndmask_b32 v{vals[-4+r]}, v7, v{vals[-4+r]}, vcc')
        A(f'v_max3_f32 v11, v{vals[0]}, v{vals[1]}, v{vals[2]}')
        rest = vals[3:]
        while len(rest) >= 2:
            A(f'v_max3_f32 v11, v11, v{rest[0]}, v{rest[1]}')
            rest = rest[2:]
        if rest:
            A(f'v_max_f32 v11, v11, v{rest[0]}')
        xred1632(A, 'v_max_f32', 11, 12)
        A('v_mul_f32 v11, v11, v161')
        for v in vals:
            A(f'v_fma_f32 v{v}, v{v}, v161, -v11')
            A(f'v_exp_f32 v{v}, v{v}')
        A('s_nop 0')
        A(f'v_add_f32 v12, v{vals[0]}, v{vals[1]}')
        for v in vals[2:]:
            A(f'v_add_f32 v12, v12, v{v}')
        xred1632(A, 'v_add_f32', 12, 13)
        A('v_rcp_f32 v12, v12')
        A('s_nop 0')
        for v in vals:
            A(f'v_mul_f32 v{v}, v{v}, v12')
        o = 164 + qt * 8
        A(f'v_cvt_pk_bf16_f32 v{o}, v{vals[4]}, v{vals[5]}')
        A(f'v_cvt_pk_bf16_f32 v{o+1}, v{vals[6]}, v{vals[7]}')
        if nk == 3:
            A(f'v_cvt_pk_bf16_f32 v{o+2}, v{vals[8]}, v{vals[9]}')
            A(f'v_cvt_pk_bf16_f32 v{o+3}, v{vals[10]}, v{vals[11]}')
        else:
            A(f'v_mov_b32 v{o+2}, 0')
            A(f'v_mov_b32 v{o+3}, 0')
        A(f'v_cvt_pk_bf16_f32 v{o+4}, v{vals[0]}, v{vals[1]}')
        A(f'v_cvt_pk_bf16_f32 v{o+5}, v{vals[2]}, v{vals[3]}')
        A(f'buffer_store_dwordx4 v[{o}:{o+3}], v2, s[4:7], s24 offen sc1')
        A('s_mov_b32 exec_hi, 0')
        A(f'buffer_store_dwordx2 v[{o+4}:{o+5}], v8, s[4:7], s25 offen sc1')
        A('s_mov_b64 exec, -1')
        A(f's_add_u32 s24, s24, {32*1024}')
        A(f's_add_u32 s25, s25, {8*1024}')

ACC = 64
def mm_seq(A, RA, RB, seq):
    for k, (fa, fb, wait) in enumerate(seq):
        if wait is not None: A(f's_waitcnt vmcnt({wait})')
        for i in range(RA):
            for j in range(RB):
                d = ACC + (i * RB + j) * 4
                c = '0' if k == 0 else f'v[{d}:{d+3}]'
                A(f'v_mfma_f32_16x16x32_bf16 v[{d}:{d+3}], {reg(fa[i],4)}, {reg(fb[j],4)}, {c}')
def kreduce(A, NT):
    TPW = NT // 4
    A('s_nop 7')
    A('s_nop 3')
    A(f's_mul_i32 s28, s20, {NT*1024}')
    A('v_add_u32 v4, s28, v2')
    for t in range(NT):
        A(f'ds_write_b128 v4, v[{ACC+4*t}:{ACC+4*t+3}] offset:{t*1024}')
    A('s_waitcnt lgkmcnt(0)')
    A('s_barrier')
    A(f's_mul_i32 s28, s20, {TPW*1024}')
    A('v_add_u32 v4, s28, v2')
    for n_ in range(TPW):
        for w in range(4):
            r = ACC + (n_ * 4 + w) * 4
            A(f'ds_read_b128 v[{r}:{r+3}], v4 offset:{w*NT*1024 + n_*1024}')
    A('s_waitcnt lgkmcnt(0)')
    for n_ in range(TPW):
        r = ACC + n_ * 16
        o = 16 + 4 * n_
        A(f'v_pk_add_f32 v[{r}:{r+1}], v[{r}:{r+1}], v[{r+4}:{r+5}]')
        A(f'v_pk_add_f32 v[{r+2}:{r+3}], v[{r+2}:{r+3}], v[{r+6}:{r+7}]')
        A(f'v_pk_add_f32 v[{r+8}:{r+9}], v[{r+8}:{r+9}], v[{r+12}:{r+13}]')
        A(f'v_pk_add_f32 v[{r+10}:{r+11}], v[{r+10}:{r+11}], v[{r+14}:{r+15}]')
        A(f'v_pk_add_f32 v[{o}:{o+1}], v[{r}:{r+1}], v[{r+8}:{r+9}]')
        A(f'v_pk_add_f32 v[{o+2}:{o+3}], v[{r+2}:{r+3}], v[{r+10}:{r+11}]')
def ldf(A, f, sbase, off):
    A(f's_add_u32 s28, s{sbase}, {off}')
    A(f'buffer_load_dwordx4 {reg(f,4)}, v2, s[4:7], s28 offen')

def resid_addr(A):
    A('v_and_b32 v9, 15, v1')
    A('v_lshrrev_b32 v8, 4, v1')
    A('v_lshlrev_b32 v8, 3, v8')
    A('s_lshl_b32 s32, s30, 5')
    A('v_add_u32 v8, s32, v8')
    A('v_mul_u32_u24 v9, 1280, v9')
    A('v_add_u32 v9, v9, v8')
    A('s_mul_i32 s33, s31, 1280')
def resid_fin(A, has_bias, out_srd, out_off, out_sc, val=16, xr=28):
    t0 = 30
    for q in range(2):
        a, b = val + 2 * q, val + 1 + 2 * q
        rnd2(A, a, b, t0)
        if has_bias:
            A(f'v_lshlrev_b32 v{t0+1}, 16, v{26+q}')
            A(f'v_and_b32 v{t0+2}, 0xffff0000, v{26+q}')
            A(f'v_add_f32 v{a}, v{a}, v{t0+1}')
            A(f'v_add_f32 v{b}, v{b}, v{t0+2}')
            rnd2(A, a, b, t0)
        A(f'v_lshlrev_b32 v{t0+1}, 16, v{24+q}')
        A(f'v_and_b32 v{t0+2}, 0xffff0000, v{24+q}')
        A(f'v_mul_f32 v{a}, v{a}, v{t0+1}')
        A(f'v_mul_f32 v{b}, v{b}, v{t0+2}')
        rnd2(A, a, b, t0)
        A(f'v_lshlrev_b32 v{t0+1}, 16, v{xr+q}')
        A(f'v_and_b32 v{t0+2}, 0xffff0000, v{xr+q}')
        A(f'v_add_f32 v{a}, v{a}, v{t0+1}')
        A(f'v_add_f32 v{b}, v{b}, v{t0+2}')
        A(f'v_cvt_pk_bf16_f32 v{xr+q}, v{a}, v{b}')
    A(f's_add_u32 s32, s33, {out_off}')
    A(f'buffer_store_dwordx2 v[{xr}:{xr+1}], v9, {out_srd}, s32 offen {out_sc}')

def e2_early(A):
    A('s_lshl_b32 s26, s74, 2')
    A('s_lshl_b32 s24, s21, 5')
    A('s_lshl_b32 s25, s20, 3')
    A('s_add_u32 s24, s24, s25')
    A('s_mul_i32 s34, s24, 40')
    A('s_add_u32 s34, s34, s26')
    A('s_lshl_b32 s34, s34, 10')
    A(f's_add_u32 s34, s34, {WS["VOF"]}')
    for k in range(8):
        for i in range(4):
            ldf(A, 256 + (k * 4 + i) * 4, 34, (k * 40 + i) * 1024)
    A('s_add_u32 s30, s26, s20')
    A('s_lshl_b32 s31, s21, 5')
    resid_addr(A)
    A(f's_mov_b32 s32, {WS["MODB"] + 2*1280}')
    A('buffer_load_dwordx2 v[24:25], v8, s[4:7], s32 offen')
    A(f'buffer_load_dwordx2 v[28:29], v9, {SRD_X}, s33 offen')
    A(f's_add_u32 s32, s33, {16*1280}')
    A(f'buffer_load_dwordx2 v[36:37], v9, {SRD_X}, s32 offen')
def e2_verify(A):
    A('s_cmp_lg_u32 s21, 63')
    A('s_cbranch_scc1 L_e2_nov')
    verify_mem(A, 'e2v')
    A.label('L_e2_nov')
def e2_body(A):
    resid_addr(A)
    A('s_lshl_b32 s35, s21, 6')
    A('s_lshl_b32 s25, s20, 3')
    A('s_add_u32 s35, s35, s25')
    A('s_lshl_b32 s35, s35, 10')
    A(f's_add_u32 s35, s35, {WS["PF"]}')
    A('s_lshl_b32 s37, s21, 4')
    A('s_lshl_b32 s25, s20, 1')
    A('s_add_u32 s37, s37, s25')
    A('s_lshl_b32 s37, s37, 10')
    A(f's_add_u32 s37, s37, {WS["PMF"]}')
    A('s_lshl_b32 s24, s21, 3')
    A('s_add_u32 s24, s24, s25')
    A('s_mul_i32 s36, s24, 40')
    A('s_add_u32 s36, s36, s26')
    A('s_lshl_b32 s36, s36, 10')
    A(f's_add_u32 s36, s36, {WS["VOMF"]}')
    for k in range(8):
        for j in range(2): ldf(A, 256 + 128 + (k * 2 + j) * 4, 35, (j * 32 + k) * 1024)
    for k in range(2):
        for i in range(4): ldf(A, 256 + 192 + (k * 4 + i) * 4, 36, (k * 40 + i) * 1024)
        for j in range(2): ldf(A, 256 + 224 + (k * 2 + j) * 4, 37, (j * 8 + k) * 1024)
    seq = [([256 + (k * 4 + i) * 4 for i in range(4)], [256 + 128 + (k * 2 + j) * 4 for j in range(2)], 26 - 2 * k) for k in range(8)]
    seq += [([256 + 192 + (k * 4 + i) * 4 for i in range(4)], [256 + 224 + (k * 2 + j) * 4 for j in range(2)], 6 - 6 * k) for k in range(2)]
    mm_seq(A, 4, 2, seq)
    kreduce(A, 8)
    resid_fin(A, False, 's[4:7]', WS['X1'], 'sc1', 16, 28)
    resid_fin(A, False, 's[4:7]', WS['X1'] + 16*1280, 'sc1', 20, 36)

def f2_early(A):
    A('s_mul_i32 s25, s20, 12')
    A('s_lshl_b32 s26, s74, 1')
    A('s_mul_i32 s34, s26, 48')
    A('s_add_u32 s34, s34, s25')
    A('s_lshl_b32 s34, s34, 10')
    A(f's_add_u32 s34, s34, {WS["W2F"]}')
    for k in range(12):
        for i in range(2): ldf(A, 256 + (k * 2 + i) * 4, 34, (i * 48 + k) * 1024)
    A('s_lshl_b32 s30, s74, 1')
    A('s_lshr_b32 s32, s20, 1')
    A('s_add_u32 s30, s30, s32')
    A('s_and_b32 s32, s20, 1')
    A('s_lshl_b32 s32, s32, 4')
    A('s_lshl_b32 s31, s21, 5')
    A('s_add_u32 s31, s31, s32')
    resid_addr(A)
    A(f's_mov_b32 s32, {WS["MODB"] + 5*1280}')
    A('buffer_load_dwordx2 v[24:25], v8, s[4:7], s32 offen')
    A(f'buffer_load_dwordx2 v[26:27], v8, {SRD_B2}, 0 offen')
def f2_body(A):
    A('s_mul_i32 s35, s21, 96')
    A('s_add_u32 s35, s35, s25')
    A('s_lshl_b32 s35, s35, 10')
    A(f's_add_u32 s35, s35, {WS["GF"]}')
    A(f's_add_u32 s32, s33, {WS["X1"]}')
    A('buffer_load_dwordx2 v[28:29], v9, s[4:7], s32 offen')
    for k in range(12):
        for j in range(2): ldf(A, 256 + 96 + (k * 2 + j) * 4, 35, (j * 48 + k) * 1024)
    seq = [([256 + (k * 2 + i) * 4 for i in range(2)], [256 + 96 + (k * 2 + j) * 4 for j in range(2)], 2 * (11 - k)) for k in range(12)]
    mm_seq(A, 2, 2, seq)
    kreduce(A, 4)
    resid_fin(A, True, SRD_OUT, 0, '')

RAW, F, C1, S_, CR, SR = 16, 56, 136, 176, 236, 216
def ln_early(A):
    A('s_mul_i32 s25, s20, 5')
    A('v_lshrrev_b32 v10, 4, v1')
    A('v_lshlrev_b32 v11, 4, v10')
    A('s_lshl_b32 s27, s25, 6')
    A(f's_add_u32 s28, s27, {WS["MODB"] + 4*1280}')
    for k in range(5):
        A(f'buffer_load_dwordx4 v[{CR+4*k}:{CR+4*k+3}], v11, s[4:7], s28 offen offset:{64*k}')
    A(f's_add_u32 s28, s27, {WS["MODB"] + 3*1280}')
    for k in range(5):
        A(f'buffer_load_dwordx4 v[{SR+4*k}:{SR+4*k+3}], v11, s[4:7], s28 offen offset:{64*k}')
    A('s_waitcnt vmcnt(0)')
    for n in range(20):
        A(f'v_lshlrev_b32 v4, 16, v{CR+n}')
        A(f'v_and_b32 v5, 0xffff0000, v{CR+n}')
        A('v_add_f32 v4, 1.0, v4')
        A('v_add_f32 v5, 1.0, v5')
        A('v_cvt_pk_bf16_f32 v6, v4, v5')
        A(f'v_lshlrev_b32 v{C1+2*n}, 16, v6')
        A(f'v_and_b32 v{C1+2*n+1}, 0xffff0000, v6')
        A(f'v_lshlrev_b32 v{S_+2*n}, 16, v{SR+n}')
        A(f'v_and_b32 v{S_+2*n+1}, 0xffff0000, v{SR+n}')
def ln_body(A):
    A('v_and_b32 v3, 15, v1')
    A('v_lshrrev_b32 v10, 4, v1')
    A('v_lshlrev_b32 v11, 4, v10')
    A('v_mul_u32_u24 v12, 1280, v3')
    A('v_add_u32 v12, v12, v11')
    A('s_lshl_b32 s36, s21, 1')
    A('s_add_u32 s36, s36, s74')
    A(f's_mul_i32 s35, s36, {16*1280}')
    A('s_lshl_b32 s27, s25, 6')
    A('s_add_u32 s35, s35, s27')
    A(f's_add_u32 s35, s35, {WS["X1"]}')
    for k in range(5):
        r = RAW + k * 4
        A(f'buffer_load_dwordx4 v[{r}:{r+3}], v12, s[4:7], s35 offen offset:{64*k}')
    A('v_lshlrev_b32 v13, 4, v3')
    A('s_lshl_b32 s28, s20, 2')
    A('v_add_u32 v14, s28, v13')
    def xchg(slot, r0, o0):
        xred1632(A, 'v_add_f32', r0, 3)
        A(f'ds_write_b32 v14, v{r0} offset:{LSUM + slot*512}')
        A('s_waitcnt lgkmcnt(0)')
        A('s_barrier')
        A(f'ds_read_b128 v[{CR}:{CR+3}], v13 offset:{LSUM + slot*512}')
        A('s_waitcnt lgkmcnt(0)')
        b = CR
        A(f'v_add_f32 v{b}, v{b}, v{b+1}')
        A(f'v_add_f32 v{b+2}, v{b+2}, v{b+3}')
        A(f'v_add_f32 v{o0}, v{b}, v{b+2}')
    for n in range(20):
        if n % 4 == 0: A(f's_waitcnt vmcnt({4 - n//4})')
        r = RAW + n
        f = F + 2 * n
        A(f'v_lshlrev_b32 v{f}, 16, v{r}')
        A(f'v_and_b32 v{f+1}, 0xffff0000, v{r}')
        ac = 4 + 2 * (n & 1)
        if n >= 2:
            if n < 4: A(f'v_pk_add_f32 v[{ac}:{ac+1}], v[{f-4}:{f-3}], v[{f}:{f+1}]')
            else: A(f'v_pk_add_f32 v[{ac}:{ac+1}], v[{ac}:{ac+1}], v[{f}:{f+1}]')
    A('v_pk_add_f32 v[4:5], v[4:5], v[6:7]')
    A('v_add_f32 v4, v4, v5')
    xchg(0, 4, 8)
    A('v_mul_f32 v8, 0x3acccccd, v8')
    A('v_mov_b32 v9, v8')
    T = SR
    for n in range(20):
        f = F + 2 * n
        t = T + (n % 4) * 2
        ac = 4 + 2 * (n & 1)
        A(f'v_pk_add_f32 v[{t}:{t+1}], v[{f}:{f+1}], v[8:9] neg_lo:[0,1] neg_hi:[0,1]')
        if n < 2: A(f'v_pk_mul_f32 v[{ac}:{ac+1}], v[{t}:{t+1}], v[{t}:{t+1}]')
        else: A(f'v_pk_fma_f32 v[{ac}:{ac+1}], v[{t}:{t+1}], v[{t}:{t+1}], v[{ac}:{ac+1}]')
    A('v_pk_add_f32 v[4:5], v[4:5], v[6:7]')
    A('v_add_f32 v4, v4, v5')
    xchg(1, 4, 4)
    v, m = 4, 8
    A(f'v_mul_f32 v{v}, 0x3acccccd, v{v}')
    rne_bf16(A, v, 3)
    A(f'v_add_f32 v{v}, 0x3727c5ac, v{v}')
    rne_bf16(A, v, 3)
    A(f'v_sqrt_f32 v{v}, v{v}')
    A('s_nop 0')
    rne_bf16(A, v, 3)
    A(f'v_rcp_f32 v{v}, v{v}')
    rne_bf16(A, m, 3)
    A(f'v_mov_b32 v{v+1}, v{v}')
    A(f'v_mov_b32 v{m+1}, v{m}')
    def unp(f, t):
        A(f'v_lshlrev_b32 v{f}, 16, v{t}')
        A(f'v_and_b32 v{f+1}, 0xffff0000, v{t}')
    A('s_mul_i32 s35, s36, 20')
    A('s_add_u32 s35, s35, s25')
    A('s_lshl_b32 s35, s35, 10')
    A(f's_add_u32 s35, s35, {WS["H2F"]}')
    for n0 in range(0, 20, 4):
        ns = range(n0, n0 + 4)
        fs = [F + 2 * n for n in ns]
        ts = [T + i for i in range(4)]
        for f in fs: A(f'v_pk_add_f32 v[{f}:{f+1}], v[{f}:{f+1}], v[{m}:{m+1}] neg_lo:[0,1] neg_hi:[0,1]')
        for f, t in zip(fs, ts): A(f'v_cvt_pk_bf16_f32 v{t}, v{f}, v{f+1}')
        for f, t in zip(fs, ts): unp(f, t)
        for f in fs: A(f'v_pk_mul_f32 v[{f}:{f+1}], v[{f}:{f+1}], v[{v}:{v+1}]')
        for f, t in zip(fs, ts): A(f'v_cvt_pk_bf16_f32 v{t}, v{f}, v{f+1}')
        for f, t in zip(fs, ts): unp(f, t)
        for f, n in zip(fs, ns): A(f'v_pk_mul_f32 v[{f}:{f+1}], v[{f}:{f+1}], v[{C1+2*n}:{C1+2*n+1}]')
        for f, t in zip(fs, ts): A(f'v_cvt_pk_bf16_f32 v{t}, v{f}, v{f+1}')
        for f, t in zip(fs, ts): unp(f, t)
        for f, n in zip(fs, ns): A(f'v_pk_add_f32 v[{f}:{f+1}], v[{f}:{f+1}], v[{S_+2*n}:{S_+2*n+1}]')
        for f, n in zip(fs, ns): A(f'v_cvt_pk_bf16_f32 v{RAW + n}, v{f}, v{f+1}')
        k = n0 // 4
        A(f'buffer_store_dwordx4 v[{RAW+4*k}:{RAW+4*k+3}], v2, s[4:7], s35 offen offset:{(k%4)*1024} sc1')
        if k == 3: A('s_add_u32 s35, s35, 4096')

def f1_early(A):
    A('s_mul_i32 s25, s20, 5')
    A('s_lshl_b32 s26, s74, 2')
    A('s_mul_i32 s34, s26, 20')
    A('s_add_u32 s34, s34, s25')
    A('s_lshl_b32 s34, s34, 10')
    A(f's_add_u32 s34, s34, {WS["W1F"]}')
    for k in range(5):
        for i in range(4): ldf(A, 256 + (k * 4 + i) * 4, 34, (i * 20 + k) * 1024)
    A('v_lshrrev_b32 v10, 4, v1')
    A('v_lshlrev_b32 v8, 3, v10')
    A('s_add_u32 s30, s26, s20')
    A('s_lshl_b32 s31, s30, 5')
    A('v_add_u32 v8, s31, v8')
    A(f'buffer_load_dwordx2 v[24:25], v8, {SRD_B1}, 0 offen')
def f1_body(A):
    A('s_mul_i32 s35, s21, 40')
    A('s_add_u32 s35, s35, s25')
    A('s_lshl_b32 s35, s35, 10')
    A(f's_add_u32 s35, s35, {WS["H2F"]}')
    for k in range(5):
        for j in range(2): ldf(A, 256 + 80 + (k * 2 + j) * 4, 35, (j * 20 + k) * 1024)
    seq = [([256 + (k * 4 + i) * 4 for i in range(4)], [256 + 80 + (k * 2 + j) * 4 for j in range(2)], 2 * (4 - k)) for k in range(5)]
    mm_seq(A, 4, 2, seq)
    kreduce(A, 8)
    A('s_mul_i32 s31, s21, 96')
    A('s_lshr_b32 s32, s30, 1')
    A('s_add_u32 s31, s31, s32')
    A('s_lshl_b32 s31, s31, 10')
    A('s_and_b32 s32, s30, 1')
    A('s_lshl_b32 s32, s32, 3')
    A('s_add_u32 s31, s31, s32')
    A(f's_add_u32 s31, s31, {WS["GF"]}')
    t0 = 30
    for j in range(2):
        d = 16 + 4 * j
        for q in range(2):
            a, b = d + 2 * q, d + 2 * q + 1
            rnd2(A, a, b, t0)
            A(f'v_lshlrev_b32 v{t0+1}, 16, v{24+q}')
            A(f'v_and_b32 v{t0+2}, 0xffff0000, v{24+q}')
            A(f'v_add_f32 v{a}, v{a}, v{t0+1}')
            A(f'v_add_f32 v{b}, v{b}, v{t0+2}')
            rnd2(A, a, b, t0)
            A(f'v_max_f32 v{a}, 0, v{a}')
            A(f'v_max_f32 v{b}, 0, v{b}')
            A(f'v_mul_f32 v{a}, v{a}, v{a}')
            A(f'v_mul_f32 v{b}, v{b}, v{b}')
            A(f'v_cvt_pk_bf16_f32 v{26+2*j+q}, v{a}, v{b}')
        A(f's_add_u32 s32, s31, {j*48*1024}')
        A(f'buffer_store_dwordx2 v[{26+2*j}:{27+2*j}], v2, s[4:7], s32 offen sc1')

import os
PROF3 = os.environ.get('PROF') == '3'
def pst(A, sreg):
    if PROF3:
        A('s_memrealtime s[98:99]')
        A('s_waitcnt lgkmcnt(0)')
        A(f's_mov_b32 s{sreg}, s98')
def pst_flush(A, ro):
    if PROF3:
        pst(A, 95)
        A('s_sub_u32 s22, s2, 112')
        A('s_lshr_b32 s22, s22, 1')
        A(f's_mov_b32 s23, {72 if ro == 4 else 0}')
        A('s_add_u32 s22, s22, s23')
        A('s_mul_i32 s23, s21, 96')
        A('s_add_u32 s22, s22, s23')
        A('s_lshl_b32 s22, s22, 4')
        A(f's_add_u32 s22, s22, {WS["END"]}')
        A('v_mov_b32 v4, s92')
        A('v_mov_b32 v5, s93')
        A('v_mov_b32 v6, s94')
        A('v_mov_b32 v7, s95')
        A('v_mov_b32 v8, 0')
        A('s_mov_b64 exec, 1')
        A('buffer_store_dwordx4 v[4:7], v8, s[4:7], s22 offen')
        A('s_mov_b64 exec, -1')
ROLES = [('e1', e1_early, None, e1_body, 0), ('e2', e2_early, e2_verify, e2_body, 8),
         ('f1', f1_early, None, f1_body, 28), ('f2', f2_early, None, f2_body, None), ('ln', ln_early, None, ln_body, 52)]

def post_init(A):
    srds(A, [('b1', 80), ('b2', 84), ('out', 88)])
    A('s_sub_u32 s22, s2, 112')
    A('s_and_b32 s73, s22, 1')
    A('s_lshr_b32 s22, s22, 1')
    A('s_mov_b32 s75, 0')
    A('s_mov_b32 s23, 0')
    for ro, lo in ((1, 8), (4, 18), (2, 20), (3, 44), (5, 64)):
        A(f's_cmp_ge_u32 s22, {lo}')
        A(f's_cselect_b32 s75, {ro}, s75')
        A(f's_cselect_b32 s23, {lo}, s23')
    A('s_sub_u32 s74, s22, s23')
    A('s_cmp_eq_u32 s75, 5')
    A('s_cselect_b32 s73, 64, s73')
    A('s_mov_b32 s76, 1')
    A('s_mov_b32 s79, 0')
def post_init2(A): pass

def gen_post(A, ret_label):
    A.label('L_post_try')
    A(f's_mov_b32 s78, {KPOST}')
    A.label('L_post_disp')
    A('s_cmp_ge_u32 s73, 64')
    A('s_cbranch_scc1 L_post_out')
    for ro in range(1, 5):
        A(f's_cmp_eq_u32 s75, {ro}')
        A(f's_cbranch_scc1 L_pe_{ro}')
    for ro, (nm, early, verify, body, fidx) in enumerate(ROLES):
        A.label(f'L_pe_{ro}')
        A('s_cmp_lg_u32 s20, 0')
        A(f's_cbranch_scc1 L_{nm}_ec')
        check_issue(A, ro, 73)
        A('s_waitcnt vmcnt(0)')
        decide(A)
        A.label(f'L_{nm}_ec')
        A('s_barrier')
        read_dec(A)
        A.label(f'L_{nm}_loop')
        A('s_cmp_ge_u32 s73, 64')
        A('s_cbranch_scc1 L_post_out')
        A('s_cmp_eq_u32 s76, 0')
        A(f's_cbranch_scc1 L_{nm}_go')
        A('s_cmp_eq_u32 s77, 0')
        A(f's_cbranch_scc1 {ret_label}')
        A('s_cmp_eq_u32 s78, 0')
        A(f's_cbranch_scc1 {ret_label}')
        A('s_sub_u32 s78, s78, 1')
        A.label(f'L_{nm}_go')
        A('s_mov_b32 s21, s73')
        pst(A, 92)
        def spin(tg):
            A('s_cmp_lg_u32 s20, 0')
            A(f's_cbranch_scc1 L_{nm}_{tg}2')
            A('s_mov_b32 s42, 0')
            A.label(f'L_{nm}_{tg}')
            check_issue(A, ro, 73)
            A('s_waitcnt vmcnt(0)')
            A('v_cmp_lt_u32 vcc, v13, v14')
            A(f's_cbranch_vccz L_{nm}_{tg}2')
            NL, SL = int(os.environ.get('NL', '10')), int(os.environ.get('SL', '60'))
            if NL:
                A('v_readlane_b32 s43, v13, 62')
                A('s_cmp_lg_u32 s43, 0')
                A(f's_cbranch_scc1 L_{nm}_{tg}_nd')
                A(f's_mov_b32 s43, {NL}')
                A.label(f'L_{nm}_{tg}_dl')
                for _ in range(8): A('s_nop 15')
                A('s_sub_u32 s43, s43, 1')
                A('s_cmp_lg_u32 s43, 0')
                A(f's_cbranch_scc1 L_{nm}_{tg}_dl')
                A.label(f'L_{nm}_{tg}_nd')
            A('s_add_u32 s42, s42, 1')
            A('s_cmp_lt_u32 s42, s44')
            A(f's_cbranch_scc1 L_{nm}_{tg}')
            A('s_mov_b32 s44, 0')
            A.label(f'L_{nm}_{tg}2')
            A('s_barrier')
        if ro < 2:
            A('s_cmp_lg_u32 s77, 0')
            A(f's_cbranch_scc1 L_{nm}_safe')
            A('s_and_b32 s22, s73, 3')
            if ro == 0:
                A('s_cmp_ge_u32 s22, 2')
                A(f's_cbranch_scc1 L_{nm}_safe')
            else:
                A('s_cmp_eq_u32 s73, 1')
                A('s_cselect_b32 s22, 0, s22')
                A('s_cmp_lg_u32 s22, 0')
                A(f's_cbranch_scc1 L_{nm}_safe')
            spin('sq')
            A('s_mov_b32 s77, 1')
            A.label(f'L_{nm}_safe')
        early(A)
        if verify: verify(A)
        A('s_cmp_lg_u32 s77, 0')
        A(f's_cbranch_scc1 L_{nm}_rdy')
        spin('sp')
        A.label(f'L_{nm}_rdy')
        pst(A, 93)
        body(A)
        pst(A, 94)
        if ro == 0:
            A('s_add_u32 s73, s73, 2')
            A('s_cmp_eq_u32 s79, 0')
            A(f's_cbranch_scc1 L_{nm}_nd')
            A('s_cmp_lt_u32 s21, 2')
            A(f's_cbranch_scc1 L_{nm}_nd')
            A('s_sub_u32 s73, s21, 2')
            A('s_mov_b32 s75, 4')
            A.label(f'L_{nm}_nd')
        else:
            A('s_add_u32 s73, s73, 2')
        A('s_cmp_lg_u32 s20, 0')
        A(f's_cbranch_scc1 L_{nm}_f1')
        check_issue(A, ro, 73)
        A('s_waitcnt vmcnt(0)')
        decide(A)
        A('s_barrier')
        if fidx is not None:
            A('s_lshl_b32 s22, s21, 8')
            A('s_lshl_b32 s23, s74, 2')
            A('s_add_u32 s22, s22, s23')
            A(f's_add_u32 s22, s22, {TF2 + 4*fidx}')
            A('v_mov_b32 v4, 1')
            A('v_mov_b32 v5, 0')
            A('s_mov_b64 exec, 1')
            A('buffer_store_dword v4, v5, s[4:7], s22 offen sc1')
            A('s_mov_b64 exec, -1')
        pst_flush(A, ro)
        A(f's_branch L_{nm}_f2')
        A.label(f'L_{nm}_f1')
        A('s_waitcnt vmcnt(0)')
        A('s_barrier')
        A.label(f'L_{nm}_f2')
        if ro in (0, 4):
            A(f's_cmp_lg_u32 s75, {ro}')
            A('s_cbranch_scc1 L_post_disp2')
        read_dec(A)
        A(f's_branch L_{nm}_loop')
    A.label('L_post_disp2')
    A('s_barrier')
    A('s_branch L_post_disp')
    A.label('L_post_out')
    A('s_cmp_eq_u32 s76, 0')
    A('s_cbranch_scc1 L_post_done')
    A(f's_branch {ret_label}')
    A.label('L_post_done')
```

```python
import sys, os
sys.path.insert(0, os.path.dirname(__file__))
from asmlib import *
from layout import WS
from k_prep import gen_prep, gen_ln
from k_gemm import gen_qk, gen_vo
from k_post import gen_e1, gen_e2, gen_f1, gen_f2
from k_chain import gen_chain
NAME = 'adaLN_cond__memory_aug_recurrent_mem_tr__dense_activation_squared_relu__prompt'
def build(upto=None):
    ref = open(f'cdna_kernels/{NAME}.s.ref').read()
    hdr = [l for l in ref.split('\n') if l.startswith('; Kernarg') or l.startswith(';   offset')]
    A = Asm()
    ks = []
    ks.append(gen_prep(A))
    ks.append(gen_chain(A))
    if os.environ.get('OLDPOST'):
        ks.append(gen_e1(A))
        ks.append(gen_e2(A))
        ks.append(gen_ln(A, 'k_ln2_kernel', WS['X1'], 3, 4, WS['H2F']))
        ks.append(gen_f1(A))
        ks.append(gen_f2(A))
    launches = [k[2] for k in ks]
    if upto: launches = launches[:upto]
    out = '\n'.join(hdr) + '\n' + '\n'.join(launches) + '\n'
    out += '.amdgcn_target "amdgcn-amd-amdhsa--gfx950"\n.text\n' + A.text()
    out += ''.join(k[1] for k in ks)
    return out
if __name__ == '__main__':
    upto = int(sys.argv[1]) if len(sys.argv) > 1 else None
    upto = upto or None
    dst = sys.argv[2] if len(sys.argv) > 2 else f'cdna_kernels/{NAME}.s'
    open(dst, 'w').write(build(upto))
```

```python
import re
from asmlib import *
from layout import WS
from k_gemm import wave_ids, offs

TF = WS['FLAGS'] + 32768
NWORK = 144
NTASK = 1280

def gemm_deep(A, RA, RB, NKS, NST, vA, vB, strA, strB, acc, fbase, sk=28):
    R = RA + RB
    def fr(st, i): return fbase + (st * R + i) * 4
    def loads(k):
        st = k % NST
        A(f's_mov_b32 s{sk}, {k*strA}')
        if strB != strA: A(f's_mov_b32 s{sk+1}, {k*strB}')
        for i in range(RA):
            b = fr(st, i)
            A(f'buffer_load_dwordx4 a[{b}:{b+3}], v{vA+i}, s[4:7], s{sk} offen')
        for j in range(RB):
            b = fr(st, RA + j)
            A(f'buffer_load_dwordx4 a[{b}:{b+3}], v{vB+j}, s[4:7], s{sk + (1 if strB != strA else 0)} offen')
    for k in range(min(NST - 1, NKS)): loads(k)
    for k in range(NKS):
        if k + NST - 1 < NKS: loads(k + NST - 1)
        y = min(NST - 1, NKS - 1 - k)
        A(f's_waitcnt vmcnt({R*y})')
        st = k % NST
        for i in range(RA):
            for j in range(RB):
                a = fr(st, i); b = fr(st, RA + j)
                d = acc + (i * RB + j) * 4
                c = '0' if k == 0 else f'v[{d}:{d+3}]'
                A(f'v_mfma_f32_16x16x32_bf16 v[{d}:{d+3}], a[{a}:{a+3}], a[{b}:{b+3}], {c}')
    A('s_nop 7')
    A('s_nop 7')

def qk_task(A):
    A('s_and_b32 s23, s20, 1')
    A('s_lshr_b32 s24, s20, 1')
    assert WS['WkF'] == WS['WqF'] + 384 * 20 * 1024
    assert WS['KF'] == WS['QF'] + 128 * 192 * 1024
    A('s_lshl_b32 s25, s22, 4')
    A('s_lshl_b32 s26, s24, 3')
    A('s_add_u32 s25, s25, s26')
    A('s_lshl_b32 s26, s21, 3')
    A('s_lshl_b32 s27, s23, 2')
    A('s_add_u32 s26, s26, s27')
    RA, RB = 8, 4
    VA, VB = 4, 12
    A(f's_mul_i32 s27, s25, {20*1024}')
    A(f's_add_u32 s27, s27, {WS["WqF"]}')
    offs(A, VA, RA, 27, 20 * 1024)
    A(f's_mul_i32 s27, s26, {20*1024}')
    A(f's_add_u32 s27, s27, {WS["H1F"]}')
    offs(A, VB, RB, 27, 20 * 1024)
    ACC, T = 16, 144
    gemm_deep(A, RA, RB, 20, 5, VA, VB, 1024, 1024, ACC, 0)
    A('s_cmp_ge_u32 s25, 384')
    A('s_cselect_b32 s30, 384, 0')
    A(f's_cselect_b32 s32, {128*192*1024}, 0')
    A('s_sub_u32 s30, s25, s30')
    A('s_lshr_b32 s30, s30, 1')
    A(f's_add_u32 s32, s32, {WS["QF"]}')
    A('s_mul_i32 s31, s26, 192')
    A('s_add_u32 s31, s31, s30')
    A('s_lshl_b32 s31, s31, 10')
    A('s_add_u32 s32, s32, s31')
    for j in range(RB):
        for ip in range(RA // 2):
            a = ACC + ((2 * ip) * RB + j) * 4
            b = ACC + ((2 * ip + 1) * RB + j) * 4
            t = T + ((j * (RA // 2) + ip) % 16) * 4
            A(f'v_cvt_pk_bf16_f32 v{t}, v{a}, v{a+1}')
            A(f'v_cvt_pk_bf16_f32 v{t+1}, v{a+2}, v{a+3}')
            A(f'v_cvt_pk_bf16_f32 v{t+2}, v{b}, v{b+1}')
            A(f'v_cvt_pk_bf16_f32 v{t+3}, v{b+2}, v{b+3}')
            A(f's_add_u32 s31, s32, {(j*192 + ip)*1024}')
            A(f'buffer_store_dwordx4 v[{t}:{t+3}], v2, s[4:7], s31 offen sc1')

def vo_task(A, ident, sc='sc1', wv='s[8:11]', tag='vo'):
    VA, VB, ACC, VOP = 4, 10, 20, 132
    if not ident:
        A('s_and_b32 s24, s20, 1')
        A('s_lshr_b32 s25, s20, 1')
        A('s_mul_i32 s27, s22, 12')
        A('s_mul_i32 s26, s24, 6')
        A('s_add_u32 s27, s27, s26')
        A(f's_mul_i32 s27, s27, {20*1024}')
        A(f's_add_u32 s27, s27, {WS["WvF"]}')
        offs(A, VA, 6, 27, 20 * 1024)
        A('s_lshl_b32 s27, s23, 1')
        A('s_lshl_b32 s26, s25, 2')
        A('s_add_u32 s27, s27, s26')
        A(f's_mul_i32 s27, s27, {20*1024}')
        A(f's_add_u32 s27, s27, {WS["H1F"]}')
        offs(A, VB, 4, 27, 20 * 1024)
        gemm_deep(A, 6, 4, 20, 6, VA, VB, 1024, 1024, ACC, 0)
        fr = []
        for j in range(4):
            for ks in range(3):
                a = ACC + ((2 * ks) * 4 + j) * 4
                b = ACC + ((2 * ks + 1) * 4 + j) * 4
                t = VOP + (j * 3 + ks) * 4
                A(f'v_cvt_pk_bf16_f32 v{t}, v{a}, v{a+1}')
                A(f'v_cvt_pk_bf16_f32 v{t+1}, v{a+2}, v{a+3}')
                A(f'v_cvt_pk_bf16_f32 v{t+2}, v{b}, v{b+1}')
                A(f'v_cvt_pk_bf16_f32 v{t+3}, v{b+2}, v{b+3}')
                fr.append((t, (j * 6 + ks) * 1024))
        A('s_mul_i32 s26, s25, 24')
        A('s_mul_i32 s27, s24, 3')
        A('s_add_u32 s26, s26, s27')
        A('s_lshl_b32 s26, s26, 10')
        A('v_add_u32 v4, s26, v2')
    else:
        A('s_sub_u32 s27, s23, 64')
        A('s_add_u32 s27, s27, s20')
        A(f's_mul_i32 s27, s27, {32*12288}')
        A(f's_mul_i32 s28, s22, 384')
        A('s_add_u32 s27, s27, s28')
        A('v_and_b32 v4, 15, v1')
        A('v_lshrrev_b32 v5, 4, v1')
        A('v_mul_u32_u24 v4, 12288, v4')
        A('v_lshlrev_b32 v5, 3, v5')
        A('v_add_u32 v4, v4, v5')
        fr = []
        for j in range(2):
            for ks in range(6):
                t = VOP + (j * 6 + ks) * 4
                A(f'buffer_load_dwordx2 v[{t}:{t+1}], v4, {wv}, s27 offen offset:{ks*64}')
                A(f'buffer_load_dwordx2 v[{t+2}:{t+3}], v4, {wv}, s27 offen offset:{ks*64+32}')
                fr.append((t, (j * 6 + ks) * 1024))
            if j == 0:
                A(f's_add_u32 s27, s27, {16*12288}')
        A('s_mul_i32 s26, s20, 12288')
        A('v_add_u32 v4, s26, v2')
        A('s_waitcnt vmcnt(0)')
    for t, o in fr:
        A(f'ds_write_b128 v4, v[{t}:{t+3}] offset:{o}')
    A('s_mul_i32 s27, s22, 40')
    A('s_mul_i32 s26, s20, 10')
    A('s_add_u32 s27, s27, s26')
    A(f's_mul_i32 s27, s27, {6*1024}')
    A(f's_add_u32 s27, s27, {WS["WoF"]}')
    A('s_lshl_b32 s28, s23, 5')
    A('s_add_u32 s28, s28, s22')
    A('s_mul_i32 s28, s28, 40')
    A('s_add_u32 s28, s28, s26')
    A('s_lshl_b32 s28, s28, 10')
    A(f's_add_u32 s28, s28, {WS["VOF"]}')
    assert WS['WVOF'] == WS['VOF'] + 64 * 32 * 40 * 1024
    SL = [20, 44, 68, 92, 180, 204, 228]
    NST = 7
    AC = 116
    OUT = 132
    A('v_add_u32 v3, 4096, v2')
    def ld(ct):
        for ks in range(6):
            b = SL[ct % NST] + ks * 4
            A(f'buffer_load_dwordx4 v[{b}:{b+3}], v{2 if ks < 4 else 3}, s[4:7], s27 offen offset:{(ks%4)*1024}')
        A(f's_add_u32 s27, s27, {6*1024}')
    for ct in range(NST - 1): ld(ct)
    A('s_waitcnt lgkmcnt(0)')
    A('s_barrier')
    A('v_add_u32 v4, 16384, v2')
    A('v_add_u32 v5, 32768, v2')
    for f in range(48):
        A(f'ds_read_b128 a[{f*4}:{f*4+3}], v{[2,4,5][f//16]} offset:{(f%16)*1024}')
    A('s_waitcnt lgkmcnt(0)')
    def mm(u):
        ct, sg = u // 4, u % 4
        ac = AC + (u & 1) * 8
        for j in range(2):
            for ks in range(6):
                a = ((2 * sg + j) * 6 + ks) * 4
                b = SL[ct % NST] + ks * 4
                c = '0' if ks == 0 else f'v[{ac+4*j}:{ac+4*j+3}]'
                A(f'v_mfma_f32_16x16x32_bf16 v[{ac+4*j}:{ac+4*j+3}], a[{a}:{a+3}], v[{b}:{b+3}], {c}')
    def fin(u):
        ct, sg = u // 4, u % 4
        ac = AC + (u & 1) * 8
        o = OUT + (u & 3) * 4
        A(f'v_cvt_pk_bf16_f32 v{o}, v{ac}, v{ac+1}')
        A(f'v_cvt_pk_bf16_f32 v{o+1}, v{ac+2}, v{ac+3}')
        A(f'v_cvt_pk_bf16_f32 v{o+2}, v{ac+4}, v{ac+5}')
        A(f'v_cvt_pk_bf16_f32 v{o+3}, v{ac+6}, v{ac+7}')
        A(f's_add_u32 s29, s28, {(sg*32*40 + ct)*1024}')
        A(f'buffer_store_dwordx4 v[{o}:{o+3}], v2, s[4:7], s29 offen {sc}')
    for ct in range(10):
        if ct + NST - 1 < 10: ld(ct + NST - 1)
        y = min(NST - 1, 9 - ct)
        A(f's_waitcnt vmcnt({6*y})')
        for sg in range(4):
            u = ct * 4 + sg
            mm(u)
            if u > 0: fin(u - 1)
    A('s_nop 7')
    A('s_nop 7')
    fin(39)

def wait_row(A, tag, row):
    A('v_and_b32 v22, 63, v0')
    A('v_lshlrev_b32 v22, 3, v22')
    A(f's_mov_b32 s68, {TF + row*512}')
    A('s_mov_b32 s42, 0')
    A.label(f'L_{tag}_fl')
    A('buffer_load_dwordx2 v[20:21], v22, s[4:7], s68 offen sc1')
    A('s_waitcnt vmcnt(0)')
    A('v_and_b32 v20, v20, v21')
    A('v_cmp_ne_u32 vcc, 1, v20')
    A(f's_cbranch_vccz L_{tag}_flok')
    A('s_add_u32 s42, s42, 1')
    A('s_cmp_lt_u32 s42, s44')
    A(f's_cbranch_scc1 L_{tag}_fl')
    A('s_mov_b32 s44, 0')
    A.label(f'L_{tag}_flok')

def set_flag(A, tag, soff):
    A('s_waitcnt vmcnt(0)')
    A('s_barrier')
    A('s_cmp_lg_u32 s20, 0')
    A(f's_cbranch_scc1 L_{tag}_nofl')
    A(f's_add_u32 s{soff}, s{soff}, {TF}')
    A('v_mov_b32 v4, 1')
    A('v_mov_b32 v5, 0')
    A('s_mov_b64 exec, 1')
    A(f'buffer_store_dword v4, v5, s[4:7], s{soff} offen sc1')
    A('s_mov_b64 exec, -1')
    A.label(f'L_{tag}_nofl')

def gen_pre(A):
    from k_prep import gen_ln
    A('s_cmp_ge_u32 s2, 192')
    A('s_cbranch_scc1 L_pre_done')
    A('s_cmp_ge_u32 s2, 32')
    A('s_cbranch_scc1 L_pre_wvo')
    A('s_cmp_ge_u32 s2, 16')
    A('s_cbranch_scc1 L_pre_done')
    A('s_add_u32 s72, s2, 64')
    A('s_mov_b32 s69, 1')
    A('s_branch L_w_task')
    A.label('L_pre_wvo')
    A('s_sub_u32 s24, s2, 32')
    magic_div(A, 22, 24, 5)
    A('s_mul_i32 s21, s22, 5')
    A('s_sub_u32 s21, s24, s21')
    A('s_lshl_b32 s23, s21, 2')
    A('s_add_u32 s23, s23, 64')
    vo_task(A, True, wv='s[12:15]')
    A('s_sub_u32 s22, s2, 32')
    A('s_lshl_b32 s22, s22, 2')
    A(f's_add_u32 s22, s22, {17*512}')
    set_flag(A, 'prewvo', 22)
    A.label('L_pre_done')

def gen_worker(A):
    from k_ptask import post_init, post_init2, gen_post
    post_init(A)
    post_init2(A)
    A('s_mov_b32 s69, 0')
    A('s_getreg_b32 s66, hwreg(HW_REG_XCC_ID, 0, 4)')
    A('s_and_b32 s66, s66, 7')
    A('s_mov_b32 s67, 0')
    A('s_sub_u32 s72, s2, 192')
    A('s_cmp_ge_u32 s2, 192')
    A('s_cbranch_scc1 L_w_task')
    A.label('L_w_next')
    A('s_cmp_lg_u32 s20, 0')
    A('s_cbranch_scc1 L_w_nq')
    A('v_mov_b32 v4, 1')
    A('v_mov_b32 v5, 0')
    A('s_lshl_b32 s22, s66, 7')
    A(f's_add_u32 s22, s22, {WS["TF2"] + 17408}')
    A('s_mov_b64 exec, 1')
    A('buffer_atomic_add v4, v5, s[4:7], s22 offen sc0')
    A('s_waitcnt vmcnt(0)')
    A(f'v_mov_b32 v5, {49152 + 64}')
    A('ds_write_b32 v5, v4')
    A('s_mov_b64 exec, -1')
    A('s_waitcnt lgkmcnt(0)')
    A.label('L_w_nq')
    A('s_barrier')
    A(f'v_mov_b32 v5, {49152 + 64}')
    A('ds_read_b32 v4, v5')
    A('s_waitcnt lgkmcnt(0)')
    A('v_readfirstlane_b32 s70, v4')
    A('s_barrier')
    A('s_cmp_lt_u32 s70, 150')
    A('s_cbranch_scc1 L_w_got')
    A('s_add_u32 s66, s66, 1')
    A('s_and_b32 s66, s66, 7')
    A('s_add_u32 s67, s67, 1')
    A('s_cmp_lt_u32 s67, 8')
    A('s_cbranch_scc1 L_w_next')
    A('s_branch L_w_end')
    A.label('L_w_got')
    magic_div(A, 21, 70, 10)
    A('s_mul_i32 s22, s21, 10')
    A('s_sub_u32 s22, s70, s22')
    A('s_add_u32 s21, s21, 1')
    A('s_lshl_b32 s23, s66, 2')
    A('s_add_u32 s23, s23, s22')
    A('s_mul_i32 s24, s66, 6')
    A('s_add_u32 s24, s24, s22')
    A('s_add_u32 s24, s24, 28')
    A('s_cmp_lt_u32 s22, 4')
    A('s_cselect_b32 s71, s23, s24')
    A('s_mul_i32 s72, s21, 80')
    A('s_add_u32 s72, s72, s71')
    A.label('L_w_task')
    magic_div(A, 21, 72, 80)
    A('s_mul_i32 s22, s21, 80')
    A('s_sub_u32 s71, s72, s22')
    A('s_cmp_lt_u32 s71, 32')
    A('s_cbranch_scc1 L_w_vo')
    A('s_sub_u32 s22, s71, 32')
    qk_task(A)
    A('s_branch L_w_fin')
    A.label('L_w_vo')
    A('s_mov_b32 s22, s71')
    A('s_lshl_b32 s23, s21, 2')
    vo_task(A, False)
    A.label('L_w_fin')
    A('s_waitcnt vmcnt(0)')
    A('s_barrier')
    A('s_cmp_lg_u32 s20, 0')
    A('s_cbranch_scc1 L_w_nofl')
    A('s_lshl_b32 s22, s21, 9')
    A('s_lshl_b32 s23, s71, 2')
    A('s_add_u32 s22, s22, s23')
    A(f's_add_u32 s22, s22, {TF}')
    A('v_mov_b32 v4, 1')
    A('v_mov_b32 v5, 0')
    A('s_mov_b64 exec, 1')
    A('buffer_store_dword v4, v5, s[4:7], s22 offen sc1')
    A('s_mov_b64 exec, -1')
    import os
    if os.environ.get('PROF') == '3':
        A('s_memrealtime s[98:99]')
        A('s_waitcnt lgkmcnt(0)')
        A('v_mov_b32 v4, s98')
        A('s_lshl_b32 s22, s72, 2')
        A(f's_add_u32 s22, s22, {WS["FLAGS"] + 49152}')
        A('buffer_store_dword v4, v5, s[4:7], s22 offen')
    A.label('L_w_nofl')
    A('s_cmp_lg_u32 s69, 0')
    A('s_cbranch_scc1 L_pre_done')
    A('s_branch L_post_try')
    A.label('L_w_end')
    A('s_mov_b32 s76, 0')
    gen_post(A, 'L_w_next')
    A('s_endpgm')
```

```python
from asmlib import *
from layout import WS

NWG_MOD = 60
NWG_LN = 32
NWG_PREP = 452
NW = NWG_PREP * 4

def rne_bf16(A, v, tmp):
    A(f'v_cvt_pk_bf16_f32 v{tmp}, v{v}, v{v}')
    A(f'v_lshlrev_b32 v{v}, 16, v{tmp}')

def gen_prep(A):
    name = 'k_prep_kernel'
    kernel_header(A, name)
    A(f's_cmp_ge_u32 s2, {NWG_MOD + NWG_LN + NWG_PREP}')
    A('s_cbranch_scc1 L_prep_end')
    import os
    PV = os.environ.get('PV', '')
    if PV == 'noconv':
        A(f's_cmp_ge_u32 s2, {NWG_MOD + NWG_LN}')
        A('s_cbranch_scc1 L_prep_end')
    if PV == 'nomod':
        A(f's_cmp_lt_u32 s2, {NWG_MOD + NWG_LN}')
        A('s_cbranch_scc1 L_prep_end')
    if PV == 'null':
        A('s_branch L_prep_end')
    if PV == 'modonly':
        A(f's_cmp_ge_u32 s2, {NWG_MOD}')
        A('s_cbranch_scc1 L_prep_end')
    A(f's_cmp_lt_u32 s2, {NWG_MOD}')
    A('s_cbranch_scc1 L_mod')
    A(f's_cmp_lt_u32 s2, {NWG_MOD + NWG_LN}')
    A('s_cbranch_scc1 L_prep_ln')
    srds(A, [('ws', 4), ('Wq', 8), ('Wk', 12), ('Wv', 16), ('Wo', 20), ('w1', 24), ('w2', 28), ('mem0', 32)])
    A('v_lshrrev_b32 v1, 6, v0')
    A('v_and_b32 v2, 63, v0')
    A('s_nop 0')
    A('v_readfirstlane_b32 s40, v1')
    A(f's_sub_u32 s41, s2, {NWG_MOD + NWG_LN}')
    A('s_lshl_b32 s41, s41, 2')
    A('s_add_u32 s40, s40, s41')
    A('v_and_b32 v3, 15, v2')
    A('v_lshrrev_b32 v4, 4, v2')
    A('v_lshlrev_b32 v5, 4, v2')
    A('v_lshlrev_b32 v3, 1, v3')
    mats = [
        ('Wq', 8, 12288, 20, 96, 1, 0, 0, WS['WqF']),
        ('Wk', 12, 12288, 20, 96, 1, 0, 0, WS['WkF']),
        ('Wv', 16, 12288, 20, 96, 1, 0, 0, WS['WvF']),
        ('Wo', 20, 1280, 6, 10, 32, 192 * 1280, 1, WS['WoF']),
        ('w1', 24, 3072, 20, 24, 1, 0, 0, WS['W1F']),
        ('w2', 28, 1280, 48, 10, 1, 0, 1, WS['W2F']),
    ]
    for mi, (nm, srd, rs, nks, nnt4, ng, gs, perm, dst) in enumerate(mats):
        A(f's_mov_b32 s42, {rs}')
        for e in range(8):
            if not perm:
                A(f'v_lshlrev_b32 v6, 3, v4')
                A(f'v_add_u32 v6, {e}, v6')
            else:
                A(f'v_lshlrev_b32 v6, 2, v4')
                A(f'v_add_u32 v6, {e if e < 4 else 16 + e - 4}, v6')
            A(f'v_mul_lo_u32 v6, v6, s42')
            A(f'v_add_u32 v{8+e}, v6, v3')
        nq = nnt4 * nks * ng
        shift = (mi * 701) % NW
        A(f's_add_u32 s43, s40, {shift}')
        A(f's_cmp_ge_u32 s43, {NW}')
        A(f's_cselect_b32 s44, {NW}, 0')
        A(f's_sub_u32 s43, s43, s44')
        lp = f'L_prep_loop{mi}'
        le = f'L_prep_done{mi}'
        A.label(lp)
        A(f's_cmp_ge_u32 s43, {nq}')
        A(f's_cbranch_scc1 {le}')
        if ng > 1:
            magic_div(A, 45, 43, nnt4 * nks)
            A(f's_mul_i32 s46, s45, {nnt4*nks}')
            A('s_sub_u32 s46, s43, s46')
        else:
            A('s_mov_b32 s45, 0')
            A('s_mov_b32 s46, s43')
        magic_div(A, 47, 46, nks)
        A(f's_mul_i32 s48, s47, {nks}')
        A('s_sub_u32 s48, s46, s48')
        A(f's_mul_i32 s49, s45, {gs}')
        A(f's_mul_i32 s50, s48, {32*rs}')
        A('s_add_u32 s49, s49, s50')
        A('s_lshl_b32 s50, s47, 7')
        A('s_add_u32 s49, s49, s50')
        A(f's_mul_i32 s50, s45, {nnt4*4*nks}')
        A(f's_mul_i32 s51, s47, {4*nks}')
        A('s_add_u32 s50, s50, s51')
        A('s_add_u32 s50, s50, s48')
        A('s_lshl_b32 s50, s50, 10')
        A(f's_add_u32 s50, s50, {dst}')
        for j in range(4):
            for e in range(8):
                A(f'buffer_load_ushort v{32 + j*8 + e}, v{8+e}, s[{srd}:{srd+3}], s49 offen offset:{32*j}')
        A('s_waitcnt vmcnt(0)')
        for j in range(4):
            for e2 in range(4):
                A(f'v_lshl_or_b32 v{16 + j*4 + e2}, v{32 + j*8 + 2*e2 + 1}, 16, v{32 + j*8 + 2*e2}')
        for j in range(4):
            A(f'buffer_store_dwordx4 v[{16+j*4}:{19+j*4}], v5, s[4:7], s50 offen')
            if j < 3:
                A(f's_add_u32 s50, s50, {nks*1024}')
        A(f's_add_u32 s43, s43, {NW}')
        A(f's_branch {lp}')
        A.label(le)
    st = WS['MEMB'] + 10240
    en = WS['PB'] + 64 * 20480
    nchunks = (en - st) // 1024
    A('v_mov_b32 v16, -1')
    A('v_mov_b32 v17, -1')
    A('v_mov_b32 v18, -1')
    A('v_mov_b32 v19, -1')
    A('s_mov_b32 s43, s40')
    A.label('L_fill_loop')
    A(f's_cmp_ge_u32 s43, {nchunks}')
    A('s_cbranch_scc1 L_fill_done')
    A('s_lshl_b32 s50, s43, 10')
    A(f's_add_u32 s50, s50, {st}')
    A('buffer_store_dwordx4 v[16:19], v5, s[4:7], s50 offen')
    A(f's_add_u32 s43, s43, {NW}')
    A('s_branch L_fill_loop')
    A.label('L_fill_done')
    A('s_cmp_ge_u32 s40, 19')
    A('s_cbranch_scc1 L_tf_done')
    A('s_cmp_ge_u32 s40, 16')
    A('s_cselect_b32 s50, 16, 40')
    A('s_cmp_eq_u32 s40, 17')
    A('s_cselect_b32 s50, 64, s50')
    A('s_cmp_eq_u32 s40, 0')
    A('s_cselect_b32 s50, 52, s50')
    A('v_cmp_le_u32 vcc, s50, v2')
    A('v_cndmask_b32 v20, 0, 1, vcc')
    A('v_mov_b32 v21, v20')
    A('v_lshlrev_b32 v22, 3, v2')
    A('s_lshl_b32 s50, s40, 9')
    A(f's_add_u32 s50, s50, {WS["FLAGS"] + 32768}')
    A('buffer_store_dwordx2 v[20:21], v22, s[4:7], s50 offen')
    A.label('L_tf_done')
    A('s_sub_u32 s43, s40, 32')
    A('s_cmp_ge_u32 s43, 18')
    A('s_cbranch_scc1 L_tf2_done')
    A('v_mov_b32 v16, 0')
    A('v_mov_b32 v17, 0')
    A('v_mov_b32 v18, 0')
    A('v_mov_b32 v19, 0')
    A('s_lshl_b32 s50, s43, 10')
    A(f's_add_u32 s50, s50, {WS["TF2"]}')
    A('buffer_store_dwordx4 v[16:19], v5, s[4:7], s50 offen')
    A.label('L_tf2_done')
    A('s_sub_u32 s43, s40, 64')
    A('s_cmp_ge_u32 s43, 32')
    A('s_cbranch_scc1 L_tf3_done')
    A('v_mov_b32 v16, 0')
    A('v_mov_b32 v17, 0')
    A('v_mov_b32 v18, 0')
    A('v_mov_b32 v19, 0')
    A('s_lshl_b32 s50, s43, 10')
    A(f's_add_u32 s50, s50, {WS["TF3"]}')
    A('buffer_store_dwordx4 v[16:19], v5, s[4:7], s50 offen')
    A.label('L_tf3_done')
    A(f's_sub_u32 s43, s40, {NW-10}')
    A('s_cmp_ge_u32 s43, 10')
    A('s_cbranch_scc1 L_prep_end')
    A('s_lshl_b32 s50, s43, 6')
    A('v_add_u32 v6, s50, v2')
    A('v_and_b32 v7, 7, v6')
    A('v_mul_u32_u24 v7, 1280, v7')
    A('v_lshrrev_b32 v8, 3, v6')
    A('v_lshlrev_b32 v8, 4, v8')
    A('v_add_u32 v7, v7, v8')
    A('v_lshlrev_b32 v6, 4, v6')
    A('buffer_load_dwordx4 v[16:19], v7, s[32:35], 0 offen')
    A('s_waitcnt vmcnt(0)')
    A(f'buffer_store_dwordx4 v[16:19], v6, s[4:7], 0 offen offset:{WS["MEMB"]}') if WS["MEMB"] < 4096 else A(f's_mov_b32 s50, {WS["MEMB"]}\nbuffer_store_dwordx4 v[16:19], v6, s[4:7], s50 offen')
    A('s_branch L_prep_end')
    A.label('L_mod')
    srds(A, [('ws', 4), ('c', 8), ('wmod', 12), ('dbg', 24)])
    A('v_lshrrev_b32 v1, 6, v0')
    A('v_and_b32 v2, 63, v0')
    A('v_and_b32 v3, 7, v2')
    A('v_lshrrev_b32 v4, 3, v2')
    A('v_mul_u32_u24 v5, 160, v1')
    A('v_add_u32 v5, v5, v4')
    A('v_lshlrev_b32 v6, 1, v5')
    A('v_mul_u32_u24 v7, 7680, v5')
    A('v_lshlrev_b32 v8, 4, v3')
    A('v_add_u32 v7, v7, v8')
    A('s_lshl_b32 s20, s2, 7')
    for i in range(20):
        A(f'buffer_load_ushort v{20+i}, v6, s[8:11], 0 offen offset:{16*i}')
    A('v_add_u32 v7, s20, v7')
    for i in range(20):
        A(f's_mov_b32 s21, {i*8*7680}')
        A(f'buffer_load_dwordx4 v[{40+4*i}:{43+4*i}], v7, s[12:15], s21 offen')
    for e in range(8):
        A(f'v_mov_b32 v{10+e}, 0')
    A('s_waitcnt vmcnt(20)')
    for i in range(20):
        v = 20 + i
        A(f'v_lshlrev_b32 v{v}, 16, v{v}')
        A(f'v_mul_f32 v18, 0xbfb8aa3b, v{v}')
        A('v_exp_f32 v18, v18')
        A('s_nop 0')
        A('v_add_f32 v18, 1.0, v18')
        A('v_rcp_f32 v18, v18')
        A('s_nop 0')
        A(f'v_mul_f32 v{v}, v{v}, v18')
        rne_bf16(A, v, 18)
    for i in range(20):
        A(f's_waitcnt vmcnt({19-i})')
        for q in range(4):
            src = 40 + 4 * i + q
            A(f'v_lshlrev_b32 v18, 16, v{src}')
            A(f'v_and_b32 v19, 0xffff0000, v{src}')
            A(f'v_fmac_f32 v{10+2*q}, v{20+i}, v18')
            A(f'v_fmac_f32 v{11+2*q}, v{20+i}, v19')
    A('v_lshlrev_b32 v5, 3, v1')
    A('v_add_u32 v5, v5, v4')
    A('v_lshlrev_b32 v5, 8, v5')
    A('v_lshlrev_b32 v6, 5, v3')
    A('v_add_u32 v5, v5, v6')
    A('ds_write_b128 v5, v[10:13]')
    A('ds_write_b128 v5, v[14:17] offset:16')
    A('s_waitcnt lgkmcnt(0)')
    A('s_barrier')
    A('v_cmp_gt_u32 vcc, 64, v0')
    A('s_and_saveexec_b64 s[22:23], vcc')
    A('s_cbranch_execz L_prep_end')
    A('v_lshlrev_b32 v5, 2, v0')
    for i in range(32):
        A(f'ds_read_b32 v{20+i}, v5 offset:{256*i}')
    A('s_waitcnt lgkmcnt(0)')
    for i in range(1, 32):
        A(f'v_add_f32 v20, v20, v{20+i}')
    A('v_cvt_pk_bf16_f32 v20, v20, v20')
    A('v_lshlrev_b32 v5, 1, v0')
    A('v_add_u32 v5, s20, v5')
    A(f'buffer_store_short v20, v5, s[4:7], 0 offen offset:{WS["MODB"]} sc1')
    A('s_waitcnt vmcnt(0)')
    A('v_mov_b32 v20, 1')
    A('v_mov_b32 v21, 0')
    A('s_lshl_b32 s21, s2, 2')
    A('s_mov_b64 exec, 1')
    A('buffer_store_dword v20, v21, s[24:27], s21 offen sc1')
    A('s_endpgm')
    A.label('L_prep_ln')
    srds(A, [('ws', 4), ('x', 8), ('dbg', 24)])
    A('v_lshrrev_b32 v1, 6, v0')
    A('s_nop 0')
    A('v_readfirstlane_b32 s40, v1')
    A('v_and_b32 v0, 63, v0')
    A(f's_sub_u32 s2, s2, {NWG_MOD}')
    A('s_lshl_b32 s2, s2, 2')
    A('s_add_u32 s2, s2, s40')
    def wm():
        A('v_lshlrev_b32 v11, 2, v0')
        A('s_mov_b32 s42, 0')
        A('s_mov_b32 exec_hi, 0x0fffffff')
        A.label('L_prep_wm')
        A('buffer_load_dword v12, v11, s[24:27], 0 offen sc1')
        A('s_waitcnt vmcnt(0)')
        A('v_cmp_ne_u32 vcc, 1, v12')
        A('s_cbranch_vccz L_prep_wmok')
        A('s_add_u32 s42, s42, 1')
        A('s_cmp_lt_u32 s42, 400000')
        A('s_cbranch_scc1 L_prep_wm')
        A.label('L_prep_wmok')
        A('s_mov_b64 exec, -1')
    gen_ln(A, 'ln1', 'x', 0, 1, WS['H1F'], embedded=True, wait_mod=wm)
    A.label('L_prep_end')
    A('s_endpgm')
    return name, kernel_desc(name, 256), f'; @launch kernel={name} grid=({NWG_MOD+NWG_LN+NWG_PREP},1,1) block=(256,1,1) lds=8192'

def gen_ln(A, name, src, s_idx, c_idx, dst, embedded=False, wait_mod=None):
    if not embedded:
        kernel_header(A, name)
        A('s_cmp_ge_u32 s2, 128')
        A(f's_cbranch_scc1 L_{name}_end')
        srds(A, [('ws', 4), ('x', 8)])
    A('v_and_b32 v1, 15, v0')
    A('v_lshrrev_b32 v2, 4, v0')
    A('v_mul_u32_u24 v3, 1280, v1')
    A('v_lshlrev_b32 v4, 4, v2')
    A('v_add_u32 v3, v3, v4')
    A('s_mul_i32 s20, s2, 20480')
    if src == 'x':
        srd = 's[8:11]'
    else:
        srd = 's[4:7]'
        A(f's_add_u32 s20, s20, {src}')
    X = 64
    RAW = 16
    F = 96
    for ks in range(20):
        A(f'buffer_load_dwordx4 v[{RAW+4*ks}:{RAW+4*ks+3}], v3, {srd}, s20 offen offset:{64*ks}')
    A('v_mov_b32 v5, 0')
    for ks in range(20):
        A(f's_waitcnt vmcnt({19-ks})')
        for q in range(4):
            r = RAW + 4 * ks + q
            A(f'v_lshlrev_b32 v{F+8*ks+2*q}, 16, v{r}')
            A(f'v_and_b32 v{F+8*ks+2*q+1}, 0xffff0000, v{r}')
            A(f'v_add_f32 v5, v5, v{F+8*ks+2*q}')
            A(f'v_add_f32 v5, v5, v{F+8*ks+2*q+1}')
    A('v_xor_b32 v6, 16, v0')
    A('v_lshlrev_b32 v6, 2, v6')
    A('v_xor_b32 v7, 32, v0')
    A('v_lshlrev_b32 v7, 2, v7')
    def xred(v):
        A(f'ds_bpermute_b32 v8, v6, v{v}')
        A('s_waitcnt lgkmcnt(0)')
        A(f'v_add_f32 v{v}, v{v}, v8')
        A(f'ds_bpermute_b32 v8, v7, v{v}')
        A('s_waitcnt lgkmcnt(0)')
        A(f'v_add_f32 v{v}, v{v}, v8')
    xred(5)
    A('v_mul_f32 v5, 0x3acccccd, v5')
    A('v_mov_b32 v9, 0')
    for i in range(160):
        A(f'v_sub_f32 v8, v{F+i}, v5')
        A('v_fmac_f32 v9, v8, v8')
    xred(9)
    A('v_mul_f32 v9, 0x3acccccd, v9')
    rne_bf16(A, 9, 8)
    A('v_add_f32 v9, 0x3727c5ac, v9')
    rne_bf16(A, 9, 8)
    A('v_sqrt_f32 v9, v9')
    A('s_nop 0')
    rne_bf16(A, 9, 8)
    A('v_rcp_f32 v9, v9')
    rne_bf16(A, 5, 8)
    A('v_lshlrev_b32 v10, 4, v2')
    if wait_mod: wait_mod()
    for ks in range(20):
        A(f'buffer_load_dwordx4 v[{RAW+4*ks}:{RAW+4*ks+3}], v10, s[4:7], 0 offen offset:{WS["MODB"] + c_idx*1280 + 64*ks}' if (WS["MODB"] + c_idx*1280 + 64*ks) < 4096 else
          f's_mov_b32 s21, {WS["MODB"] + c_idx*1280 + 64*ks}\nbuffer_load_dwordx4 v[{RAW+4*ks}:{RAW+4*ks+3}], v10, s[4:7], s21 offen')
    for i in range(0, 160, 2):
        A(f'v_sub_f32 v{F+i}, v{F+i}, v5')
        A(f'v_sub_f32 v{F+i+1}, v{F+i+1}, v5')
        A(f'v_cvt_pk_bf16_f32 v8, v{F+i}, v{F+i+1}')
        A(f'v_lshlrev_b32 v{F+i}, 16, v8')
        A(f'v_and_b32 v{F+i+1}, 0xffff0000, v8')
        A(f'v_mul_f32 v{F+i}, v{F+i}, v9')
        A(f'v_mul_f32 v{F+i+1}, v{F+i+1}, v9')
        A(f'v_cvt_pk_bf16_f32 v8, v{F+i}, v{F+i+1}')
        A(f'v_lshlrev_b32 v{F+i}, 16, v8')
        A(f'v_and_b32 v{F+i+1}, 0xffff0000, v8')
    for ks in range(20):
        A(f's_waitcnt vmcnt({19-ks})')
        for q in range(4):
            r = RAW + 4 * ks + q
            i = 8 * ks + 2 * q
            A(f'v_lshlrev_b32 v11, 16, v{r}')
            A(f'v_and_b32 v12, 0xffff0000, v{r}')
            A('v_add_f32 v11, 1.0, v11')
            A('v_add_f32 v12, 1.0, v12')
            A('v_cvt_pk_bf16_f32 v8, v11, v12')
            A('v_lshlrev_b32 v11, 16, v8')
            A('v_and_b32 v12, 0xffff0000, v8')
            A(f'v_mul_f32 v{F+i}, v{F+i}, v11')
            A(f'v_mul_f32 v{F+i+1}, v{F+i+1}, v12')
            A(f'v_cvt_pk_bf16_f32 v8, v{F+i}, v{F+i+1}')
            A(f'v_lshlrev_b32 v{F+i}, 16, v8')
            A(f'v_and_b32 v{F+i+1}, 0xffff0000, v8')
    for ks in range(20):
        A(f's_mov_b32 s21, {WS["MODB"] + s_idx*1280 + 64*ks}')
        A(f'buffer_load_dwordx4 v[{RAW+4*ks}:{RAW+4*ks+3}], v10, s[4:7], s21 offen')
    A('v_lshlrev_b32 v13, 4, v0')
    A('s_mul_i32 s22, s2, 20480')
    A(f's_add_u32 s22, s22, {dst}')
    for ks in range(20):
        A(f's_waitcnt vmcnt({19-ks})' if ks == 0 else f's_waitcnt vmcnt({19})')
        for q in range(4):
            r = RAW + 4 * ks + q
            i = 8 * ks + 2 * q
            A(f'v_lshlrev_b32 v11, 16, v{r}')
            A(f'v_and_b32 v12, 0xffff0000, v{r}')
            A(f'v_add_f32 v{F+i}, v{F+i}, v11')
            A(f'v_add_f32 v{F+i+1}, v{F+i+1}, v12')
            A(f'v_cvt_pk_bf16_f32 v{r}, v{F+i}, v{F+i+1}')
        A(f'buffer_store_dwordx4 v[{RAW+4*ks}:{RAW+4*ks+3}], v13, s[4:7], s22 offen')
        A(f's_add_u32 s22, s22, 1024')
    if embedded: return
    A.label(f'L_{name}_end')
    A('s_endpgm')
    return name, kernel_desc(name, 256), f'; @launch kernel={name} grid=(128,1,1) block=(64,1,1) lds=0'
```

```python
from asmlib import *
from layout import WS
from k_post import SCALE, LOG2E

SPIN = 400000
MEMLDS = 0
RED = 10240
WLDS = 17408
TL = 16384
LDS_CHAIN = 65536 + 40960

class Lgkm:
    def __init__(s, A): s.A = A; s.q = []
    def issue(s, tag, text): s.A(text); s.q.append(tag)
    def need(s, tag):
        if tag in s.q:
            i = s.q.index(tag)
            n = len(s.q) - 1 - i
            s.A(f's_waitcnt lgkmcnt({min(n,15)})')
            s.q = s.q[i + 1:]

import os
PROF = int(os.environ.get('PROF', '0'))
def stamp(A, idx):
    if PROF in (1, 2):
        A('s_memrealtime s[98:99]' if PROF == 2 else 's_memtime s[98:99]')
        A('s_waitcnt lgkmcnt(0)')
        A(f's_mov_b32 s{72+idx}, s98')
def stamp_flush(A, n, tag):
    if PROF in (1, 2):
        A(f's_cmp_lg_u32 s40, {int(os.environ.get("PSTEP", "45"))}')
        A(f's_cbranch_scc1 L_{tag}_nofl')
        A('s_lshl_b32 s96, s2, 2')
        A('s_add_u32 s96, s96, s20')
        A('s_lshl_b32 s96, s96, 6')
        A(f's_add_u32 s96, s96, {WS["FLAGS"]}')
        for i in range(n):
            A(f'v_mov_b32 v26, s{72+i}')
            A('v_mov_b32 v27, 0')
            A(f'buffer_store_dword v26, v27, s[4:7], s96 offen offset:{4*i}')
        A(f'L_{tag}_nofl:')

KT = int(os.environ.get('KT', '0'))
XM = int(os.environ.get('XM', '6'))
XP = int(os.environ.get('XP', '14'))
D = {k: int(os.environ.get(k, '0')) for k in ('d0s1', 'd1s1', 'd0s2', 'd1s2', 'd0p', 'd1p')}
def delay(A, tag, n):
    if n:
        A(f's_mov_b32 s43, {n}')
        A(f'L_dl_{tag}:')
        A('s_nop 15')
        A('s_sub_u32 s43, s43, 1')
        A('s_cmp_lg_u32 s43, 0')
        A(f's_cbranch_scc1 L_dl_{tag}')
def tag_poll(A, tag, treg, vtag, sbase, nx, mask=None):
    A('s_mov_b32 s42, 0')
    if mask: A(f's_mov_b64 exec, {mask}')
    for j in range(KT):
        A(f'buffer_load_dword v{treg+j}, v{vtag}, s[4:7], s{sbase} offen sc1')
        if j < KT - 1:
            for _ in range(nx): A('s_nop 15')
    A.label(f'L_{tag}_tag')
    for j in range(KT):
        A(f's_waitcnt vmcnt({KT-1})')
        A(f'v_cmp_eq_u32 vcc, -1, v{treg+j}')
        A(f's_cbranch_vccz L_{tag}_tagok')
        A(f'buffer_load_dword v{treg+j}, v{vtag}, s[4:7], s{sbase} offen sc1')
        for _ in range(nx): A('s_nop 15')
    A('s_add_u32 s42, s42, 1')
    A('s_cmp_lt_u32 s42, s44')
    A(f's_cbranch_scc1 L_{tag}_tag')
    A.label(f'L_{tag}_tagok')
    if mask: A('s_mov_b64 exec, -1')

MS, PS = 10240, 20480
def kflag(A, t):
    A('s_cmp_eq_u32 s59, 0')
    A(f's_cbranch_scc1 L_kfl_{t}')
    A('v_mov_b32 v24, 1')
    A('v_mov_b32 v25, 0')
    A('s_mov_b64 exec, 1')
    A('buffer_store_dword v24, v25, s[4:7], s59 offen sc1')
    A('s_mov_b64 exec, -1')
    A('s_mov_b32 s59, 0')
    A.label(f'L_kfl_{t}')
PUB = RED + 5632
S1MODE = os.environ.get('S1MODE', 'flag')
def gather_mem(A, tag, sstep, extra=None):
    A(f's_mul_i32 s41, s{sstep}, {MS}')
    A(f's_add_u32 s41, s41, {WS["MEMB"]}')
    stamp(A, 0)
    flag = False
    def loads(sc):
        A(f'buffer_load_dwordx4 v[12:15], v4, s[4:7], s41 offen {sc}')
        A(f'buffer_load_dwordx4 v[16:19], v4, s[4:7], s41 offen offset:1024 {sc}')
        A('s_mov_b64 exec, s[60:61]')
        A(f'buffer_load_dwordx4 v[20:23], v4, s[4:7], s41 offen offset:2048 {sc}')
        A('s_mov_b64 exec, -1')
    if flag:
        A(f's_cmp_eq_u32 s{sstep}, 0')
        A(f's_cbranch_scc1 L_{tag}m_tagok2')
        tag_poll(A, tag + 'm', 24, 1, 41, XM, 's[64:65]')
        A.label(f'L_{tag}m_tagok2')
        A('s_mov_b32 s42, 0')
        loads('')
        A(f's_branch L_{tag}_chk')
    else:
        delay(A, tag + 'd0', D['d0' + tag])
        A('s_mov_b32 s42, 0')
    A.label(f'L_{tag}_poll')
    loads('sc1')
    A.label(f'L_{tag}_chk')
    A('s_waitcnt vmcnt(0)')
    if tag == 's1': kflag(A, 'a')
    A('v_max3_u32 v24, v12, v13, v14')
    A('v_max3_u32 v25, v15, v16, v17')
    A('v_max3_u32 v24, v24, v18, v19')
    A('v_max3_u32 v25, v25, v20, v21')
    A('v_max3_u32 v24, v24, v22, v23')
    A('v_max_u32 v24, v24, v25')
    A('v_cmp_eq_u32 vcc, -1, v24')
    A(f's_cbranch_vccz L_{tag}_ok')
    A('s_add_u32 s42, s42, 1')
    A('s_cmp_lt_u32 s42, s44')
    A(f's_cbranch_scc1 L_{tag}_poll')
    A('s_mov_b32 s44, 0')
    A.label(f'L_{tag}_ok')
    stamp(A, 1)
    if PROF in (1, 2): A('s_mov_b32 s79, s42')
    A(f'ds_write_b128 v4, v[12:15] offset:{MEMLDS}')
    A(f'ds_write_b128 v4, v[16:19] offset:{MEMLDS+1024}')
    A('s_mov_b64 exec, s[60:61]')
    A(f'ds_write_b128 v4, v[20:23] offset:{MEMLDS+2048}')
    A('s_mov_b64 exec, -1')
    if extra: extra()
    A('s_waitcnt lgkmcnt(0)')
    A('s_barrier')

from k_mega import TF, gen_worker, gen_pre, wait_row
def flag_issue(A, sreg):
    A(f's_lshr_b32 s45, s{sreg}, 2')
    A('s_lshl_b32 s45, s45, 9')
    A(f's_add_u32 s68, s45, {TF}')
    A('buffer_load_dwordx2 v[20:21], v1, s[4:7], s68 offen sc1')
def flag_check(A, tag, mask=None):
    A('s_mov_b32 s42, 0')
    A.label(f'L_{tag}_fl')
    A('v_and_b32 v20, v20, v21')
    A('v_cmp_ne_u32 vcc, 1, v20')
    if mask: A(f's_and_b64 vcc, vcc, {mask}')
    A(f's_cbranch_vccz L_{tag}_flok')
    A('s_add_u32 s42, s42, 1')
    A('s_cmp_lt_u32 s42, s44')
    A(f's_cbranch_scc0 L_{tag}_flto')
    A('buffer_load_dwordx2 v[20:21], v1, s[4:7], s68 offen sc1')
    A('s_waitcnt vmcnt(0)')
    A(f's_branch L_{tag}_fl')
    A.label(f'L_{tag}_flto')
    A('s_mov_b32 s44, 0')
    A.label(f'L_{tag}_flok')

def dpp_red32(A, op, v, t):
    for c in ['quad_perm:[1,0,3,2]', 'quad_perm:[2,3,0,1]', 'row_half_mirror', 'row_mirror']:
        A('s_nop 1')
        A(f'{op}_dpp v{v}, v{v}, v{v} {c} row_mask:0xf bank_mask:0xf')
    A(f'v_mov_b32 v{t}, v{v}')
    A('s_nop 1')
    A(f'v_permlane16_swap_b32 v{v}, v{t}')
    A('s_nop 1')
    A(f'{op} v{v}, v{v}, v{t}')

def tstep(A, slot=None):
    if PROF != 3: return
    l = A.newlabel('L_ts')
    A('s_or_b32 s96, s2, s20')
    A('s_cmp_lg_u32 s96, 0')
    A(f's_cbranch_scc1 {l}')
    A('s_memrealtime s[98:99]')
    A('s_waitcnt lgkmcnt(0)')
    A('v_mov_b32 v26, s98')
    A('v_mov_b32 v27, 0')
    if slot is None:
        A('s_lshl_b32 s96, s40, 2')
    else:
        A(f's_mov_b32 s96, {slot*4}')
    A(f's_add_u32 s96, s96, {WS["FLAGS"] + 28672}')
    A('buffer_store_dword v26, v27, s[4:7], s96 offen')
    A.label(l)

def ts2(A, k):
    if PROF != 3: return
    l = A.newlabel('L_ts2')
    A('s_cmp_lg_u32 s20, 0')
    A(f's_cbranch_scc1 {l}')
    A('s_memrealtime s[98:99]')
    A('s_waitcnt lgkmcnt(0)')
    A('v_mov_b32 v26, s98')
    A('v_mov_b32 v27, 0')
    A('s_lshl_b32 s96, s2, 5')
    A(f's_add_u32 s96, s96, {WS["FLAGS"] + 57344 + 4*k}')
    A('buffer_store_dword v26, v27, s[4:7], s96 offen')
    A.label(l)

def gen_chain(A):
    name = 'k_chain_kernel'
    kernel_header(A, name)
    A('s_cmp_ge_u32 s2, 256')
    A('s_cbranch_scc1 L_ch_end')
    srds(A, [('ws', 4), ('x', 8), ('Wv', 12)])
    A('v_lshrrev_b32 v1, 6, v0')
    A('s_nop 0')
    A('v_readfirstlane_b32 s20, v1')
    A('v_and_b32 v1, 63, v0')
    A('v_lshlrev_b32 v2, 4, v1')
    A(f's_mov_b32 s44, {SPIN}')
    A('s_mov_b32 s40, 0')
    tstep(A, 65)
    gen_pre(A)
    A('v_and_b32 v1, 63, v0')
    A('v_lshlrev_b32 v2, 4, v1')
    A('s_mul_i32 s21, s20, 2560')
    A('v_add_u32 v4, s21, v2')
    for r in range(20, 24):
        A(f'v_mov_b32 v{r}, 0')
    A(f's_mov_b32 s44, {SPIN}')
    A('s_mov_b32 s60, -1')
    A('s_mov_b32 s61, 0')
    A('s_mov_b32 s62, 0xffff')
    A('s_mov_b32 s63, 0')
    A('s_mov_b32 s64, 0xfffff')
    A('s_mov_b32 s65, 0')
    A('s_mov_b32 s40, 0')
    A('s_cmp_ge_u32 s2, 112')
    A('s_cbranch_scc1 L_ch_w')
    A('s_cmp_ge_u32 s2, 32')
    A('s_cbranch_scc1 L_ch_s2')
    gen_s1(A)
    A.label('L_ch_s2')
    gen_s2(A)
    A.label('L_ch_w')
    gen_worker(A)
    A.label('L_ch_end')
    A('s_endpgm')
    return name, kernel_desc(name, 256, 256), f'; @launch kernel={name} grid=(256,1,1) block=(256,1,1) lds={LDS_CHAIN}'

def gen_s1(A):
    from k_post import rnd2, xred1632
    QT, KT, KFL, WL = 10240, 16384, 22528, 34816
    AR, ACC, WT = 24, 40, 64
    A9 = 12
    KFR = 64
    def wreg(c, t):
        f = c * 6 + t
        return (80 + f * 8) if f < 22 else (256 + (f - 22) * 8)
    A('s_mul_i32 s22, s2, 12')
    A('s_mul_i32 s51, s20, 3')
    A('s_add_u32 s22, s22, s51')
    A(f's_mul_i32 s22, s22, {20*1024}')
    A(f's_add_u32 s22, s22, {WS["WqF"]}')
    KOFF = WS['WkF'] - WS['WqF']
    A(f's_mul_i32 s24, s20, {12*1024}')
    A(f'v_add_u32 v0, s24, v2')
    frs = [(c, t, hf) for c in range(10) for t in range(6) for hf in range(2)]
    def src_off(c, t, hf):
        return (t % 3) * 20 * 1024 + (KOFF if t >= 3 else 0) + (2 * c + hf) * 1024
    inplace = [f for f in frs if f[0] < 9 and wreg(f[0], f[1]) < 256]
    other = [f for f in frs if f not in inplace]
    for (c, t, hf) in inplace:
        r = wreg(c, t) + 4 * hf
        A(f's_add_u32 s23, s22, {src_off(c, t, hf)}')
        A(f'buffer_load_dwordx4 v[{r}:{r+3}], v2, s[4:7], s23 offen')
    def batch_load(fl):
        for n, (c, t, hf) in enumerate(fl):
            r = 12 + 4 * n
            A(f's_add_u32 s23, s22, {src_off(c, t, hf)}')
            A(f'buffer_load_dwordx4 v[{r}:{r+3}], v2, s[4:7], s23 offen')
    def batch_fin(fl):
        for n, (c, t, hf) in enumerate(fl):
            r = 12 + 4 * n
            A(f'v_permlane16_swap_b32 v{r}, v{r+2}')
            A(f'v_permlane16_swap_b32 v{r+1}, v{r+3}')
        A('s_nop 1')
        for n, (c, t, hf) in enumerate(fl):
            r = 12 + 4 * n
            if c < 9:
                d = wreg(c, t) - 256 + 4 * hf
                for q, sr_ in enumerate((0, 2, 1, 3)):
                    A(f'v_accvgpr_write_b32 a{d+q}, v{r+sr_}')
            else:
                A(f'v_swap_b32 v{r+1}, v{r+2}')
                A('s_nop 0')
                A(f'ds_write_b128 v0, v[{r}:{r+3}] offset:{WL + (t*2 + hf)*1024}')
        A('s_waitcnt lgkmcnt(0)')
    batches = [other[i:i+16] for i in range(0, len(other), 16)]
    batch_load(batches[0])
    A('s_waitcnt vmcnt(16)')
    for (c, t, hf) in inplace:
        r = wreg(c, t) + 4 * hf
        A(f'v_permlane16_swap_b32 v{r}, v{r+2}')
        A(f'v_permlane16_swap_b32 v{r+1}, v{r+3}')
        A('s_nop 1')
        A(f'v_swap_b32 v{r+1}, v{r+2}')
    for bi, fl in enumerate(batches):
        if bi > 0: batch_load(fl)
        A('s_waitcnt vmcnt(0)')
        batch_fin(fl)
    for r in range(20, 24):
        A(f'v_mov_b32 v{r}, 0')
    A('v_and_b32 v5, 15, v1')
    A('v_lshrrev_b32 v6, 4, v1')
    A('v_and_b32 v7, 8, v1')
    A('v_cmp_eq_u32 vcc, 0, v7')
    A('v_mov_b32 v3, 0xeeeeeeee')
    A('v_mov_b32 v7, 0x44444444')
    A('v_cndmask_b32 v3, v3, v7, vcc')
    A('v_lshrrev_b32 v7, 2, v5')
    A('v_lshlrev_b32 v7, 4, v7')
    A('v_and_b32 v8, 3, v5')
    A('v_lshlrev_b32 v8, 1, v8')
    A('v_add_u32 v7, v7, v8')
    A('v_and_b32 v8, 1, v6')
    A('v_lshlrev_b32 v8, 8, v8')
    A('v_add_u32 v7, v7, v8')
    A('v_lshrrev_b32 v8, 1, v6')
    A('v_lshlrev_b32 v8, 6, v8')
    A('v_add_u32 v7, v7, v8')
    A('v_lshlrev_b32 v8, 6, v5')
    A('v_lshlrev_b32 v9, 4, v6')
    A('v_add_u32 v8, v8, v9')
    A('v_mov_b32 v11, v8')
    A('v_lshlrev_b32 v8, 7, v6')
    A('v_lshlrev_b32 v9, 4, v5')
    A('v_add_u32 v8, v8, v9')
    A('v_add_u32 v8, 128, v8')
    A('v_lshlrev_b32 v10, 3, v6')
    A('v_add_u32 v9, v9, v10')
    A('v_cmp_gt_u32 vcc, 2, v6')
    A('s_mov_b64 s[48:49], vcc')
    A('s_mov_b32 s66, 0x00ff00ff')
    A('s_mov_b32 s67, 0x00ff00ff')
    A('s_mov_b32 s46, 0x00ff00ff')
    A('s_mov_b32 s47, 0')
    for a in range(3):
        A(f's_add_u32 s50, s51, {a}')
        A('s_lshr_b32 s52, s50, 1')
        A('s_lshl_b32 s52, s52, 10')
        A('s_and_b32 s50, s50, 1')
        A('s_lshl_b32 s50, s50, 3')
        A(f's_add_u32 s{53+a}, s50, s52')
    A('v_add_u32 v5, s53, v7')
    A('v_add_u32 v6, s54, v7')
    A('v_add_u32 v7, s55, v7')
    A(f's_mul_i32 s24, s20, 3072')
    A('v_add_u32 v10, s24, v2')
    A(f's_mov_b32 s58, {SCALE}')
    A(f's_mov_b32 s56, {LOG2E}')
    def kf_prefetch(sreg):
        A(f's_mul_i32 s45, s{sreg}, {2*192*1024}')
        A(f's_mul_i32 s50, s2, {6*1024}')
        A('s_add_u32 s45, s45, s50')
        A(f's_add_u32 s45, s45, {WS["KF"]}')
        A('s_add_u32 s45, s45, s57')
        for a in range(3):
            A(f'buffer_load_dwordx4 v[{KFR+a*4}:{KFR+a*4+3}], v2, s[4:7], s45 offen offset:{a*1024}')
    A('s_cmp_ge_u32 s20, 2')
    A(f's_cselect_b32 s57, {192*1024 - 6*1024}, 0')
    A('s_mul_i32 s24, s20, 3072')
    A('s_add_u32 s57, s57, s24')
    A('v_lshlrev_b32 v1, 3, v1')
    flag_issue(A, 40)
    A('s_waitcnt vmcnt(0)')
    ts2(A, 0)
    A('s_mov_b32 s92, 0xf0000000')
    A('s_mov_b32 s93, -1')
    flag_check(A, 's1i', 's[92:93]')
    kf_prefetch(40)
    A('s_mov_b32 s59, 0')
    A.label('L_s1_loop')
    tstep(A)
    for r in range(24): A(f'v_mov_b32 v{ACC+r}, 0')
    for r in range(20, 24): A(f'v_mov_b32 v{r}, 0')
    def kfw():
        for a in range(3):
            A(f'ds_write_b128 v10, v[{KFR+a*4}:{KFR+a*4+3}] offset:{KFL + a*1024}')
    A('s_add_u32 s50, s40, 1')
    A('s_min_u32 s52, s50, 63')
    A('s_cmp_lt_u32 s52, 12')
    A('s_cselect_b32 s92, 0xf0000000, -1')
    A('s_lshr_b32 s45, s52, 2')
    A('s_lshl_b32 s45, s45, 9')
    A(f's_add_u32 s68, s45, {TF}')
    A('buffer_load_dwordx2 v[76:77], v1, s[4:7], s68 offen sc1')
    def kfw2():
        kfw()
        A('v_and_b32 v76, v76, v77')
        A('v_cmp_ne_u32 vcc, 1, v76')
        A('s_and_b64 s[70:71], vcc, s[92:93]')
    gather_mem(A, 's1', 40, extra=kfw2)
    stamp(A, 2)
    L = Lgkm(A)
    def rdA(c):
        b = A9 if c == 9 else AR + (c % 4) * 4
        L.issue(('A', c), f'ds_read_b128 v[{b}:{b+3}], v2 offset:{MEMLDS + c*1024}')
    def rdW(t):
        b = WT + (t % 2) * 8
        L.issue(('W', t, 0), f'ds_read_b128 v[{b}:{b+3}], v0 offset:{WL + t*2048}')
        L.issue(('W', t, 1), f'ds_read_b128 v[{b+4}:{b+7}], v0 offset:{WL + t*2048 + 1024}')
    rdA(0); rdA(1); rdA(9); rdW(0); rdA(2); rdW(1)
    for c in range(9):
        if c + 3 < 9: rdA(c + 3)
        L.need(('A', c))
        b = AR + (c % 4) * 4
        for t in range(6):
            d = ACC + t * 4
            A(f'v_smfmac_f32_16x16x64_bf16 v[{d}:{d+3}], v[{b}:{b+3}], {reg(wreg(c,t),8)}, v3')
        if c < 6:
            L.need(('A', 9)); L.need(('W', c, 1))
            d = ACC + c * 4
            w = WT + (c % 2) * 8
            A(f'v_smfmac_f32_16x16x64_bf16 v[{d}:{d+3}], v[{A9}:{A9+3}], v[{w}:{w+7}], v3')
            if c + 2 < 6: rdW(c + 2)
    A('s_nop 7')
    A('s_nop 3')
    stamp(A, 3)
    for t in range(6):
        d = ACC + t * 4
        A(f'v_permlane32_swap_b32 v{d}, v{d+1}')
        A(f'v_permlane32_swap_b32 v{d+2}, v{d+3}')
    A('s_nop 0')
    for t in range(6):
        d = ACC + t * 4
        A(f'v_add_f32 v{d}, v{d}, v{d+1}')
        A(f'v_add_f32 v{d+2}, v{d+2}, v{d+3}')
        A(f'v_cvt_pk_bf16_f32 v{d}, v{d}, v{d+2}')
        base = QT if t < 3 else KT
        A(f'ds_write_b16 v{5 + t % 3}, v{d} offset:{base}')
        A(f'ds_write_b16_d16_hi v{5 + t % 3}, v{d} offset:{base + 128}')
    A(f's_mul_i32 s45, s40, {PS}')
    A('s_mul_i32 s50, s2, 640')
    A('s_add_u32 s45, s45, s50')
    A(f's_add_u32 s45, s45, {WS["PB"]}')
    A('s_waitcnt lgkmcnt(0)')
    stamp(A, 4)
    A('s_barrier')
    stamp(A, 5)
    A('s_cmp_lg_u32 s20, 0')
    A('s_cbranch_scc1 L_s1_nopub')
    SA = 12
    L = Lgkm(A)
    def rdS(ks):
        b = 24 + (ks % 3) * 16
        L.issue(('q', ks), f'ds_read_b128 v[{b}:{b+3}], v11 offset:{QT + ks*1024}')
        L.issue(('k', ks), f'ds_read_b128 v[{b+4}:{b+7}], v11 offset:{KT + ks*1024}')
        L.issue(('f0', ks), f'ds_read_b128 v[{b+8}:{b+11}], v2 offset:{KFL + ks*1024}')
        L.issue(('f1', ks), f'ds_read_b128 v[{b+12}:{b+15}], v2 offset:{KFL + (6+ks)*1024}')
    rdS(0); rdS(1); rdS(2)
    for ks in range(6):
        b = 24 + (ks % 3) * 16
        for st, tg in enumerate(('k', 'f0', 'f1')):
            L.need((tg, ks))
            d = SA + st * 4
            c = '0' if ks == 0 else f'v[{d}:{d+3}]'
            A(f'v_mfma_f32_16x16x32_bf16 v[{d}:{d+3}], v[{b+4+4*st}:{b+7+4*st}], v[{b}:{b+3}], {c}')
        if ks + 3 < 6: rdS(ks + 3)
    A('s_nop 7')
    A('v_mov_b32 v36, s58')
    A('v_mov_b32 v37, s58')
    A('v_mov_b32 v38, s56')
    A('v_mov_b32 v39, s56')
    vals = list(range(SA, SA + 12))
    A('v_mov_b32 v25, 0xff800000')
    A(f'v_max3_f32 v26, v{vals[0]}, v{vals[1]}, v{vals[2]}')
    A(f'v_max3_f32 v27, v{vals[4]}, v{vals[5]}, v{vals[6]}')
    A(f'v_max_f32 v26, v26, v{vals[3]}')
    A(f'v_max3_f32 v27, v27, v{vals[7]}, v{vals[8]}')
    A('v_cndmask_b32 v26, v25, v26, s[48:49]')
    A(f'v_max3_f32 v27, v27, v{vals[9]}, v{vals[10]}')
    A(f'v_max3_f32 v26, v26, v27, v{vals[11]}')
    for i in range(0, 12, 2):
        A(f'v_cvt_pk_bf16_f32 v{28+i//2}, v{vals[i]}, v{vals[i+1]}')
    A('v_mov_b32 v27, v26')
    for i in range(0, 12, 2):
        A(f'v_lshlrev_b32 v{vals[i]}, 16, v{28+i//2}')
        A(f'v_and_b32 v{vals[i+1]}, 0xffff0000, v{28+i//2}')
    A('v_permlane16_swap_b32 v26, v27')
    for i in range(0, 12, 2):
        A(f'v_pk_mul_f32 v[{vals[i]}:{vals[i+1]}], v[{vals[i]}:{vals[i+1]}], v[36:37]')
    A('v_max_f32 v26, v26, v27')
    for i in range(0, 12, 2):
        A(f'v_cvt_pk_bf16_f32 v{28+i//2}, v{vals[i]}, v{vals[i+1]}')
    A('v_mov_b32 v27, v26')
    for i in range(0, 6, 2):
        A(f'v_lshlrev_b32 v{vals[i]}, 16, v{28+i//2}')
        A(f'v_and_b32 v{vals[i+1]}, 0xffff0000, v{28+i//2}')
    A('v_permlane32_swap_b32 v26, v27')
    for i in range(6, 12, 2):
        A(f'v_lshlrev_b32 v{vals[i]}, 16, v{28+i//2}')
        A(f'v_and_b32 v{vals[i+1]}, 0xffff0000, v{28+i//2}')
    A('v_max_f32 v26, v26, v27')
    A('v_cvt_pk_bf16_f32 v27, v26, v26')
    A('v_lshlrev_b32 v26, 16, v27')
    A('v_mul_f32 v26, s58, v26')
    A('v_cvt_pk_bf16_f32 v27, v26, v26')
    A('v_lshlrev_b32 v26, 16, v27')
    A('v_mul_f32 v26, s56, v26')
    A('v_xor_b32 v26, 0x80000000, v26')
    A('v_mov_b32 v27, v26')
    for i in range(0, 12, 2):
        A(f'v_pk_fma_f32 v[{vals[i]}:{vals[i+1]}], v[{vals[i]}:{vals[i+1]}], v[38:39], v[26:27]')
    for v in vals:
        A(f'v_exp_f32 v{v}, v{v}')
    A('s_nop 0')
    for r in range(4):
        A(f'v_cndmask_b32 v{vals[r]}, 0, v{vals[r]}, s[48:49]')
    A(f'v_pk_add_f32 v[26:27], v[{vals[4]}:{vals[5]}], v[{vals[6]}:{vals[7]}]')
    A(f'v_pk_add_f32 v[34:35], v[{vals[8]}:{vals[9]}], v[{vals[10]}:{vals[11]}]')
    A(f'v_pk_add_f32 v[26:27], v[26:27], v[{vals[0]}:{vals[1]}]')
    A(f'v_pk_add_f32 v[34:35], v[34:35], v[{vals[2]}:{vals[3]}]')
    A('v_pk_add_f32 v[26:27], v[26:27], v[34:35]')
    A('v_add_f32 v26, v26, v27')
    xred1632(A, 'v_add_f32', 26, 27)
    A('v_rcp_f32 v26, v26')
    A('s_nop 0')
    A('v_mov_b32 v27, v26')
    for i in range(0, 12, 2):
        A(f'v_pk_mul_f32 v[{vals[i]}:{vals[i+1]}], v[{vals[i]}:{vals[i+1]}], v[26:27]')
    for i in range(6):
        src = vals[4 + 2 * i] if i < 4 else vals[2 * (i - 4)]
        A(f'v_cvt_pk_bf16_f32 v{28+i}, v{src}, v{src+1}')
    A('s_mov_b64 exec, s[66:67]')
    A('buffer_store_dwordx4 v[28:31], v8, s[4:7], s45 offen sc1')
    A('s_mov_b64 exec, s[46:47]')
    A('buffer_store_dwordx2 v[32:33], v9, s[4:7], s45 offen sc1')
    A('s_mov_b64 exec, -1')
    A('s_branch L_s1_pubd')
    A.label('L_s1_nopub')
    A('s_sub_u32 s50, s20, 1')
    A('s_lshl_b32 s50, s50, 11')
    A('v_add_u32 v24, s50, v11')
    A(f'ds_read_b128 v[28:31], v24 offset:{KT}')
    A(f'ds_read_b128 v[32:35], v24 offset:{KT + 1024}')
    A('v_add_u32 v24, s50, v2')
    A('s_lshl_b32 s45, s40, 5')
    A('s_add_u32 s45, s45, s2')
    A(f's_mul_i32 s45, s45, {6*1024}')
    A(f's_add_u32 s45, s45, {WS["KMF"]}')
    A('s_waitcnt lgkmcnt(0)')
    A('buffer_store_dwordx4 v[28:31], v24, s[4:7], s45 offen sc1')
    A('buffer_store_dwordx4 v[32:35], v24, s[4:7], s45 offen offset:1024 sc1')
    A('s_lshl_b32 s59, s40, 9')
    A('s_lshl_b32 s50, s2, 4')
    A('s_add_u32 s59, s59, s50')
    A('s_lshl_b32 s50, s20, 2')
    A('s_add_u32 s59, s59, s50')
    A(f's_add_u32 s59, s59, {WS["TF3"]}')
    A.label('L_s1_pubd')
    stamp(A, 6)
    A('s_cmp_eq_u64 s[70:71], 0')
    A('s_cbranch_scc1 L_s1_flgood')
    A('buffer_load_dwordx2 v[20:21], v1, s[4:7], s68 offen sc1')
    A('s_waitcnt vmcnt(0)')
    flag_check(A, 's1l', 's[92:93]')
    A.label('L_s1_flgood')
    A('s_add_u32 s50, s40, 1')
    A('s_min_u32 s52, s50, 63')
    kf_prefetch(52)
    stamp_flush(A, 8, 's1')
    A('s_add_u32 s40, s40, 1')
    A('s_cmp_lt_u32 s40, 64')
    A('s_cbranch_scc1 L_s1_loop')
    tstep(A)
    A('s_waitcnt vmcnt(0)')
    kflag(A, 'b')
    A('s_endpgm')

def gen_s2(A):
    PT, PM, VT, MOP, ACCM, ACC, VMOP, PK = 24, 56, 64, 96, 112, 128, 132, 140
    def wreg(ks, pp):
        f = ks * 4 + pp
        return (192 + f * 4) if f < 16 else (256 + (f - 16) * 4)
    ts2(A, 0)
    wait_row(A, 's2w0', 17)
    wait_row(A, 's2w1', 18)
    ts2(A, 1)
    for r in range(20, 24):
        A(f'v_mov_b32 v{r}, 0')
    A('s_sub_u32 s21, s2, 32')
    A('s_lshr_b32 s22, s21, 1')
    A('s_and_b32 s23, s21, 1')
    A('v_and_b32 v5, 15, v1')
    A('v_lshrrev_b32 v6, 4, v1')
    A('v_and_b32 v7, 7, v1')
    A('v_lshrrev_b32 v8, 3, v5')
    A('s_lshl_b32 s24, s23, 3')
    A('v_lshlrev_b32 v9, 4, v6')
    A('v_add_u32 v9, v9, v7')
    A('v_add_u32 v9, s24, v9')
    A('v_lshlrev_b32 v9, 4, v9')
    A(f'v_mul_u32_u24 v10, {40*1024}, v8')
    A('v_add_u32 v9, v9, v10')
    A('s_lshl_b32 s24, s20, 3')
    A('s_mul_i32 s24, s24, 40')
    A('s_add_u32 s24, s24, s22')
    A('s_lshl_b32 s24, s24, 10')
    A(f's_add_u32 s24, s24, {WS["WVOF"]}')
    for ks in range(20):
        for pp in range(4):
            r = wreg(ks, pp)
            A(f's_add_u32 s25, s24, {(ks*32 + 2*pp)*40*1024}')
            A(f'buffer_load_dwordx4 {reg(r,4)}, v9, s[4:7], s25 offen')
    A('v_lshrrev_b32 v9, 1, v6')
    A('v_lshlrev_b32 v9, 7, v9')
    A('v_lshlrev_b32 v10, 4, v7')
    A('v_add_u32 v9, v9, v10')
    A('v_and_b32 v10, 1, v6')
    A('v_lshlrev_b32 v10, 3, v10')
    A('v_add_u32 v9, v9, v10')
    MB = [9, 148, 149, 150, 151]
    for j in range(1, 5):
        A(f'v_add_u32 v{MB[j]}, {2048*j}, v9')
    A('v_lshlrev_b32 v10, 8, v8')
    A('s_lshl_b32 s24, s23, 3')
    A('v_add_u32 v11, s24, v7')
    A('v_lshlrev_b32 v11, 4, v11')
    A('v_add_u32 v10, v10, v11')
    A('v_lshlrev_b32 v11, 3, v6')
    A('v_add_u32 v10, v10, v11')
    A('s_lshl_b32 s24, s20, 11')
    A(f's_add_u32 s24, s24, {TL}')
    A('v_add_u32 v11, s24, v10')
    A('v_add_u32 v152, s24, v2')
    A('v_lshlrev_b32 v153, 4, v7')
    A('v_lshlrev_b32 v154, 7, v6')
    A('v_add_u32 v154, v154, v153')
    A('v_mul_u32_u24 v155, 640, v6')
    A('v_add_u32 v155, v155, v153')
    A('s_mov_b32 s66, 0x00ff00ff')
    A('s_mov_b32 s67, 0x00ff00ff')
    for r in range(PT, PT + 40): A(f'v_mov_b32 v{r}, 0')
    A('s_lshl_b32 s24, s20, 10')
    A('v_add_u32 v156, s24, v2')
    A('v_and_b32 v157, 1, v8')
    A('s_lshl_b32 s24, s23, 1')
    A('v_add_u32 v158, s24, v157')
    A('v_lshlrev_b32 v158, 4, v158')
    A('v_add_u32 v158, v158, v7')
    A('v_lshlrev_b32 v158, 4, v158')
    A('s_lshr_b32 s24, s22, 1')
    A('s_lshl_b32 s24, s24, 9')
    A('s_and_b32 s25, s22, 1')
    A('s_lshl_b32 s25, s25, 1')
    A('s_add_u32 s25, s25, s23')
    A('s_lshl_b32 s25, s25, 7')
    A('s_add_u32 s24, s24, s25')
    A('v_lshlrev_b32 v159, 4, v7')
    A('v_lshlrev_b32 v157, 3, v157')
    A('v_add_u32 v159, v159, v157')
    A('v_add_u32 v159, s24, v159')
    for r in range(4): A(f'v_mov_b32 v{PK+r}, 0')
    A(f'ds_write_b128 v152, v[{PK}:{PK+3}]')
    A(f'ds_write_b128 v152, v[{PK}:{PK+3}] offset:1024')
    def vt_prefetch(sreg):
        A(f's_lshl_b32 s45, s{sreg}, 5')
        A('s_lshl_b32 s50, s20, 3')
        A('s_add_u32 s45, s45, s50')
        A('s_mul_i32 s45, s45, 40')
        A('s_add_u32 s45, s45, s22')
        A('s_lshl_b32 s45, s45, 10')
        A(f's_add_u32 s45, s45, {WS["VOF"]}')
        for hh in range(8):
            A(f'buffer_load_dwordx4 v[{VT+hh*4}:{VT+hh*4+3}], v2, s[4:7], s45 offen')
            if hh < 7: A(f's_add_u32 s45, s45, {40*1024}')
    T2 = 32768
    A('v_lshlrev_b32 v160, 10, v8')
    A('v_lshlrev_b32 v161, 8, v6')
    A('v_add_u32 v160, v160, v161')
    A('s_lshl_b32 s24, s23, 3')
    A('v_add_u32 v161, s24, v7')
    A('v_lshlrev_b32 v161, 4, v161')
    A('v_add_u32 v160, v160, v161')
    A('s_lshl_b32 s24, s20, 13')
    A(f's_add_u32 s24, s24, {T2}')
    A('v_add_u32 v160, s24, v160')
    A('v_add_u32 v161, s24, v2')
    A('v_lshrrev_b32 v162, 1, v6')
    A('v_lshlrev_b32 v162, 8, v162')
    A('v_lshlrev_b32 v163, 4, v5')
    A('v_add_u32 v162, v162, v163')
    A('v_and_b32 v163, 1, v6')
    A('v_lshlrev_b32 v163, 3, v163')
    A('v_add_u32 v162, v162, v163')
    STG = 65536
    SR = [164, 168, 172, 176, 180, 184, 188, 128, 132, 136]
    A(f's_mul_i32 s24, s20, {10*1024}')
    A(f's_add_u32 s24, s24, {STG}')
    A('v_add_u32 v163, s24, v2')
    A(f'v_add_u32 v162, {STG}, v162')
    def stage_ld(sreg):
        A(f's_mul_i32 s45, s{sreg}, {40*1024}')
        A(f's_mul_i32 s50, s20, {10*1024}')
        A('s_add_u32 s45, s45, s50')
        A(f's_add_u32 s45, s45, {WS["H1F"]}')
        for f in range(10):
            b = SR[f]
            A(f'buffer_load_dwordx4 v[{b}:{b+3}], v2, s[4:7], s45 offen offset:{(f%4)*1024}')
            if f % 4 == 3: A('s_add_u32 s45, s45, 4096')
    def stage_wr():
        for f in range(10):
            b = SR[f]
            A(f'ds_write_b128 v163, v[{b}:{b+3}] offset:{f*1024}')
    def tokvo():
        L = Lgkm(A)
        def rd(f):
            b = MOP + (f % 4) * 4
            L.issue((f, 0), f'ds_read_b64 v[{b}:{b+1}], v162 offset:{f*1024}')
            L.issue((f, 1), f'ds_read_b64 v[{b+2}:{b+3}], v162 offset:{f*1024 + 512}')
        for f in range(3): rd(f)
        for f in range(40):
            tt, ks = f // 20, f % 20
            if f + 3 < 40: rd(f + 3)
            L.need((f, 1))
            b = MOP + (f % 4) * 4
            for pp in range(4):
                d = ACCM + pp * 4
                c = '0' if ks == 0 else f'v[{d}:{d+3}]'
                A(f'v_mfma_f32_16x16x32_bf16 v[{d}:{d+3}], v[{b}:{b+3}], {reg(wreg(ks,pp),4)}, {c}')
            if ks == 19:
                A('s_nop 7')
                A('s_nop 7')
                for pp in range(4):
                    d = ACCM + pp * 4
                    A(f'v_cvt_pk_bf16_f32 v{PK+2*pp}, v{d}, v{d+1}')
                    A(f'v_cvt_pk_bf16_f32 v{PK+2*pp+1}, v{d+2}, v{d+3}')
                for pp in range(4):
                    L.issue(('w', tt, pp), f'ds_write_b64 v160, v[{PK+2*pp}:{PK+2*pp+1}] offset:{pp*2048 + tt*8}')
                A('s_nop 1')
    def tokrd():
        A('s_waitcnt lgkmcnt(0)')
        for hh in range(8):
            A(f'ds_read_b128 v[{VT+hh*4}:{VT+hh*4+3}], v161 offset:{hh*1024}')
    A('v_lshlrev_b32 v1, 3, v1')
    stage_ld(40)
    A('s_waitcnt vmcnt(0) lgkmcnt(0)')
    ts2(A, 2)
    stage_wr()
    A('s_waitcnt lgkmcnt(0)')
    A('s_barrier')
    tokvo()
    tokrd()
    A('s_waitcnt vmcnt(0) lgkmcnt(0)')
    ts2(A, 3)
    A.label('L_s2_loop')
    A('s_cmp_ge_u32 s40, 3')
    A('s_cbranch_scc1 L_s2_nost')
    A('s_add_u32 s51, s40, 1')
    stage_ld(51)
    A.label('L_s2_nost')
    def stw():
        A('s_cmp_ge_u32 s40, 3')
        A('s_cbranch_scc1 L_s2_nosw')
        stage_wr()
        A.label('L_s2_nosw')
    gather_mem(A, 's2', 40, extra=stw)
    stamp(A, 2)
    A('s_add_u32 s50, s40, 1')
    A('s_min_u32 s52, s50, 63')
    flag_issue(A, 52)
    L = Lgkm(A)
    def rd(ks):
        b = MOP + (ks % 4) * 4
        L.issue(ks, f'ds_read2_b64 v[{b}:{b+3}], v{MB[ks//4]} offset0:{(ks%4)*64} offset1:{(ks%4)*64+32}')
    for ks in range(3): rd(ks)
    for ks in range(20):
        if ks + 3 < 20: rd(ks + 3)
        L.need(ks)
        b = MOP + (ks % 4) * 4
        for pp in range(4):
            d = ACCM + pp * 4
            c = '0' if ks == 0 else f'v[{d}:{d+3}]'
            A(f'v_mfma_f32_16x16x32_bf16 v[{d}:{d+3}], v[{b}:{b+3}], {reg(wreg(ks,pp),4)}, {c}')
    A('s_nop 7')
    A('s_nop 3')
    A('s_lshl_b32 s45, s40, 3')
    A('s_lshl_b32 s50, s20, 1')
    A('s_add_u32 s45, s45, s50')
    A('s_mul_i32 s45, s45, 40')
    A('s_add_u32 s45, s45, s22')
    A('s_lshl_b32 s45, s45, 10')
    A(f's_add_u32 s45, s45, {WS["VOMF"]}')
    A(f's_add_u32 s50, s45, {40*1024}')
    for pp in range(4):
        d = ACCM + pp * 4
        A(f'v_cvt_pk_bf16_f32 v{PK+2*pp}, v{d}, v{d+1}')
        A(f'v_cvt_pk_bf16_f32 v{PK+2*pp+1}, v{d+2}, v{d+3}')
    A('s_mov_b64 exec, s[60:61]')
    for pp in range(4):
        A(f'ds_write_b64 v11, v[{PK+2*pp}:{PK+2*pp+1}] offset:{(pp>>1)*1024 + (pp&1)*512}')
        A(f'buffer_store_dwordx2 v[{PK+2*pp}:{PK+2*pp+1}], v10, s[4:7], s{45 if pp < 2 else 50} offen offset:{(pp&1)*512} sc1')
    A('s_mov_b64 exec, -1')
    A(f'ds_read_b128 v[{VMOP}:{VMOP+3}], v152')
    A(f'ds_read_b128 v[{VMOP+4}:{VMOP+7}], v152 offset:1024')
    A('s_cmp_ge_u32 s40, 3')
    A('s_cbranch_scc1 L_s2_notok')
    tokvo()
    A.label('L_s2_notok')
    A(f's_mul_i32 s45, s40, {PS}')
    A(f's_add_u32 s45, s45, {WS["PB"]}')
    A('s_mul_i32 s50, s20, 5120')
    A('s_add_u32 s45, s45, s50')
    A(f's_add_u32 s50, s45, 2560')
    stamp(A, 3)
    delay(A, 'pd0', D['d0p'])
    A('s_mov_b32 s42, 0')
    A.label('L_s2_ppoll')
    A('s_mov_b64 exec, s[66:67]')
    for hh in range(8):
        A(f'buffer_load_dwordx4 v[{PT+hh*4}:{PT+hh*4+3}], v154, s[4:7], s{45 if hh < 4 else 50} offen offset:{128 + (hh&3)*640} sc1')
    for hg in range(2):
        A(f'buffer_load_dwordx4 v[{PM+hg*4}:{PM+hg*4+3}], v155, s[4:7], s{45 if hg == 0 else 50} offen sc1')
    A('s_mov_b64 exec, -1')
    A('s_waitcnt vmcnt(0)')
    regs = list(range(PT, PT + 40))
    A(f'v_max3_u32 v12, v{regs[0]}, v{regs[1]}, v{regs[2]}')
    A(f'v_max3_u32 v13, v{regs[3]}, v{regs[4]}, v{regs[5]}')
    k = 6; tgl = 0
    while k + 1 < 40:
        A(f'v_max3_u32 v{12+tgl}, v{12+tgl}, v{regs[k]}, v{regs[k+1]}')
        k += 2; tgl ^= 1
    A('v_max_u32 v12, v12, v13')
    A('v_cmp_eq_u32 vcc, -1, v12')
    A('s_cbranch_vccz L_s2_pok')
    A('s_add_u32 s42, s42, 1')
    A('s_cmp_lt_u32 s42, s44')
    A('s_cbranch_scc1 L_s2_ppoll')
    A('s_mov_b32 s44, 0')
    A.label('L_s2_pok')
    stamp(A, 4)
    if PROF in (1, 2): A('s_mov_b32 s80, s42')
    A('s_waitcnt lgkmcnt(0)')
    for hh in range(8):
        d = ACC if hh % 2 == 0 else ACCM
        c = '0' if hh < 2 else f'v[{d}:{d+3}]'
        A(f'v_mfma_f32_16x16x32_bf16 v[{d}:{d+3}], v[{VT+hh*4}:{VT+hh*4+3}], v[{PT+hh*4}:{PT+hh*4+3}], {c}')
    for hg in range(2):
        d = ACC if hg == 0 else ACCM
        A(f'v_mfma_f32_16x16x32_bf16 v[{d}:{d+3}], v[{VMOP+hg*4}:{VMOP+hg*4+3}], v[{PM+hg*4}:{PM+hg*4+3}], v[{d}:{d+3}]')
    A('s_nop 7')
    A('s_nop 3')
    for r in range(4):
        A(f'v_add_f32 v{ACC+r}, v{ACC+r}, v{ACCM+r}')
    A(f'ds_write_b128 v156, v[{ACC}:{ACC+3}] offset:{RED}')
    A('s_cmp_ge_u32 s40, 3')
    A('s_cbranch_scc1 L_s2_vtn')
    tokrd()
    A('s_branch L_s2_vtd')
    A.label('L_s2_vtn')
    A('s_cmp_lt_u32 s40, 11')
    A('s_cselect_b32 s92, 0xffff, -1')
    A('s_cselect_b32 s93, 0, -1')
    flag_check(A, 's2l', 's[92:93]')
    A('s_add_u32 s50, s40, 1')
    A('s_min_u32 s52, s50, 63')
    vt_prefetch(52)
    A.label('L_s2_vtd')
    A('s_waitcnt lgkmcnt(0)')
    stamp(A, 5)
    A('s_barrier')
    A('s_cmp_lg_u32 s20, 0')
    A('s_cbranch_scc1 L_s2_next')
    for w in range(4):
        A(f'ds_read_b128 v[{24+4*w}:{27+4*w}], v158 offset:{RED + w*1024}')
    A('s_waitcnt lgkmcnt(2)')
    for r in range(4): A(f'v_add_f32 v{24+r}, v{24+r}, v{28+r}')
    A('s_waitcnt lgkmcnt(0)')
    for r in range(4): A(f'v_add_f32 v{32+r}, v{32+r}, v{36+r}')
    for r in range(4): A(f'v_add_f32 v{24+r}, v{24+r}, v{32+r}')
    A('v_cvt_pk_bf16_f32 v24, v24, v25')
    A('v_cvt_pk_bf16_f32 v25, v26, v27')
    A('v_min_u32 v24, 0xfffffffe, v24')
    A('v_min_u32 v25, 0xfffffffe, v25')
    A('s_add_u32 s45, s40, 1')
    A(f's_mul_i32 s45, s45, {MS}')
    A(f's_add_u32 s45, s45, {WS["MEMB"]}')
    A('s_mov_b64 exec, s[62:63]')
    A('buffer_store_dwordx2 v[24:25], v159, s[4:7], s45 offen sc1')
    A('s_mov_b64 exec, -1')
    A.label('L_s2_next')
    stamp(A, 6)
    stamp_flush(A, 9, 's2')
    A('s_add_u32 s40, s40, 1')
    A('s_cmp_lt_u32 s40, 64')
    A('s_cbranch_scc1 L_s2_loop')
    A('s_endpgm')
```

```python
import re
from asmlib import *
from layout import WS
from k_gemm import wave_ids, offs

TF = WS['FLAGS'] + 32768
NWORK = 144
NTASK = 1280

def gemm_deep(A, RA, RB, NKS, NST, vA, vB, strA, strB, acc, fbase, sk=28):
    R = RA + RB
    def fr(st, i): return fbase + (st * R + i) * 4
    def loads(k):
        st = k % NST
        A(f's_mov_b32 s{sk}, {k*strA}')
        if strB != strA: A(f's_mov_b32 s{sk+1}, {k*strB}')
        for i in range(RA):
            b = fr(st, i)
            A(f'buffer_load_dwordx4 a[{b}:{b+3}], v{vA+i}, s[4:7], s{sk} offen')
        for j in range(RB):
            b = fr(st, RA + j)
            A(f'buffer_load_dwordx4 a[{b}:{b+3}], v{vB+j}, s[4:7], s{sk + (1 if strB != strA else 0)} offen')
    for k in range(min(NST - 1, NKS)): loads(k)
    for k in range(NKS):
        if k + NST - 1 < NKS: loads(k + NST - 1)
        y = min(NST - 1, NKS - 1 - k)
        A(f's_waitcnt vmcnt({R*y})')
        st = k % NST
        for i in range(RA):
            for j in range(RB):
                a = fr(st, i); b = fr(st, RA + j)
                d = acc + (i * RB + j) * 4
                c = '0' if k == 0 else f'v[{d}:{d+3}]'
                A(f'v_mfma_f32_16x16x32_bf16 v[{d}:{d+3}], a[{a}:{a+3}], a[{b}:{b+3}], {c}')
    A('s_nop 7')
    A('s_nop 7')

def qk_task(A, half=False):
    A('s_and_b32 s23, s20, 1')
    A('s_lshr_b32 s24, s20, 1')
    assert WS['WkF'] == WS['WqF'] + 384 * 20 * 1024
    assert WS['KF'] == WS['QF'] + 128 * 192 * 1024
    if half:
        A('s_lshl_b32 s25, s22, 3')
        A('s_add_u32 s25, s25, 384')
        A('s_lshl_b32 s26, s24, 2')
    else:
        A('s_lshl_b32 s25, s22, 4')
        A('s_lshl_b32 s26, s24, 3')
    A('s_add_u32 s25, s25, s26')
    A('s_lshl_b32 s26, s21, 3')
    A('s_lshl_b32 s27, s23, 2')
    A('s_add_u32 s26, s26, s27')
    RA, RB = (4 if half else 8), 4
    VA, VB = 4, 12
    A(f's_mul_i32 s27, s25, {20*1024}')
    A(f's_add_u32 s27, s27, {WS["WqF"]}')
    offs(A, VA, RA, 27, 20 * 1024)
    A(f's_mul_i32 s27, s26, {20*1024}')
    A(f's_add_u32 s27, s27, {WS["H1F"]}')
    offs(A, VB, RB, 27, 20 * 1024)
    ACC, T = 16, 144
    gemm_deep(A, RA, RB, 20, 8 if half else 5, VA, VB, 1024, 1024, ACC, 0)
    A('s_cmp_ge_u32 s25, 384')
    A('s_cselect_b32 s30, 384, 0')
    A(f's_cselect_b32 s32, {128*192*1024}, 0')
    A('s_sub_u32 s30, s25, s30')
    A('s_lshr_b32 s30, s30, 1')
    A(f's_add_u32 s32, s32, {WS["QF"]}')
    A('s_mul_i32 s31, s26, 192')
    A('s_add_u32 s31, s31, s30')
    A('s_lshl_b32 s31, s31, 10')
    A('s_add_u32 s32, s32, s31')
    for j in range(RB):
        for ip in range(RA // 2):
            a = ACC + ((2 * ip) * RB + j) * 4
            b = ACC + ((2 * ip + 1) * RB + j) * 4
            t = T + ((j * (RA // 2) + ip) % 16) * 4
            A(f'v_cvt_pk_bf16_f32 v{t}, v{a}, v{a+1}')
            A(f'v_cvt_pk_bf16_f32 v{t+1}, v{a+2}, v{a+3}')
            A(f'v_cvt_pk_bf16_f32 v{t+2}, v{b}, v{b+1}')
            A(f'v_cvt_pk_bf16_f32 v{t+3}, v{b+2}, v{b+3}')
            A(f's_add_u32 s31, s32, {(j*192 + ip)*1024}')
            A(f'buffer_store_dwordx4 v[{t}:{t+3}], v2, s[4:7], s31 offen sc1')

def vo_task(A, ident, sc='sc1', wv='s[8:11]', tag='vo'):
    VA, VB, ACC, VOP = 4, 10, 20, 132
    if not ident:
        A('s_and_b32 s24, s20, 1')
        A('s_lshr_b32 s25, s20, 1')
        A('s_mul_i32 s27, s22, 12')
        A('s_mul_i32 s26, s24, 6')
        A('s_add_u32 s27, s27, s26')
        A(f's_mul_i32 s27, s27, {20*1024}')
        A(f's_add_u32 s27, s27, {WS["WvF"]}')
        offs(A, VA, 6, 27, 20 * 1024)
        A('s_lshl_b32 s27, s23, 1')
        A('s_lshl_b32 s26, s25, 2')
        A('s_add_u32 s27, s27, s26')
        A(f's_mul_i32 s27, s27, {20*1024}')
        A(f's_add_u32 s27, s27, {WS["H1F"]}')
        offs(A, VB, 4, 27, 20 * 1024)
        gemm_deep(A, 6, 4, 20, 6, VA, VB, 1024, 1024, ACC, 0)
        fr = []
        for j in range(4):
            for ks in range(3):
                a = ACC + ((2 * ks) * 4 + j) * 4
                b = ACC + ((2 * ks + 1) * 4 + j) * 4
                t = VOP + (j * 3 + ks) * 4
                A(f'v_cvt_pk_bf16_f32 v{t}, v{a}, v{a+1}')
                A(f'v_cvt_pk_bf16_f32 v{t+1}, v{a+2}, v{a+3}')
                A(f'v_cvt_pk_bf16_f32 v{t+2}, v{b}, v{b+1}')
                A(f'v_cvt_pk_bf16_f32 v{t+3}, v{b+2}, v{b+3}')
                fr.append((t, (j * 6 + ks) * 1024))
        A('s_mul_i32 s26, s25, 24')
        A('s_mul_i32 s27, s24, 3')
        A('s_add_u32 s26, s26, s27')
        A('s_lshl_b32 s26, s26, 10')
        A('v_add_u32 v4, s26, v2')
    else:
        A('s_sub_u32 s27, s23, 64')
        A('s_add_u32 s27, s27, s20')
        A(f's_mul_i32 s27, s27, {32*12288}')
        A(f's_mul_i32 s28, s22, 384')
        A('s_add_u32 s27, s27, s28')
        A('v_and_b32 v4, 15, v1')
        A('v_lshrrev_b32 v5, 4, v1')
        A('v_mul_u32_u24 v4, 12288, v4')
        A('v_lshlrev_b32 v5, 3, v5')
        A('v_add_u32 v4, v4, v5')
        fr = []
        for j in range(2):
            for ks in range(6):
                t = VOP + (j * 6 + ks) * 4
                A(f'buffer_load_dwordx2 v[{t}:{t+1}], v4, {wv}, s27 offen offset:{ks*64}')
                A(f'buffer_load_dwordx2 v[{t+2}:{t+3}], v4, {wv}, s27 offen offset:{ks*64+32}')
                fr.append((t, (j * 6 + ks) * 1024))
            if j == 0:
                A(f's_add_u32 s27, s27, {16*12288}')
        A('s_mul_i32 s26, s20, 12288')
        A('v_add_u32 v4, s26, v2')
    if not ident:
        for t, o in fr:
            A(f'ds_write_b128 v4, v[{t}:{t+3}] offset:{o}')
    A('s_mul_i32 s27, s22, 40')
    A('s_mul_i32 s26, s20, 10')
    A('s_add_u32 s27, s27, s26')
    A(f's_mul_i32 s27, s27, {6*1024}')
    A(f's_add_u32 s27, s27, {WS["WoF"]}')
    A('s_lshl_b32 s28, s23, 5')
    A('s_add_u32 s28, s28, s22')
    A('s_mul_i32 s28, s28, 40')
    A('s_add_u32 s28, s28, s26')
    A('s_lshl_b32 s28, s28, 10')
    A(f's_add_u32 s28, s28, {WS["VOF"]}')
    assert WS['WVOF'] == WS['VOF'] + 64 * 32 * 40 * 1024
    SL = [20, 44, 68, 92, 180, 204, 228]
    NST = 7
    AC = 116
    OUT = 132
    A('v_add_u32 v3, 4096, v2')
    def ld(ct):
        for ks in range(6):
            b = SL[ct % NST] + ks * 4
            A(f'buffer_load_dwordx4 v[{b}:{b+3}], v{2 if ks < 4 else 3}, s[4:7], s27 offen offset:{(ks%4)*1024}')
        A(f's_add_u32 s27, s27, {6*1024}')
    for ct in range(NST - 1): ld(ct)
    if ident:
        A(f's_waitcnt vmcnt({6*(NST-1)})')
        for t, o in fr:
            A(f'ds_write_b128 v4, v[{t}:{t+3}] offset:{o}')
    A('s_waitcnt lgkmcnt(0)')
    A('s_barrier')
    A('v_add_u32 v4, 16384, v2')
    A('v_add_u32 v5, 32768, v2')
    for f in range(48):
        A(f'ds_read_b128 a[{f*4}:{f*4+3}], v{[2,4,5][f//16]} offset:{(f%16)*1024}')
    A('s_waitcnt lgkmcnt(0)')
    def mm(u):
        ct, sg = u // 4, u % 4
        ac = AC + (u & 1) * 8
        for j in range(2):
            for ks in range(6):
                a = ((2 * sg + j) * 6 + ks) * 4
                b = SL[ct % NST] + ks * 4
                c = '0' if ks == 0 else f'v[{ac+4*j}:{ac+4*j+3}]'
                A(f'v_mfma_f32_16x16x32_bf16 v[{ac+4*j}:{ac+4*j+3}], a[{a}:{a+3}], v[{b}:{b+3}], {c}')
    def fin(u):
        ct, sg = u // 4, u % 4
        ac = AC + (u & 1) * 8
        o = OUT + (u & 3) * 4
        A(f'v_cvt_pk_bf16_f32 v{o}, v{ac}, v{ac+1}')
        A(f'v_cvt_pk_bf16_f32 v{o+1}, v{ac+2}, v{ac+3}')
        A(f'v_cvt_pk_bf16_f32 v{o+2}, v{ac+4}, v{ac+5}')
        A(f'v_cvt_pk_bf16_f32 v{o+3}, v{ac+6}, v{ac+7}')
        A(f's_add_u32 s29, s28, {(sg*32*40 + ct)*1024}')
        A(f'buffer_store_dwordx4 v[{o}:{o+3}], v2, s[4:7], s29 offen {sc}')
    for ct in range(10):
        if ct + NST - 1 < 10: ld(ct + NST - 1)
        y = min(NST - 1, 9 - ct)
        A(f's_waitcnt vmcnt({6*y})')
        for sg in range(4):
            u = ct * 4 + sg
            mm(u)
            if u > 0: fin(u - 1)
    A('s_nop 7')
    A('s_nop 7')
    fin(39)

def wait_row(A, tag, row):
    A('v_and_b32 v22, 63, v0')
    A('v_lshlrev_b32 v22, 3, v22')
    A(f's_mov_b32 s68, {TF + row*512}')
    A('s_mov_b32 s42, 0')
    A.label(f'L_{tag}_fl')
    A('buffer_load_dwordx2 v[20:21], v22, s[4:7], s68 offen sc1')
    A('s_waitcnt vmcnt(0)')
    A('v_and_b32 v20, v20, v21')
    A('v_cmp_ne_u32 vcc, 1, v20')
    A(f's_cbranch_vccz L_{tag}_flok')
    A('s_add_u32 s42, s42, 1')
    A('s_cmp_lt_u32 s42, s44')
    A(f's_cbranch_scc1 L_{tag}_fl')
    A('s_mov_b32 s44, 0')
    A.label(f'L_{tag}_flok')

def set_flag(A, tag, soff):
    A('s_waitcnt vmcnt(0)')
    A('s_barrier')
    A('s_cmp_lg_u32 s20, 0')
    A(f's_cbranch_scc1 L_{tag}_nofl')
    A(f's_add_u32 s{soff}, s{soff}, {TF}')
    A('v_mov_b32 v4, 1')
    A('v_mov_b32 v5, 0')
    A('s_mov_b64 exec, 1')
    A(f'buffer_store_dword v4, v5, s[4:7], s{soff} offen sc1')
    A('s_mov_b64 exec, -1')
    A.label(f'L_{tag}_nofl')

def gen_pre(A):
    from k_prep import gen_ln
    A('s_cmp_ge_u32 s2, 192')
    A('s_cbranch_scc1 L_pre_done')
    A('s_cmp_ge_u32 s2, 32')
    A('s_cbranch_scc0 L_pre_done')
    A.label('L_pre_wvo')
    A('s_getreg_b32 s66, hwreg(HW_REG_XCC_ID, 0, 4)')
    A('s_and_b32 s66, s66, 7')
    A('s_mov_b32 s67, 0')
    A.label('L_pre_q')
    A('s_cmp_lg_u32 s20, 0')
    A('s_cbranch_scc1 L_pre_nq')
    A('v_mov_b32 v4, 1')
    A('v_mov_b32 v5, 0')
    A('s_lshl_b32 s22, s66, 7')
    A(f's_add_u32 s22, s22, {WS["TF2"] + 17408 + 64}')
    A('s_mov_b64 exec, 1')
    A('buffer_atomic_add v4, v5, s[4:7], s22 offen sc0')
    A('s_waitcnt vmcnt(0)')
    A(f'v_mov_b32 v5, {49152 + 64}')
    A('ds_write_b32 v5, v4')
    A('s_mov_b64 exec, -1')
    A('s_waitcnt lgkmcnt(0)')
    A.label('L_pre_nq')
    A('s_barrier')
    A(f'v_mov_b32 v5, {49152 + 64}')
    A('ds_read_b32 v4, v5')
    A('s_waitcnt lgkmcnt(0)')
    A('v_readfirstlane_b32 s70, v4')
    A('s_barrier')
    A('s_cmp_lt_u32 s70, 20')
    A('s_cbranch_scc1 L_pre_got')
    A('s_add_u32 s66, s66, 1')
    A('s_and_b32 s66, s66, 7')
    A('s_add_u32 s67, s67, 1')
    A('s_cmp_lt_u32 s67, 8')
    A('s_cbranch_scc1 L_pre_q')
    A('s_branch L_pre_done')
    A.label('L_pre_got')
    A('s_mul_i32 s72, s66, 20')
    A('s_add_u32 s72, s72, s70')
    magic_div(A, 22, 72, 5)
    A('s_mul_i32 s21, s22, 5')
    A('s_sub_u32 s21, s72, s21')
    A('s_lshl_b32 s23, s21, 2')
    A('s_add_u32 s23, s23, 64')
    vo_task(A, True, wv='s[12:15]')
    A('s_lshl_b32 s22, s72, 2')
    A(f's_add_u32 s22, s22, {17*512}')
    set_flag(A, 'prewvo', 22)
    A.label('L_pre_done')

def gen_worker(A):
    from k_ptask import post_init, post_init2, gen_post
    post_init(A)
    post_init2(A)
    A('s_mov_b32 s69, 0')
    A('s_getreg_b32 s66, hwreg(HW_REG_XCC_ID, 0, 4)')
    A('s_and_b32 s66, s66, 7')
    A('s_mov_b32 s67, 0')
    A('s_mov_b32 s69, 0')
    import os
    W0 = int(os.environ.get('W0', '0'))
    if W0:
        A('s_cmp_lt_u32 s2, 192')
        A('s_cbranch_scc1 L_w0_ok')
        A('v_and_b32 v22, 63, v0')
        A('v_lshlrev_b32 v22, 3, v22')
        A(f's_mov_b32 s68, {TF + 17*512}')
        A('s_mov_b32 s42, 0')
        A.label('L_w0_fl')
        A('buffer_load_dwordx2 v[20:21], v22, s[4:7], s68 offen sc1')
        A('buffer_load_dwordx2 v[24:25], v22, s[4:7], s68 offen offset:512 sc1')
        A('s_waitcnt vmcnt(0)')
        A('v_add_u32 v20, v20, v21')
        A('v_add_u32 v24, v24, v25')
        A('v_add_u32 v20, v20, v24')
        A('v_cmp_ne_u32 vcc, 4, v20')
        A('s_bcnt1_i32_b64 s43, vcc')
        A(f's_cmp_le_u32 s43, {int(os.environ.get("W0N", "0"))}')
        A('s_cbranch_scc1 L_w0_ok')
        A(f's_mov_b32 s43, {W0}')
        A.label('L_w0_dl')
        for _ in range(4): A('s_nop 15')
        A('s_sub_u32 s43, s43, 1')
        A('s_cmp_lg_u32 s43, 0')
        A('s_cbranch_scc1 L_w0_dl')
        A('s_add_u32 s42, s42, 1')
        A('s_cmp_lt_u32 s42, 200')
        A('s_cbranch_scc1 L_w0_fl')
        A.label('L_w0_ok')
    A('s_sub_u32 s22, s2, 192')
    A('s_cmp_lt_u32 s22, 48')
    A('s_cbranch_scc0 L_w_next')
    A('s_mov_b32 s21, 0')
    A('s_lshr_b32 s71, s22, 1')
    A('s_and_b32 s23, s22, 1')
    A('s_mul_i32 s23, s23, 24')
    A('s_add_u32 s71, s71, s23')
    A('s_add_u32 s71, s71, 56')
    A('s_mov_b32 s72, s71')
    qk_task(A, half=True)
    A('s_branch L_w_fin')
    A.label('L_w_next')
    A('s_cmp_lg_u32 s20, 0')
    A('s_cbranch_scc1 L_w_nq')
    A('v_mov_b32 v4, 1')
    A('v_mov_b32 v5, 0')
    A('s_lshl_b32 s22, s66, 7')
    A(f's_add_u32 s22, s22, {WS["TF2"] + 17408}')
    A('s_mov_b64 exec, 1')
    A('buffer_atomic_add v4, v5, s[4:7], s22 offen sc0')
    A('s_waitcnt vmcnt(0)')
    A(f'v_mov_b32 v5, {49152 + 64}')
    A('ds_write_b32 v5, v4')
    A('s_mov_b64 exec, -1')
    A('s_waitcnt lgkmcnt(0)')
    A.label('L_w_nq')
    A('s_barrier')
    A(f'v_mov_b32 v5, {49152 + 64}')
    A('ds_read_b32 v4, v5')
    A('s_waitcnt lgkmcnt(0)')
    A('v_readfirstlane_b32 s70, v4')
    A('s_barrier')
    A('s_cmp_lt_u32 s70, 157')
    A('s_cbranch_scc1 L_w_got')
    A('s_add_u32 s66, s66, 1')
    A('s_and_b32 s66, s66, 7')
    A('s_add_u32 s67, s67, 1')
    A('s_cmp_lt_u32 s67, 8')
    A('s_cbranch_scc1 L_w_next')
    A('s_branch L_w_end')
    A.label('L_w_got')
    A('s_mul_i32 s24, s66, 3')
    A('s_lshl_b32 s23, s66, 2')
    A('s_cmp_lt_u32 s70, 14')
    A('s_cbranch_scc0 L_w_q1')
    A('s_cmp_ge_u32 s70, 7')
    A('s_cselect_b32 s21, 2, 1')
    A('s_cselect_b32 s22, 7, 0')
    A('s_sub_u32 s22, s70, s22')
    A('s_branch L_w_C')
    A.label('L_w_q1')
    A('s_cmp_lt_u32 s70, 21')
    A('s_cbranch_scc0 L_w_q2')
    A('s_mov_b32 s21, 0')
    A('s_sub_u32 s22, s70, 14')
    A('s_cmp_lt_u32 s22, 4')
    A('s_cbranch_scc1 L_w_C')
    A('s_sub_u32 s22, s22, 4')
    A('s_branch L_w_Q')
    A.label('L_w_q2')
    A('s_cmp_lt_u32 s70, 151')
    A('s_cbranch_scc0 L_w_q3')
    A('s_sub_u32 s70, s70, 21')
    magic_div(A, 21, 70, 10)
    A('s_mul_i32 s22, s21, 10')
    A('s_sub_u32 s22, s70, s22')
    A('s_add_u32 s21, s21, 3')
    A('s_cmp_lt_u32 s22, 7')
    A('s_cbranch_scc1 L_w_C')
    A('s_sub_u32 s21, s21, 2')
    A('s_sub_u32 s22, s22, 7')
    A('s_branch L_w_Q')
    A.label('L_w_q3')
    A('s_sub_u32 s22, s70, 151')
    A('s_cmp_ge_u32 s22, 3')
    A('s_cselect_b32 s21, 15, 14')
    A('s_cselect_b32 s70, 3, 0')
    A('s_sub_u32 s22, s22, s70')
    A.label('L_w_Q')
    A('s_add_u32 s71, s24, s22')
    A('s_add_u32 s71, s71, 32')
    A('s_branch L_w_T')
    A.label('L_w_C')
    A('s_add_u32 s23, s23, s22')
    A('s_add_u32 s24, s24, s22')
    A('s_add_u32 s24, s24, 52')
    A('s_cmp_lt_u32 s22, 4')
    A('s_cselect_b32 s71, s23, s24')
    A.label('L_w_T')
    A('s_mul_i32 s72, s21, 80')
    A('s_add_u32 s72, s72, s71')
    A.label('L_w_task')
    magic_div(A, 21, 72, 80)
    A('s_mul_i32 s22, s21, 80')
    A('s_sub_u32 s71, s72, s22')
    A('s_cmp_lt_u32 s71, 32')
    A('s_cbranch_scc1 L_w_vo')
    A('s_sub_u32 s22, s71, 32')
    qk_task(A)
    A('s_branch L_w_fin')
    A.label('L_w_vo')
    A('s_mov_b32 s22, s71')
    A('s_lshl_b32 s23, s21, 2')
    vo_task(A, False)
    A.label('L_w_fin')
    A('s_waitcnt vmcnt(0)')
    A('s_barrier')
    A('s_cmp_lg_u32 s20, 0')
    A('s_cbranch_scc1 L_w_nofl')
    A('s_lshl_b32 s22, s21, 9')
    A('s_lshl_b32 s23, s71, 2')
    A('s_add_u32 s22, s22, s23')
    A(f's_add_u32 s22, s22, {TF}')
    A('v_mov_b32 v4, 1')
    A('v_mov_b32 v5, 0')
    A('s_mov_b64 exec, 1')
    A('buffer_store_dword v4, v5, s[4:7], s22 offen sc1')
    A('s_mov_b64 exec, -1')
    import os
    if os.environ.get('PROF') == '3':
        A('s_memrealtime s[98:99]')
        A('s_waitcnt lgkmcnt(0)')
        A('v_mov_b32 v4, s98')
        A('s_lshl_b32 s22, s72, 2')
        A(f's_add_u32 s22, s22, {WS["FLAGS"] + 49152}')
        A('buffer_store_dword v4, v5, s[4:7], s22 offen')
    A.label('L_w_nofl')
    A('s_cmp_lg_u32 s69, 0')
    A('s_cbranch_scc1 L_post_try')
    A('v_and_b32 v22, 63, v0')
    A('v_lshlrev_b32 v22, 3, v22')
    A(f's_mov_b32 s68, {TF}')
    A('buffer_load_dwordx2 v[20:21], v22, s[4:7], s68 offen sc1')
    A('buffer_load_dwordx2 v[24:25], v22, s[4:7], s68 offen offset:512 sc1')
    A('buffer_load_dwordx2 v[26:27], v22, s[4:7], s68 offen offset:1024 sc1')
    A('s_waitcnt vmcnt(0)')
    A('v_and_b32 v20, v20, v21')
    A('v_and_b32 v24, v24, v25')
    A('v_and_b32 v26, v26, v27')
    A('v_and_b32 v20, v20, v24')
    A('v_and_b32 v20, v20, v26')
    A('v_cmp_ne_u32 vcc, 1, v20')
    A('s_or_b32 s43, vcc_lo, vcc_hi')
    A('v_mov_b32 v20, s43')
    A(f'v_mov_b32 v5, {49152 + 128}')
    A('s_cmp_lg_u32 s20, 0')
    A('s_cbranch_scc1 L_w_r0b')
    A('s_mov_b64 exec, 1')
    A('ds_write_b32 v5, v20')
    A('s_mov_b64 exec, -1')
    A('s_waitcnt lgkmcnt(0)')
    A.label('L_w_r0b')
    A('s_barrier')
    A('ds_read_b32 v4, v5')
    A('s_waitcnt lgkmcnt(0)')
    A('v_readfirstlane_b32 s69, v4')
    A('s_barrier')
    A('s_cmp_lg_u32 s69, 0')
    A('s_mov_b32 s69, 0')
    A('s_cbranch_scc1 L_w_next')
    A('s_mov_b32 s69, 1')
    A('s_branch L_post_try')
    A.label('L_w_end')
    wait_row(A, 'wr0', 0)
    wait_row(A, 'wr1', 1)
    wait_row(A, 'wr2', 2)
    A('s_mov_b32 s76, 0')
    gen_post(A, 'L_w_next')
    A('s_endpgm')
```

```python
from asmlib import *
from layout import WS
from k_post import SCALE, LOG2E

SPIN = 400000
MEMLDS = 0
RED = 10240
WLDS = 17408
TL = 16384
LDS_CHAIN = 65536 + 40960

class Lgkm:
    def __init__(s, A): s.A = A; s.q = []
    def issue(s, tag, text): s.A(text); s.q.append(tag)
    def need(s, tag):
        if tag in s.q:
            i = s.q.index(tag)
            n = len(s.q) - 1 - i
            s.A(f's_waitcnt lgkmcnt({min(n,15)})')
            s.q = s.q[i + 1:]

import os
PROF = int(os.environ.get('PROF', '0'))
def stamp(A, idx):
    if PROF in (1, 2):
        A('s_memrealtime s[98:99]' if PROF == 2 else 's_memtime s[98:99]')
        A('s_waitcnt lgkmcnt(0)')
        A(f's_mov_b32 s{72+idx}, s98')
def stamp_flush(A, n, tag):
    if PROF in (1, 2):
        A(f's_cmp_lg_u32 s40, {int(os.environ.get("PSTEP", "45"))}')
        A(f's_cbranch_scc1 L_{tag}_nofl')
        A('s_lshl_b32 s96, s2, 2')
        A('s_add_u32 s96, s96, s20')
        A('s_lshl_b32 s96, s96, 6')
        A(f's_add_u32 s96, s96, {WS["FLAGS"]}')
        for i in range(n):
            A(f'v_mov_b32 v26, s{72+i}')
            A('v_mov_b32 v27, 0')
            A(f'buffer_store_dword v26, v27, s[4:7], s96 offen offset:{4*i}')
        A(f'L_{tag}_nofl:')

KT = int(os.environ.get('KT', '0'))
XM = int(os.environ.get('XM', '6'))
XP = int(os.environ.get('XP', '14'))
D = {k: int(os.environ.get(k, '0')) for k in ('d0s1', 'd1s1', 'd0s2', 'd1s2', 'd0p', 'd1p')}
def delay(A, tag, n):
    if n:
        A(f's_mov_b32 s43, {n}')
        A(f'L_dl_{tag}:')
        A('s_nop 15')
        A('s_sub_u32 s43, s43, 1')
        A('s_cmp_lg_u32 s43, 0')
        A(f's_cbranch_scc1 L_dl_{tag}')
def tag_poll(A, tag, treg, vtag, sbase, nx, mask=None):
    A('s_mov_b32 s42, 0')
    if mask: A(f's_mov_b64 exec, {mask}')
    for j in range(KT):
        A(f'buffer_load_dword v{treg+j}, v{vtag}, s[4:7], s{sbase} offen sc1')
        if j < KT - 1:
            for _ in range(nx): A('s_nop 15')
    A.label(f'L_{tag}_tag')
    for j in range(KT):
        A(f's_waitcnt vmcnt({KT-1})')
        A(f'v_cmp_eq_u32 vcc, -1, v{treg+j}')
        A(f's_cbranch_vccz L_{tag}_tagok')
        A(f'buffer_load_dword v{treg+j}, v{vtag}, s[4:7], s{sbase} offen sc1')
        for _ in range(nx): A('s_nop 15')
    A('s_add_u32 s42, s42, 1')
    A('s_cmp_lt_u32 s42, s44')
    A(f's_cbranch_scc1 L_{tag}_tag')
    A.label(f'L_{tag}_tagok')
    if mask: A('s_mov_b64 exec, -1')

MS, PS = 10240, 20480
def kflag(A, t):
    A('s_cmp_eq_u32 s59, 0')
    A(f's_cbranch_scc1 L_kfl_{t}')
    A('v_mov_b32 v24, 1')
    A('v_mov_b32 v25, 0')
    A('s_mov_b64 exec, 1')
    A('buffer_store_dword v24, v25, s[4:7], s59 offen sc1')
    A('s_mov_b64 exec, -1')
    A('s_mov_b32 s59, 0')
    A.label(f'L_kfl_{t}')
PUB = RED + 5632
S1MODE = os.environ.get('S1MODE', 'flag')
def gather_mem(A, tag, sstep, extra=None):
    A(f's_mul_i32 s41, s{sstep}, {MS}')
    A(f's_add_u32 s41, s41, {WS["MEMB"]}')
    stamp(A, 0)
    flag = False
    def loads(sc):
        A(f'buffer_load_dwordx4 v[12:15], v4, s[4:7], s41 offen {sc}')
        A(f'buffer_load_dwordx4 v[16:19], v4, s[4:7], s41 offen offset:1024 {sc}')
        A('s_mov_b64 exec, s[60:61]')
        A(f'buffer_load_dwordx4 v[20:23], v4, s[4:7], s41 offen offset:2048 {sc}')
        A('s_mov_b64 exec, -1')
    if flag:
        A(f's_cmp_eq_u32 s{sstep}, 0')
        A(f's_cbranch_scc1 L_{tag}m_tagok2')
        tag_poll(A, tag + 'm', 24, 1, 41, XM, 's[64:65]')
        A.label(f'L_{tag}m_tagok2')
        A('s_mov_b32 s42, 0')
        loads('')
        A(f's_branch L_{tag}_chk')
    else:
        delay(A, tag + 'd0', D['d0' + tag])
        A('s_mov_b32 s42, 0')
    A.label(f'L_{tag}_poll')
    loads('sc1')
    A.label(f'L_{tag}_chk')
    A('s_waitcnt vmcnt(0)')
    if tag == 's1': kflag(A, 'a')
    A('v_max3_u32 v24, v12, v13, v14')
    A('v_max3_u32 v25, v15, v16, v17')
    A('v_max3_u32 v24, v24, v18, v19')
    A('v_max3_u32 v25, v25, v20, v21')
    A('v_max3_u32 v24, v24, v22, v23')
    A('v_max_u32 v24, v24, v25')
    A('v_cmp_eq_u32 vcc, -1, v24')
    A(f's_cbranch_vccz L_{tag}_ok')
    A('s_add_u32 s42, s42, 1')
    A('s_cmp_lt_u32 s42, s44')
    A(f's_cbranch_scc1 L_{tag}_poll')
    A('s_mov_b32 s44, 0')
    A.label(f'L_{tag}_ok')
    stamp(A, 1)
    if PROF in (1, 2): A('s_mov_b32 s79, s42')
    A(f'ds_write_b128 v4, v[12:15] offset:{MEMLDS}')
    A(f'ds_write_b128 v4, v[16:19] offset:{MEMLDS+1024}')
    A('s_mov_b64 exec, s[60:61]')
    A(f'ds_write_b128 v4, v[20:23] offset:{MEMLDS+2048}')
    A('s_mov_b64 exec, -1')
    if extra: extra()
    A('s_waitcnt lgkmcnt(0)')
    A('s_barrier')

from k_mega import TF, gen_worker, gen_pre, wait_row
def flag_issue(A, sreg):
    A(f's_lshr_b32 s45, s{sreg}, 2')
    A('s_lshl_b32 s45, s45, 9')
    A(f's_add_u32 s68, s45, {TF}')
    A('buffer_load_dwordx2 v[20:21], v1, s[4:7], s68 offen sc1')
def flag_check(A, tag, mask=None):
    A('s_mov_b32 s42, 0')
    A.label(f'L_{tag}_fl')
    A('v_and_b32 v20, v20, v21')
    A('v_cmp_ne_u32 vcc, 1, v20')
    if mask: A(f's_and_b64 vcc, vcc, {mask}')
    A(f's_cbranch_vccz L_{tag}_flok')
    A('s_add_u32 s42, s42, 1')
    A('s_cmp_lt_u32 s42, s44')
    A(f's_cbranch_scc0 L_{tag}_flto')
    A('buffer_load_dwordx2 v[20:21], v1, s[4:7], s68 offen sc1')
    A('s_waitcnt vmcnt(0)')
    A(f's_branch L_{tag}_fl')
    A.label(f'L_{tag}_flto')
    A('s_mov_b32 s44, 0')
    A.label(f'L_{tag}_flok')

def dpp_red32(A, op, v, t):
    for c in ['quad_perm:[1,0,3,2]', 'quad_perm:[2,3,0,1]', 'row_half_mirror', 'row_mirror']:
        A('s_nop 1')
        A(f'{op}_dpp v{v}, v{v}, v{v} {c} row_mask:0xf bank_mask:0xf')
    A(f'v_mov_b32 v{t}, v{v}')
    A('s_nop 1')
    A(f'v_permlane16_swap_b32 v{v}, v{t}')
    A('s_nop 1')
    A(f'{op} v{v}, v{v}, v{t}')

def tstep(A, slot=None):
    if PROF != 3: return
    l = A.newlabel('L_ts')
    A('s_or_b32 s96, s2, s20')
    A('s_cmp_lg_u32 s96, 0')
    A(f's_cbranch_scc1 {l}')
    A('s_memrealtime s[98:99]')
    A('s_waitcnt lgkmcnt(0)')
    A('v_mov_b32 v26, s98')
    A('v_mov_b32 v27, 0')
    if slot is None:
        A('s_lshl_b32 s96, s40, 2')
    else:
        A(f's_mov_b32 s96, {slot*4}')
    A(f's_add_u32 s96, s96, {WS["FLAGS"] + 28672}')
    A('buffer_store_dword v26, v27, s[4:7], s96 offen')
    A.label(l)

def ts2(A, k):
    if PROF != 3: return
    l = A.newlabel('L_ts2')
    A('s_cmp_lg_u32 s20, 0')
    A(f's_cbranch_scc1 {l}')
    A('s_memrealtime s[98:99]')
    A('s_waitcnt lgkmcnt(0)')
    A('v_mov_b32 v26, s98')
    A('v_mov_b32 v27, 0')
    A('s_lshl_b32 s96, s2, 5')
    A(f's_add_u32 s96, s96, {WS["FLAGS"] + 57344 + 4*k}')
    A('buffer_store_dword v26, v27, s[4:7], s96 offen')
    A.label(l)

def gen_chain(A):
    name = 'k_chain_kernel'
    kernel_header(A, name)
    A('s_cmp_ge_u32 s2, 256')
    A('s_cbranch_scc1 L_ch_end')
    srds(A, [('ws', 4), ('x', 8), ('Wv', 12)])
    A('v_lshrrev_b32 v1, 6, v0')
    A('s_nop 0')
    A('v_readfirstlane_b32 s20, v1')
    A('v_and_b32 v1, 63, v0')
    A('v_lshlrev_b32 v2, 4, v1')
    A(f's_mov_b32 s44, {SPIN}')
    A('s_mov_b32 s40, 0')
    tstep(A, 65)
    gen_pre(A)
    A('v_and_b32 v1, 63, v0')
    A('v_lshlrev_b32 v2, 4, v1')
    A('s_mul_i32 s21, s20, 2560')
    A('v_add_u32 v4, s21, v2')
    for r in range(20, 24):
        A(f'v_mov_b32 v{r}, 0')
    A(f's_mov_b32 s44, {SPIN}')
    A('s_mov_b32 s60, -1')
    A('s_mov_b32 s61, 0')
    A('s_mov_b32 s62, 0xffff')
    A('s_mov_b32 s63, 0')
    A('s_mov_b32 s64, 0xfffff')
    A('s_mov_b32 s65, 0')
    A('s_mov_b32 s40, 0')
    A('s_cmp_ge_u32 s2, 112')
    A('s_cbranch_scc1 L_ch_w')
    A('s_cmp_ge_u32 s2, 32')
    A('s_cbranch_scc1 L_ch_s2')
    gen_s1(A)
    A.label('L_ch_s2')
    gen_s2(A)
    A.label('L_ch_w')
    gen_worker(A)
    A.label('L_ch_end')
    A('s_endpgm')
    return name, kernel_desc(name, 256, 256), f'; @launch kernel={name} grid=(256,1,1) block=(256,1,1) lds={LDS_CHAIN}'

def gen_s1(A):
    from k_post import rnd2, xred1632
    QT, KT, KFL, WL = 10240, 16384, 22528, 34816
    AR, ACC, WT = 24, 40, 64
    A9 = 12
    KFR = 64
    def wreg(c, t):
        f = c * 6 + t
        return (80 + f * 8) if f < 22 else (256 + (f - 22) * 8)
    A('s_mul_i32 s22, s2, 12')
    A('s_mul_i32 s51, s20, 3')
    A('s_add_u32 s22, s22, s51')
    A(f's_mul_i32 s22, s22, {20*1024}')
    A(f's_add_u32 s22, s22, {WS["WqF"]}')
    KOFF = WS['WkF'] - WS['WqF']
    A(f's_mul_i32 s24, s20, {12*1024}')
    A(f'v_add_u32 v0, s24, v2')
    frs = [(c, t, hf) for c in range(10) for t in range(6) for hf in range(2)]
    def src_off(c, t, hf):
        return (t % 3) * 20 * 1024 + (KOFF if t >= 3 else 0) + (2 * c + hf) * 1024
    inplace = [f for f in frs if f[0] < 9 and wreg(f[0], f[1]) < 256]
    other = [f for f in frs if f not in inplace]
    for (c, t, hf) in inplace:
        r = wreg(c, t) + 4 * hf
        A(f's_add_u32 s23, s22, {src_off(c, t, hf)}')
        A(f'buffer_load_dwordx4 v[{r}:{r+3}], v2, s[4:7], s23 offen')
    def batch_load(fl):
        for n, (c, t, hf) in enumerate(fl):
            r = 12 + 4 * n
            A(f's_add_u32 s23, s22, {src_off(c, t, hf)}')
            A(f'buffer_load_dwordx4 v[{r}:{r+3}], v2, s[4:7], s23 offen')
    def batch_fin(fl):
        for n, (c, t, hf) in enumerate(fl):
            r = 12 + 4 * n
            A(f'v_permlane16_swap_b32 v{r}, v{r+2}')
            A(f'v_permlane16_swap_b32 v{r+1}, v{r+3}')
        A('s_nop 1')
        for n, (c, t, hf) in enumerate(fl):
            r = 12 + 4 * n
            if c < 9:
                d = wreg(c, t) - 256 + 4 * hf
                for q, sr_ in enumerate((0, 2, 1, 3)):
                    A(f'v_accvgpr_write_b32 a{d+q}, v{r+sr_}')
            else:
                A(f'v_swap_b32 v{r+1}, v{r+2}')
                A('s_nop 0')
                A(f'ds_write_b128 v0, v[{r}:{r+3}] offset:{WL + (t*2 + hf)*1024}')
        A('s_waitcnt lgkmcnt(0)')
    batches = [other[i:i+16] for i in range(0, len(other), 16)]
    batch_load(batches[0])
    A('s_waitcnt vmcnt(16)')
    for (c, t, hf) in inplace:
        r = wreg(c, t) + 4 * hf
        A(f'v_permlane16_swap_b32 v{r}, v{r+2}')
        A(f'v_permlane16_swap_b32 v{r+1}, v{r+3}')
        A('s_nop 1')
        A(f'v_swap_b32 v{r+1}, v{r+2}')
    for bi, fl in enumerate(batches):
        if bi > 0: batch_load(fl)
        A('s_waitcnt vmcnt(0)')
        batch_fin(fl)
    for r in range(20, 24):
        A(f'v_mov_b32 v{r}, 0')
    A('v_and_b32 v5, 15, v1')
    A('v_lshrrev_b32 v6, 4, v1')
    A('v_and_b32 v7, 8, v1')
    A('v_cmp_eq_u32 vcc, 0, v7')
    A('v_mov_b32 v3, 0xeeeeeeee')
    A('v_mov_b32 v7, 0x44444444')
    A('v_cndmask_b32 v3, v3, v7, vcc')
    A('v_lshrrev_b32 v7, 2, v5')
    A('v_lshlrev_b32 v7, 4, v7')
    A('v_and_b32 v8, 3, v5')
    A('v_lshlrev_b32 v8, 1, v8')
    A('v_add_u32 v7, v7, v8')
    A('v_and_b32 v8, 1, v6')
    A('v_lshlrev_b32 v8, 8, v8')
    A('v_add_u32 v7, v7, v8')
    A('v_lshrrev_b32 v8, 1, v6')
    A('v_lshlrev_b32 v8, 6, v8')
    A('v_add_u32 v7, v7, v8')
    A('v_lshlrev_b32 v8, 6, v5')
    A('v_lshlrev_b32 v9, 4, v6')
    A('v_add_u32 v8, v8, v9')
    A('v_mov_b32 v11, v8')
    A('v_lshlrev_b32 v8, 7, v6')
    A('v_lshlrev_b32 v9, 4, v5')
    A('v_add_u32 v8, v8, v9')
    A('v_add_u32 v8, 128, v8')
    A('v_lshlrev_b32 v10, 3, v6')
    A('v_add_u32 v9, v9, v10')
    A('v_cmp_gt_u32 vcc, 2, v6')
    A('s_mov_b64 s[48:49], vcc')
    A('s_mov_b32 s66, 0x00ff00ff')
    A('s_mov_b32 s67, 0x00ff00ff')
    A('s_mov_b32 s46, 0x00ff00ff')
    A('s_mov_b32 s47, 0')
    for a in range(3):
        A(f's_add_u32 s50, s51, {a}')
        A('s_lshr_b32 s52, s50, 1')
        A('s_lshl_b32 s52, s52, 10')
        A('s_and_b32 s50, s50, 1')
        A('s_lshl_b32 s50, s50, 3')
        A(f's_add_u32 s{53+a}, s50, s52')
    A('v_add_u32 v5, s53, v7')
    A('v_add_u32 v6, s54, v7')
    A('v_add_u32 v7, s55, v7')
    A(f's_mul_i32 s24, s20, 3072')
    A('v_add_u32 v10, s24, v2')
    A(f's_mov_b32 s58, {SCALE}')
    A(f's_mov_b32 s56, {LOG2E}')
    def kf_prefetch(sreg):
        A(f's_mul_i32 s45, s{sreg}, {2*192*1024}')
        A(f's_mul_i32 s50, s2, {6*1024}')
        A('s_add_u32 s45, s45, s50')
        A(f's_add_u32 s45, s45, {WS["KF"]}')
        A('s_add_u32 s45, s45, s57')
        for a in range(3):
            A(f'buffer_load_dwordx4 v[{KFR+a*4}:{KFR+a*4+3}], v2, s[4:7], s45 offen offset:{a*1024}')
    A('s_cmp_ge_u32 s20, 2')
    A(f's_cselect_b32 s57, {192*1024 - 6*1024}, 0')
    A('s_mul_i32 s24, s20, 3072')
    A('s_add_u32 s57, s57, s24')
    A('v_lshlrev_b32 v1, 3, v1')
    flag_issue(A, 40)
    A('s_waitcnt vmcnt(0)')
    ts2(A, 0)
    A('s_mov_b32 s92, 0xf0000000')
    A('s_mov_b32 s93, -1')
    flag_check(A, 's1i', 's[92:93]')
    kf_prefetch(40)
    A('s_mov_b32 s59, 0')
    A.label('L_s1_loop')
    tstep(A)
    for r in range(24): A(f'v_mov_b32 v{ACC+r}, 0')
    for r in range(20, 24): A(f'v_mov_b32 v{r}, 0')
    def kfw():
        for a in range(3):
            A(f'ds_write_b128 v10, v[{KFR+a*4}:{KFR+a*4+3}] offset:{KFL + a*1024}')
    A('s_add_u32 s50, s40, 1')
    A('s_min_u32 s52, s50, 63')
    A('s_cmp_lt_u32 s52, 12')
    A('s_cselect_b32 s92, 0xf0000000, -1')
    A('s_lshr_b32 s45, s52, 2')
    A('s_lshl_b32 s45, s45, 9')
    A(f's_add_u32 s68, s45, {TF}')
    A('buffer_load_dwordx2 v[76:77], v1, s[4:7], s68 offen sc1')
    def kfw2():
        kfw()
        A('v_and_b32 v76, v76, v77')
        A('v_cmp_ne_u32 vcc, 1, v76')
        A('s_and_b64 s[70:71], vcc, s[92:93]')
    gather_mem(A, 's1', 40, extra=kfw2)
    stamp(A, 2)
    L = Lgkm(A)
    def rdA(c):
        b = A9 if c == 9 else AR + (c % 4) * 4
        L.issue(('A', c), f'ds_read_b128 v[{b}:{b+3}], v2 offset:{MEMLDS + c*1024}')
    def rdW(t):
        b = WT + (t % 2) * 8
        L.issue(('W', t, 0), f'ds_read_b128 v[{b}:{b+3}], v0 offset:{WL + t*2048}')
        L.issue(('W', t, 1), f'ds_read_b128 v[{b+4}:{b+7}], v0 offset:{WL + t*2048 + 1024}')
    rdA(0); rdA(1); rdA(9); rdW(0); rdA(2); rdW(1)
    for c in range(9):
        if c + 3 < 9: rdA(c + 3)
        L.need(('A', c))
        b = AR + (c % 4) * 4
        for t in range(6):
            d = ACC + t * 4
            A(f'v_smfmac_f32_16x16x64_bf16 v[{d}:{d+3}], v[{b}:{b+3}], {reg(wreg(c,t),8)}, v3')
        if c < 6:
            L.need(('A', 9)); L.need(('W', c, 1))
            d = ACC + c * 4
            w = WT + (c % 2) * 8
            A(f'v_smfmac_f32_16x16x64_bf16 v[{d}:{d+3}], v[{A9}:{A9+3}], v[{w}:{w+7}], v3')
            if c + 2 < 6: rdW(c + 2)
    A('s_nop 7')
    A('s_nop 3')
    stamp(A, 3)
    for t in range(6):
        d = ACC + t * 4
        A(f'v_permlane32_swap_b32 v{d}, v{d+1}')
        A(f'v_permlane32_swap_b32 v{d+2}, v{d+3}')
    A('s_nop 0')
    for t in range(6):
        d = ACC + t * 4
        A(f'v_add_f32 v{d}, v{d}, v{d+1}')
        A(f'v_add_f32 v{d+2}, v{d+2}, v{d+3}')
        A(f'v_cvt_pk_bf16_f32 v{d}, v{d}, v{d+2}')
        base = QT if t < 3 else KT
        A(f'ds_write_b16 v{5 + t % 3}, v{d} offset:{base}')
        A(f'ds_write_b16_d16_hi v{5 + t % 3}, v{d} offset:{base + 128}')
    A(f's_mul_i32 s45, s40, {PS}')
    A('s_mul_i32 s50, s2, 640')
    A('s_add_u32 s45, s45, s50')
    A(f's_add_u32 s45, s45, {WS["PB"]}')
    A('s_waitcnt lgkmcnt(0)')
    stamp(A, 4)
    A('s_barrier')
    stamp(A, 5)
    A('s_cmp_lg_u32 s20, 0')
    A('s_cbranch_scc1 L_s1_nopub')
    SA = 12
    L = Lgkm(A)
    def rdS(ks):
        b = 24 + (ks % 3) * 16
        L.issue(('q', ks), f'ds_read_b128 v[{b}:{b+3}], v11 offset:{QT + ks*1024}')
        L.issue(('k', ks), f'ds_read_b128 v[{b+4}:{b+7}], v11 offset:{KT + ks*1024}')
        L.issue(('f0', ks), f'ds_read_b128 v[{b+8}:{b+11}], v2 offset:{KFL + ks*1024}')
        L.issue(('f1', ks), f'ds_read_b128 v[{b+12}:{b+15}], v2 offset:{KFL + (6+ks)*1024}')
    rdS(0); rdS(1); rdS(2)
    for ks in range(6):
        b = 24 + (ks % 3) * 16
        for st, tg in enumerate(('k', 'f0', 'f1')):
            L.need((tg, ks))
            d = SA + st * 4
            c = '0' if ks == 0 else f'v[{d}:{d+3}]'
            A(f'v_mfma_f32_16x16x32_bf16 v[{d}:{d+3}], v[{b+4+4*st}:{b+7+4*st}], v[{b}:{b+3}], {c}')
        if ks + 3 < 6: rdS(ks + 3)
    A('s_nop 7')
    A('v_mov_b32 v36, s58')
    A('v_mov_b32 v37, s58')
    A('v_mov_b32 v38, s56')
    A('v_mov_b32 v39, s56')
    vals = list(range(SA, SA + 12))
    A('v_mov_b32 v25, 0xff800000')
    A(f'v_max3_f32 v26, v{vals[0]}, v{vals[1]}, v{vals[2]}')
    A(f'v_max3_f32 v27, v{vals[4]}, v{vals[5]}, v{vals[6]}')
    A(f'v_max_f32 v26, v26, v{vals[3]}')
    A(f'v_max3_f32 v27, v27, v{vals[7]}, v{vals[8]}')
    A('v_cndmask_b32 v26, v25, v26, s[48:49]')
    A(f'v_max3_f32 v27, v27, v{vals[9]}, v{vals[10]}')
    A(f'v_max3_f32 v26, v26, v27, v{vals[11]}')
    for i in range(0, 12, 2):
        A(f'v_cvt_pk_bf16_f32 v{28+i//2}, v{vals[i]}, v{vals[i+1]}')
    A('v_mov_b32 v27, v26')
    for i in range(0, 12, 2):
        A(f'v_lshlrev_b32 v{vals[i]}, 16, v{28+i//2}')
        A(f'v_and_b32 v{vals[i+1]}, 0xffff0000, v{28+i//2}')
    A('v_permlane16_swap_b32 v26, v27')
    for i in range(0, 12, 2):
        A(f'v_pk_mul_f32 v[{vals[i]}:{vals[i+1]}], v[{vals[i]}:{vals[i+1]}], v[36:37]')
    A('v_max_f32 v26, v26, v27')
    for i in range(0, 12, 2):
        A(f'v_cvt_pk_bf16_f32 v{28+i//2}, v{vals[i]}, v{vals[i+1]}')
    A('v_mov_b32 v27, v26')
    for i in range(0, 6, 2):
        A(f'v_lshlrev_b32 v{vals[i]}, 16, v{28+i//2}')
        A(f'v_and_b32 v{vals[i+1]}, 0xffff0000, v{28+i//2}')
    A('v_permlane32_swap_b32 v26, v27')
    for i in range(6, 12, 2):
        A(f'v_lshlrev_b32 v{vals[i]}, 16, v{28+i//2}')
        A(f'v_and_b32 v{vals[i+1]}, 0xffff0000, v{28+i//2}')
    A('v_max_f32 v26, v26, v27')
    A('v_cvt_pk_bf16_f32 v27, v26, v26')
    A('v_lshlrev_b32 v26, 16, v27')
    A('v_mul_f32 v26, s58, v26')
    A('v_cvt_pk_bf16_f32 v27, v26, v26')
    A('v_lshlrev_b32 v26, 16, v27')
    A('v_mul_f32 v26, s56, v26')
    A('v_xor_b32 v26, 0x80000000, v26')
    A('v_mov_b32 v27, v26')
    for i in range(0, 12, 2):
        A(f'v_pk_fma_f32 v[{vals[i]}:{vals[i+1]}], v[{vals[i]}:{vals[i+1]}], v[38:39], v[26:27]')
    for v in vals:
        A(f'v_exp_f32 v{v}, v{v}')
    A('s_nop 0')
    for r in range(4):
        A(f'v_cndmask_b32 v{vals[r]}, 0, v{vals[r]}, s[48:49]')
    A(f'v_pk_add_f32 v[26:27], v[{vals[4]}:{vals[5]}], v[{vals[6]}:{vals[7]}]')
    A(f'v_pk_add_f32 v[34:35], v[{vals[8]}:{vals[9]}], v[{vals[10]}:{vals[11]}]')
    A(f'v_pk_add_f32 v[26:27], v[26:27], v[{vals[0]}:{vals[1]}]')
    A(f'v_pk_add_f32 v[34:35], v[34:35], v[{vals[2]}:{vals[3]}]')
    A('v_pk_add_f32 v[26:27], v[26:27], v[34:35]')
    A('v_add_f32 v26, v26, v27')
    xred1632(A, 'v_add_f32', 26, 27)
    A('v_rcp_f32 v26, v26')
    A('s_nop 0')
    A('v_mov_b32 v27, v26')
    for i in range(0, 12, 2):
        A(f'v_pk_mul_f32 v[{vals[i]}:{vals[i+1]}], v[{vals[i]}:{vals[i+1]}], v[26:27]')
    for i in range(6):
        src = vals[4 + 2 * i] if i < 4 else vals[2 * (i - 4)]
        A(f'v_cvt_pk_bf16_f32 v{28+i}, v{src}, v{src+1}')
    A('s_mov_b64 exec, s[66:67]')
    A('buffer_store_dwordx4 v[28:31], v8, s[4:7], s45 offen sc1')
    A('s_mov_b64 exec, s[46:47]')
    A('buffer_store_dwordx2 v[32:33], v9, s[4:7], s45 offen sc1')
    A('s_mov_b64 exec, -1')
    A('s_branch L_s1_pubd')
    A.label('L_s1_nopub')
    A('s_sub_u32 s50, s20, 1')
    A('s_lshl_b32 s50, s50, 11')
    A('v_add_u32 v24, s50, v11')
    A(f'ds_read_b128 v[28:31], v24 offset:{KT}')
    A(f'ds_read_b128 v[32:35], v24 offset:{KT + 1024}')
    A('v_add_u32 v24, s50, v2')
    A('s_lshl_b32 s45, s40, 5')
    A('s_add_u32 s45, s45, s2')
    A(f's_mul_i32 s45, s45, {6*1024}')
    A(f's_add_u32 s45, s45, {WS["KMF"]}')
    A('s_waitcnt lgkmcnt(0)')
    A('buffer_store_dwordx4 v[28:31], v24, s[4:7], s45 offen sc1')
    A('buffer_store_dwordx4 v[32:35], v24, s[4:7], s45 offen offset:1024 sc1')
    A('s_lshl_b32 s59, s40, 9')
    A('s_lshl_b32 s50, s2, 4')
    A('s_add_u32 s59, s59, s50')
    A('s_lshl_b32 s50, s20, 2')
    A('s_add_u32 s59, s59, s50')
    A(f's_add_u32 s59, s59, {WS["TF3"]}')
    A.label('L_s1_pubd')
    stamp(A, 6)
    A('s_cmp_eq_u64 s[70:71], 0')
    A('s_cbranch_scc1 L_s1_flgood')
    A('buffer_load_dwordx2 v[20:21], v1, s[4:7], s68 offen sc1')
    A('s_waitcnt vmcnt(0)')
    flag_check(A, 's1l', 's[92:93]')
    A.label('L_s1_flgood')
    A('s_add_u32 s50, s40, 1')
    A('s_min_u32 s52, s50, 63')
    kf_prefetch(52)
    stamp_flush(A, 8, 's1')
    A('s_add_u32 s40, s40, 1')
    A('s_cmp_lt_u32 s40, 64')
    A('s_cbranch_scc1 L_s1_loop')
    tstep(A)
    A('s_waitcnt vmcnt(0)')
    kflag(A, 'b')
    A('s_endpgm')

def gen_s2(A):
    PT, PM, VT, MOP, ACCM, ACC, VMOP, PK = 24, 56, 64, 96, 112, 128, 132, 140
    def wreg(ks, pp):
        f = ks * 4 + pp
        return (192 + f * 4) if f < 16 else (256 + (f - 16) * 4)
    ts2(A, 0)
    for r in range(20, 24):
        A(f'v_mov_b32 v{r}, 0')
    A('s_sub_u32 s21, s2, 32')
    A('s_lshr_b32 s22, s21, 1')
    A('s_and_b32 s23, s21, 1')
    A('v_and_b32 v5, 15, v1')
    A('v_lshrrev_b32 v6, 4, v1')
    A('v_and_b32 v7, 7, v1')
    A('v_lshrrev_b32 v8, 3, v5')
    A('s_lshl_b32 s24, s23, 3')
    A('v_lshlrev_b32 v9, 4, v6')
    A('v_add_u32 v9, v9, v7')
    A('v_add_u32 v9, s24, v9')
    A('v_lshlrev_b32 v9, 4, v9')
    A(f'v_mul_u32_u24 v10, {40*1024}, v8')
    A('v_add_u32 v9, v9, v10')
    A('s_lshl_b32 s24, s20, 3')
    A('s_mul_i32 s24, s24, 40')
    A('s_add_u32 s24, s24, s22')
    A('s_lshl_b32 s24, s24, 10')
    A(f's_add_u32 s24, s24, {WS["WVOF"]}')
    A('v_min_u32 v22, 39, v1')
    A('v_lshlrev_b32 v22, 2, v22')
    A('s_mul_i32 s68, s20, 160')
    A(f's_add_u32 s68, s68, {TF + 17*512}')
    A('s_mov_b32 s42, 0')
    A.label('L_s2w_fl')
    A('buffer_load_dword v20, v22, s[4:7], s68 offen sc1')
    A('s_waitcnt vmcnt(0)')
    A('v_cmp_ne_u32 vcc, 1, v20')
    A('s_cbranch_vccz L_s2w_ok')
    A('s_add_u32 s42, s42, 1')
    A('s_cmp_lt_u32 s42, s44')
    A('s_cbranch_scc1 L_s2w_fl')
    A('s_mov_b32 s44, 0')
    A.label('L_s2w_ok')
    for ks in range(20):
        for pp in range(4):
            r = wreg(ks, pp)
            A(f's_add_u32 s25, s24, {(ks*32 + 2*pp)*40*1024}')
            A(f'buffer_load_dwordx4 {reg(r,4)}, v9, s[4:7], s25 offen')
    ts2(A, 1)
    A('v_lshrrev_b32 v9, 1, v6')
    A('v_lshlrev_b32 v9, 7, v9')
    A('v_lshlrev_b32 v10, 4, v7')
    A('v_add_u32 v9, v9, v10')
    A('v_and_b32 v10, 1, v6')
    A('v_lshlrev_b32 v10, 3, v10')
    A('v_add_u32 v9, v9, v10')
    MB = [9, 148, 149, 150, 151]
    for j in range(1, 5):
        A(f'v_add_u32 v{MB[j]}, {2048*j}, v9')
    A('v_lshlrev_b32 v10, 8, v8')
    A('s_lshl_b32 s24, s23, 3')
    A('v_add_u32 v11, s24, v7')
    A('v_lshlrev_b32 v11, 4, v11')
    A('v_add_u32 v10, v10, v11')
    A('v_lshlrev_b32 v11, 3, v6')
    A('v_add_u32 v10, v10, v11')
    A('s_lshl_b32 s24, s20, 11')
    A(f's_add_u32 s24, s24, {TL}')
    A('v_add_u32 v11, s24, v10')
    A('v_add_u32 v152, s24, v2')
    A('v_lshlrev_b32 v153, 4, v7')
    A('v_lshlrev_b32 v154, 7, v6')
    A('v_add_u32 v154, v154, v153')
    A('v_mul_u32_u24 v155, 640, v6')
    A('v_add_u32 v155, v155, v153')
    A('s_mov_b32 s66, 0x00ff00ff')
    A('s_mov_b32 s67, 0x00ff00ff')
    for r in range(PT, PT + 40): A(f'v_mov_b32 v{r}, 0')
    A('s_lshl_b32 s24, s20, 10')
    A('v_add_u32 v156, s24, v2')
    A('v_and_b32 v157, 1, v8')
    A('s_lshl_b32 s24, s23, 1')
    A('v_add_u32 v158, s24, v157')
    A('v_lshlrev_b32 v158, 4, v158')
    A('v_add_u32 v158, v158, v7')
    A('v_lshlrev_b32 v158, 4, v158')
    A('s_lshr_b32 s24, s22, 1')
    A('s_lshl_b32 s24, s24, 9')
    A('s_and_b32 s25, s22, 1')
    A('s_lshl_b32 s25, s25, 1')
    A('s_add_u32 s25, s25, s23')
    A('s_lshl_b32 s25, s25, 7')
    A('s_add_u32 s24, s24, s25')
    A('v_lshlrev_b32 v159, 4, v7')
    A('v_lshlrev_b32 v157, 3, v157')
    A('v_add_u32 v159, v159, v157')
    A('v_add_u32 v159, s24, v159')
    for r in range(4): A(f'v_mov_b32 v{PK+r}, 0')
    A(f'ds_write_b128 v152, v[{PK}:{PK+3}]')
    A(f'ds_write_b128 v152, v[{PK}:{PK+3}] offset:1024')
    def vt_prefetch(sreg):
        A(f's_lshl_b32 s45, s{sreg}, 5')
        A('s_lshl_b32 s50, s20, 3')
        A('s_add_u32 s45, s45, s50')
        A('s_mul_i32 s45, s45, 40')
        A('s_add_u32 s45, s45, s22')
        A('s_lshl_b32 s45, s45, 10')
        A(f's_add_u32 s45, s45, {WS["VOF"]}')
        for hh in range(8):
            A(f'buffer_load_dwordx4 v[{VT+hh*4}:{VT+hh*4+3}], v2, s[4:7], s45 offen')
            if hh < 7: A(f's_add_u32 s45, s45, {40*1024}')
    T2 = 32768
    A('v_lshlrev_b32 v160, 10, v8')
    A('v_lshlrev_b32 v161, 8, v6')
    A('v_add_u32 v160, v160, v161')
    A('s_lshl_b32 s24, s23, 3')
    A('v_add_u32 v161, s24, v7')
    A('v_lshlrev_b32 v161, 4, v161')
    A('v_add_u32 v160, v160, v161')
    A('s_lshl_b32 s24, s20, 13')
    A(f's_add_u32 s24, s24, {T2}')
    A('v_add_u32 v160, s24, v160')
    A('v_add_u32 v161, s24, v2')
    A('v_lshrrev_b32 v162, 1, v6')
    A('v_lshlrev_b32 v162, 8, v162')
    A('v_lshlrev_b32 v163, 4, v5')
    A('v_add_u32 v162, v162, v163')
    A('v_and_b32 v163, 1, v6')
    A('v_lshlrev_b32 v163, 3, v163')
    A('v_add_u32 v162, v162, v163')
    STG = 65536
    SR = [164, 168, 172, 176, 180, 184, 188, 128, 132, 136]
    A(f's_mul_i32 s24, s20, {10*1024}')
    A(f's_add_u32 s24, s24, {STG}')
    A('v_add_u32 v163, s24, v2')
    A(f'v_add_u32 v162, {STG}, v162')
    def stage_ld(sreg):
        A(f's_mul_i32 s45, s{sreg}, {40*1024}')
        A(f's_mul_i32 s50, s20, {10*1024}')
        A('s_add_u32 s45, s45, s50')
        A(f's_add_u32 s45, s45, {WS["H1F"]}')
        for f in range(10):
            b = SR[f]
            A(f'buffer_load_dwordx4 v[{b}:{b+3}], v2, s[4:7], s45 offen offset:{(f%4)*1024}')
            if f % 4 == 3: A('s_add_u32 s45, s45, 4096')
    def stage_wr():
        for f in range(10):
            b = SR[f]
            A(f'ds_write_b128 v163, v[{b}:{b+3}] offset:{f*1024}')
    def tokvo():
        L = Lgkm(A)
        def rd(f):
            b = MOP + (f % 4) * 4
            L.issue((f, 0), f'ds_read_b64 v[{b}:{b+1}], v162 offset:{f*1024}')
            L.issue((f, 1), f'ds_read_b64 v[{b+2}:{b+3}], v162 offset:{f*1024 + 512}')
        for f in range(3): rd(f)
        for f in range(40):
            tt, ks = f // 20, f % 20
            if f + 3 < 40: rd(f + 3)
            L.need((f, 1))
            b = MOP + (f % 4) * 4
            for pp in range(4):
                d = ACCM + pp * 4
                c = '0' if ks == 0 else f'v[{d}:{d+3}]'
                A(f'v_mfma_f32_16x16x32_bf16 v[{d}:{d+3}], v[{b}:{b+3}], {reg(wreg(ks,pp),4)}, {c}')
            if ks == 19:
                A('s_nop 7')
                A('s_nop 7')
                for pp in range(4):
                    d = ACCM + pp * 4
                    A(f'v_cvt_pk_bf16_f32 v{PK+2*pp}, v{d}, v{d+1}')
                    A(f'v_cvt_pk_bf16_f32 v{PK+2*pp+1}, v{d+2}, v{d+3}')
                for pp in range(4):
                    L.issue(('w', tt, pp), f'ds_write_b64 v160, v[{PK+2*pp}:{PK+2*pp+1}] offset:{pp*2048 + tt*8}')
                A('s_nop 1')
    def tokrd():
        A('s_waitcnt lgkmcnt(0)')
        for hh in range(8):
            A(f'ds_read_b128 v[{VT+hh*4}:{VT+hh*4+3}], v161 offset:{hh*1024}')
    A('v_lshlrev_b32 v1, 3, v1')
    stage_ld(40)
    A('s_waitcnt vmcnt(0) lgkmcnt(0)')
    ts2(A, 2)
    stage_wr()
    A('s_waitcnt lgkmcnt(0)')
    A('s_barrier')
    tokvo()
    tokrd()
    A('s_waitcnt vmcnt(0) lgkmcnt(0)')
    ts2(A, 3)
    A.label('L_s2_loop')
    A('s_cmp_ge_u32 s40, 3')
    A('s_cbranch_scc1 L_s2_nost')
    A('s_add_u32 s51, s40, 1')
    stage_ld(51)
    A.label('L_s2_nost')
    def stw():
        A('s_cmp_ge_u32 s40, 3')
        A('s_cbranch_scc1 L_s2_nosw')
        stage_wr()
        A.label('L_s2_nosw')
    gather_mem(A, 's2', 40, extra=stw)
    stamp(A, 2)
    A('s_add_u32 s50, s40, 1')
    A('s_min_u32 s52, s50, 63')
    flag_issue(A, 52)
    L = Lgkm(A)
    def rd(ks):
        b = MOP + (ks % 4) * 4
        L.issue(ks, f'ds_read2_b64 v[{b}:{b+3}], v{MB[ks//4]} offset0:{(ks%4)*64} offset1:{(ks%4)*64+32}')
    for ks in range(3): rd(ks)
    for ks in range(20):
        if ks + 3 < 20: rd(ks + 3)
        L.need(ks)
        b = MOP + (ks % 4) * 4
        for pp in range(4):
            d = ACCM + pp * 4
            c = '0' if ks == 0 else f'v[{d}:{d+3}]'
            A(f'v_mfma_f32_16x16x32_bf16 v[{d}:{d+3}], v[{b}:{b+3}], {reg(wreg(ks,pp),4)}, {c}')
    A('s_nop 7')
    A('s_nop 3')
    A('s_lshl_b32 s45, s40, 3')
    A('s_lshl_b32 s50, s20, 1')
    A('s_add_u32 s45, s45, s50')
    A('s_mul_i32 s45, s45, 40')
    A('s_add_u32 s45, s45, s22')
    A('s_lshl_b32 s45, s45, 10')
    A(f's_add_u32 s45, s45, {WS["VOMF"]}')
    A(f's_add_u32 s50, s45, {40*1024}')
    for pp in range(4):
        d = ACCM + pp * 4
        A(f'v_cvt_pk_bf16_f32 v{PK+2*pp}, v{d}, v{d+1}')
        A(f'v_cvt_pk_bf16_f32 v{PK+2*pp+1}, v{d+2}, v{d+3}')
    A('s_mov_b64 exec, s[60:61]')
    for pp in range(4):
        A(f'ds_write_b64 v11, v[{PK+2*pp}:{PK+2*pp+1}] offset:{(pp>>1)*1024 + (pp&1)*512}')
        A(f'buffer_store_dwordx2 v[{PK+2*pp}:{PK+2*pp+1}], v10, s[4:7], s{45 if pp < 2 else 50} offen offset:{(pp&1)*512} sc1')
    A('s_mov_b64 exec, -1')
    A(f'ds_read_b128 v[{VMOP}:{VMOP+3}], v152')
    A(f'ds_read_b128 v[{VMOP+4}:{VMOP+7}], v152 offset:1024')
    A('s_cmp_ge_u32 s40, 3')
    A('s_cbranch_scc1 L_s2_notok')
    tokvo()
    A.label('L_s2_notok')
    A(f's_mul_i32 s45, s40, {PS}')
    A(f's_add_u32 s45, s45, {WS["PB"]}')
    A('s_mul_i32 s50, s20, 5120')
    A('s_add_u32 s45, s45, s50')
    A(f's_add_u32 s50, s45, 2560')
    stamp(A, 3)
    delay(A, 'pd0', D['d0p'])
    A('s_mov_b32 s42, 0')
    A.label('L_s2_ppoll')
    A('s_mov_b64 exec, s[66:67]')
    for hh in range(8):
        A(f'buffer_load_dwordx4 v[{PT+hh*4}:{PT+hh*4+3}], v154, s[4:7], s{45 if hh < 4 else 50} offen offset:{128 + (hh&3)*640} sc1')
    for hg in range(2):
        A(f'buffer_load_dwordx4 v[{PM+hg*4}:{PM+hg*4+3}], v155, s[4:7], s{45 if hg == 0 else 50} offen sc1')
    A('s_mov_b64 exec, -1')
    A('s_waitcnt vmcnt(0)')
    regs = list(range(PT, PT + 40))
    A(f'v_max3_u32 v12, v{regs[0]}, v{regs[1]}, v{regs[2]}')
    A(f'v_max3_u32 v13, v{regs[3]}, v{regs[4]}, v{regs[5]}')
    k = 6; tgl = 0
    while k + 1 < 40:
        A(f'v_max3_u32 v{12+tgl}, v{12+tgl}, v{regs[k]}, v{regs[k+1]}')
        k += 2; tgl ^= 1
    A('v_max_u32 v12, v12, v13')
    A('v_cmp_eq_u32 vcc, -1, v12')
    A('s_cbranch_vccz L_s2_pok')
    A('s_add_u32 s42, s42, 1')
    A('s_cmp_lt_u32 s42, s44')
    A('s_cbranch_scc1 L_s2_ppoll')
    A('s_mov_b32 s44, 0')
    A.label('L_s2_pok')
    stamp(A, 4)
    if PROF in (1, 2): A('s_mov_b32 s80, s42')
    A('s_waitcnt lgkmcnt(0)')
    for hh in range(8):
        d = ACC if hh % 2 == 0 else ACCM
        c = '0' if hh < 2 else f'v[{d}:{d+3}]'
        A(f'v_mfma_f32_16x16x32_bf16 v[{d}:{d+3}], v[{VT+hh*4}:{VT+hh*4+3}], v[{PT+hh*4}:{PT+hh*4+3}], {c}')
    for hg in range(2):
        d = ACC if hg == 0 else ACCM
        A(f'v_mfma_f32_16x16x32_bf16 v[{d}:{d+3}], v[{VMOP+hg*4}:{VMOP+hg*4+3}], v[{PM+hg*4}:{PM+hg*4+3}], v[{d}:{d+3}]')
    A('s_nop 7')
    A('s_nop 3')
    for r in range(4):
        A(f'v_add_f32 v{ACC+r}, v{ACC+r}, v{ACCM+r}')
    A(f'ds_write_b128 v156, v[{ACC}:{ACC+3}] offset:{RED}')
    A('s_waitcnt lgkmcnt(0)')
    stamp(A, 5)
    A('s_barrier')
    A('s_cmp_lg_u32 s20, 0')
    A('s_cbranch_scc1 L_s2_next')
    for w in range(4):
        A(f'ds_read_b128 v[{24+4*w}:{27+4*w}], v158 offset:{RED + w*1024}')
    A('s_waitcnt lgkmcnt(2)')
    for r in range(4): A(f'v_add_f32 v{24+r}, v{24+r}, v{28+r}')
    A('s_waitcnt lgkmcnt(0)')
    for r in range(4): A(f'v_add_f32 v{32+r}, v{32+r}, v{36+r}')
    for r in range(4): A(f'v_add_f32 v{24+r}, v{24+r}, v{32+r}')
    A('v_cvt_pk_bf16_f32 v24, v24, v25')
    A('v_cvt_pk_bf16_f32 v25, v26, v27')
    A('v_min_u32 v24, 0xfffffffe, v24')
    A('v_min_u32 v25, 0xfffffffe, v25')
    A('s_add_u32 s45, s40, 1')
    A(f's_mul_i32 s45, s45, {MS}')
    A(f's_add_u32 s45, s45, {WS["MEMB"]}')
    A('s_mov_b64 exec, s[62:63]')
    A('buffer_store_dwordx2 v[24:25], v159, s[4:7], s45 offen sc1')
    A('s_mov_b64 exec, -1')
    A.label('L_s2_next')
    A('s_cmp_ge_u32 s40, 3')
    A('s_cbranch_scc1 L_s2_vtn')
    tokrd()
    A('s_branch L_s2_vtd')
    A.label('L_s2_vtn')
    A('s_cmp_lt_u32 s40, 11')
    A('s_cselect_b32 s92, 0xffff, -1')
    A('s_cselect_b32 s93, 0, -1')
    flag_check(A, 's2l', 's[92:93]')
    A('s_add_u32 s50, s40, 1')
    A('s_min_u32 s52, s50, 63')
    vt_prefetch(52)
    A.label('L_s2_vtd')
    stamp(A, 6)
    stamp_flush(A, 9, 's2')
    A('s_add_u32 s40, s40, 1')
    A('s_cmp_lt_u32 s40, 64')
    A('s_cbranch_scc1 L_s2_loop')
    A('s_endpgm')
```

```python
from asmlib import *
from layout import WS
from k_post import SCALE, LOG2E

SPIN = 400000
MEMLDS = 0
RED = 10240
WLDS = 17408
TL = 16384
LDS_CHAIN = 65536 + 40960

class Lgkm:
    def __init__(s, A): s.A = A; s.q = []
    def issue(s, tag, text): s.A(text); s.q.append(tag)
    def need(s, tag):
        if tag in s.q:
            i = s.q.index(tag)
            n = len(s.q) - 1 - i
            s.A(f's_waitcnt lgkmcnt({min(n,15)})')
            s.q = s.q[i + 1:]

import os
PROF = int(os.environ.get('PROF', '0'))
def stamp(A, idx):
    if PROF in (1, 2):
        A('s_memrealtime s[98:99]' if PROF == 2 else 's_memtime s[98:99]')
        A('s_waitcnt lgkmcnt(0)')
        A(f's_mov_b32 s{72+idx}, s98')
def stamp_flush(A, n, tag):
    if PROF in (1, 2):
        A(f's_cmp_lg_u32 s40, {int(os.environ.get("PSTEP", "45"))}')
        A(f's_cbranch_scc1 L_{tag}_nofl')
        A('s_lshl_b32 s96, s2, 2')
        A('s_add_u32 s96, s96, s20')
        A('s_lshl_b32 s96, s96, 6')
        A(f's_add_u32 s96, s96, {WS["FLAGS"]}')
        for i in range(n):
            A(f'v_mov_b32 v26, s{72+i}')
            A('v_mov_b32 v27, 0')
            A(f'buffer_store_dword v26, v27, s[4:7], s96 offen offset:{4*i}')
        A(f'L_{tag}_nofl:')

KT = int(os.environ.get('KT', '0'))
XM = int(os.environ.get('XM', '6'))
XP = int(os.environ.get('XP', '14'))
D = {k: int(os.environ.get(k, '0')) for k in ('d0s1', 'd1s1', 'd0s2', 'd1s2', 'd0p', 'd1p')}
def delay(A, tag, n):
    if n:
        A(f's_mov_b32 s43, {n}')
        A(f'L_dl_{tag}:')
        A('s_nop 15')
        A('s_sub_u32 s43, s43, 1')
        A('s_cmp_lg_u32 s43, 0')
        A(f's_cbranch_scc1 L_dl_{tag}')
def tag_poll(A, tag, treg, vtag, sbase, nx, mask=None):
    A('s_mov_b32 s42, 0')
    if mask: A(f's_mov_b64 exec, {mask}')
    for j in range(KT):
        A(f'buffer_load_dword v{treg+j}, v{vtag}, s[4:7], s{sbase} offen sc1')
        if j < KT - 1:
            for _ in range(nx): A('s_nop 15')
    A.label(f'L_{tag}_tag')
    for j in range(KT):
        A(f's_waitcnt vmcnt({KT-1})')
        A(f'v_cmp_eq_u32 vcc, -1, v{treg+j}')
        A(f's_cbranch_vccz L_{tag}_tagok')
        A(f'buffer_load_dword v{treg+j}, v{vtag}, s[4:7], s{sbase} offen sc1')
        for _ in range(nx): A('s_nop 15')
    A('s_add_u32 s42, s42, 1')
    A('s_cmp_lt_u32 s42, s44')
    A(f's_cbranch_scc1 L_{tag}_tag')
    A.label(f'L_{tag}_tagok')
    if mask: A('s_mov_b64 exec, -1')

MS, PS = 10240, 20480
def kflag(A, t):
    A('s_cmp_eq_u32 s59, 0')
    A(f's_cbranch_scc1 L_kfl_{t}')
    A('v_mov_b32 v24, 1')
    A('v_mov_b32 v25, 0')
    A('s_mov_b64 exec, 1')
    A('buffer_store_dword v24, v25, s[4:7], s59 offen sc1')
    A('s_mov_b64 exec, -1')
    A('s_mov_b32 s59, 0')
    A.label(f'L_kfl_{t}')
PUB = RED + 5632
S1MODE = os.environ.get('S1MODE', 'flag')
def gather_mem(A, tag, sstep, extra=None):
    A(f's_mul_i32 s41, s{sstep}, {MS}')
    A(f's_add_u32 s41, s41, {WS["MEMB"]}')
    stamp(A, 0)
    flag = False
    def loads(sc):
        A(f'buffer_load_dwordx4 v[12:15], v4, s[4:7], s41 offen {sc}')
        A(f'buffer_load_dwordx4 v[16:19], v4, s[4:7], s41 offen offset:1024 {sc}')
        A('s_mov_b64 exec, s[60:61]')
        A(f'buffer_load_dwordx4 v[20:23], v4, s[4:7], s41 offen offset:2048 {sc}')
        A('s_mov_b64 exec, -1')
    if flag:
        A(f's_cmp_eq_u32 s{sstep}, 0')
        A(f's_cbranch_scc1 L_{tag}m_tagok2')
        tag_poll(A, tag + 'm', 24, 1, 41, XM, 's[64:65]')
        A.label(f'L_{tag}m_tagok2')
        A('s_mov_b32 s42, 0')
        loads('')
        A(f's_branch L_{tag}_chk')
    else:
        delay(A, tag + 'd0', D['d0' + tag])
        A('s_mov_b32 s42, 0')
    A.label(f'L_{tag}_poll')
    loads('sc1')
    A.label(f'L_{tag}_chk')
    A('s_waitcnt vmcnt(0)')
    if tag == 's1': kflag(A, 'a')
    A('v_max3_u32 v24, v12, v13, v14')
    A('v_max3_u32 v25, v15, v16, v17')
    A('v_max3_u32 v24, v24, v18, v19')
    A('v_max3_u32 v25, v25, v20, v21')
    A('v_max3_u32 v24, v24, v22, v23')
    A('v_max_u32 v24, v24, v25')
    A('v_cmp_eq_u32 vcc, -1, v24')
    A(f's_cbranch_vccz L_{tag}_ok')
    A('s_add_u32 s42, s42, 1')
    A('s_cmp_lt_u32 s42, s44')
    A(f's_cbranch_scc1 L_{tag}_poll')
    A('s_mov_b32 s44, 0')
    A.label(f'L_{tag}_ok')
    stamp(A, 1)
    if PROF in (1, 2): A('s_mov_b32 s79, s42')
    A(f'ds_write_b128 v4, v[12:15] offset:{MEMLDS}')
    A(f'ds_write_b128 v4, v[16:19] offset:{MEMLDS+1024}')
    A('s_mov_b64 exec, s[60:61]')
    A(f'ds_write_b128 v4, v[20:23] offset:{MEMLDS+2048}')
    A('s_mov_b64 exec, -1')
    if extra: extra()
    A('s_waitcnt lgkmcnt(0)')
    A('s_barrier')

from k_mega import TF, gen_worker, gen_pre, wait_row
def flag_issue(A, sreg):
    A(f's_lshr_b32 s45, s{sreg}, 2')
    A('s_lshl_b32 s45, s45, 9')
    A(f's_add_u32 s68, s45, {TF}')
    A('buffer_load_dwordx2 v[20:21], v1, s[4:7], s68 offen sc1')
def flag_check(A, tag, mask=None):
    A('s_mov_b32 s42, 0')
    A.label(f'L_{tag}_fl')
    A('v_and_b32 v20, v20, v21')
    A('v_cmp_ne_u32 vcc, 1, v20')
    if mask: A(f's_and_b64 vcc, vcc, {mask}')
    A(f's_cbranch_vccz L_{tag}_flok')
    A('s_add_u32 s42, s42, 1')
    A('s_cmp_lt_u32 s42, s44')
    A(f's_cbranch_scc0 L_{tag}_flto')
    A('buffer_load_dwordx2 v[20:21], v1, s[4:7], s68 offen sc1')
    A('s_waitcnt vmcnt(0)')
    A(f's_branch L_{tag}_fl')
    A.label(f'L_{tag}_flto')
    A('s_mov_b32 s44, 0')
    A.label(f'L_{tag}_flok')

def dpp_red32(A, op, v, t):
    for c in ['quad_perm:[1,0,3,2]', 'quad_perm:[2,3,0,1]', 'row_half_mirror', 'row_mirror']:
        A('s_nop 1')
        A(f'{op}_dpp v{v}, v{v}, v{v} {c} row_mask:0xf bank_mask:0xf')
    A(f'v_mov_b32 v{t}, v{v}')
    A('s_nop 1')
    A(f'v_permlane16_swap_b32 v{v}, v{t}')
    A('s_nop 1')
    A(f'{op} v{v}, v{v}, v{t}')

def tstep(A, slot=None):
    if PROF != 3: return
    l = A.newlabel('L_ts')
    A('s_or_b32 s96, s2, s20')
    A('s_cmp_lg_u32 s96, 0')
    A(f's_cbranch_scc1 {l}')
    A('s_memrealtime s[98:99]')
    A('s_waitcnt lgkmcnt(0)')
    A('v_mov_b32 v26, s98')
    A('v_mov_b32 v27, 0')
    if slot is None:
        A('s_lshl_b32 s96, s40, 2')
    else:
        A(f's_mov_b32 s96, {slot*4}')
    A(f's_add_u32 s96, s96, {WS["FLAGS"] + 28672}')
    A('buffer_store_dword v26, v27, s[4:7], s96 offen')
    A.label(l)

def ts2(A, k):
    if PROF != 3: return
    l = A.newlabel('L_ts2')
    A('s_cmp_lg_u32 s20, 0')
    A(f's_cbranch_scc1 {l}')
    A('s_memrealtime s[98:99]')
    A('s_waitcnt lgkmcnt(0)')
    A('v_mov_b32 v26, s98')
    A('v_mov_b32 v27, 0')
    A('s_lshl_b32 s96, s2, 5')
    A(f's_add_u32 s96, s96, {WS["FLAGS"] + 57344 + 4*k}')
    A('buffer_store_dword v26, v27, s[4:7], s96 offen')
    A.label(l)

def gen_chain(A):
    name = 'k_chain_kernel'
    kernel_header(A, name)
    A('s_cmp_ge_u32 s2, 256')
    A('s_cbranch_scc1 L_ch_end')
    srds(A, [('ws', 4), ('x', 8), ('Wv', 12)])
    A('v_lshrrev_b32 v1, 6, v0')
    A('s_nop 0')
    A('v_readfirstlane_b32 s20, v1')
    A('v_and_b32 v1, 63, v0')
    A('v_lshlrev_b32 v2, 4, v1')
    A(f's_mov_b32 s44, {SPIN}')
    A('s_mov_b32 s40, 0')
    tstep(A, 65)
    gen_pre(A)
    A('v_and_b32 v1, 63, v0')
    A('v_lshlrev_b32 v2, 4, v1')
    A('s_mul_i32 s21, s20, 2560')
    A('v_add_u32 v4, s21, v2')
    for r in range(20, 24):
        A(f'v_mov_b32 v{r}, 0')
    A(f's_mov_b32 s44, {SPIN}')
    A('s_mov_b32 s60, -1')
    A('s_mov_b32 s61, 0')
    A('s_mov_b32 s62, 0xffff')
    A('s_mov_b32 s63, 0')
    A('s_mov_b32 s64, 0xfffff')
    A('s_mov_b32 s65, 0')
    A('s_mov_b32 s40, 0')
    A('s_cmp_ge_u32 s2, 112')
    A('s_cbranch_scc1 L_ch_w')
    A('s_cmp_ge_u32 s2, 32')
    A('s_cbranch_scc1 L_ch_s2')
    gen_s1(A)
    A.label('L_ch_s2')
    gen_s2(A)
    A.label('L_ch_w')
    gen_worker(A)
    A.label('L_ch_end')
    A('s_endpgm')
    return name, kernel_desc(name, 256, 256), f'; @launch kernel={name} grid=(256,1,1) block=(256,1,1) lds={LDS_CHAIN}'

def gen_s1(A):
    from k_post import rnd2, xred1632
    QT, KT, KFL, WL = 10240, 16384, 22528, 34816
    AR, ACC, WT = 24, 40, 64
    A9 = 12
    KFR = 64
    def wreg(c, t):
        f = c * 6 + t
        return (80 + f * 8) if f < 22 else (256 + (f - 22) * 8)
    A('s_mul_i32 s22, s2, 12')
    A('s_mul_i32 s51, s20, 3')
    A('s_add_u32 s22, s22, s51')
    A(f's_mul_i32 s22, s22, {20*1024}')
    A(f's_add_u32 s22, s22, {WS["WqF"]}')
    KOFF = WS['WkF'] - WS['WqF']
    A(f's_mul_i32 s24, s20, {12*1024}')
    A(f'v_add_u32 v0, s24, v2')
    frs = [(c, t, hf) for c in range(10) for t in range(6) for hf in range(2)]
    def src_off(c, t, hf):
        return (t % 3) * 20 * 1024 + (KOFF if t >= 3 else 0) + (2 * c + hf) * 1024
    inplace = [f for f in frs if f[0] < 9 and wreg(f[0], f[1]) < 256]
    other = [f for f in frs if f not in inplace]
    for (c, t, hf) in inplace:
        r = wreg(c, t) + 4 * hf
        A(f's_add_u32 s23, s22, {src_off(c, t, hf)}')
        A(f'buffer_load_dwordx4 v[{r}:{r+3}], v2, s[4:7], s23 offen')
    def batch_load(fl):
        for n, (c, t, hf) in enumerate(fl):
            r = 12 + 4 * n
            A(f's_add_u32 s23, s22, {src_off(c, t, hf)}')
            A(f'buffer_load_dwordx4 v[{r}:{r+3}], v2, s[4:7], s23 offen')
    def batch_fin(fl):
        for n, (c, t, hf) in enumerate(fl):
            r = 12 + 4 * n
            A(f'v_permlane16_swap_b32 v{r}, v{r+2}')
            A(f'v_permlane16_swap_b32 v{r+1}, v{r+3}')
        A('s_nop 1')
        for n, (c, t, hf) in enumerate(fl):
            r = 12 + 4 * n
            if c < 9:
                d = wreg(c, t) - 256 + 4 * hf
                for q, sr_ in enumerate((0, 2, 1, 3)):
                    A(f'v_accvgpr_write_b32 a{d+q}, v{r+sr_}')
            else:
                A(f'v_swap_b32 v{r+1}, v{r+2}')
                A('s_nop 0')
                A(f'ds_write_b128 v0, v[{r}:{r+3}] offset:{WL + (t*2 + hf)*1024}')
        A('s_waitcnt lgkmcnt(0)')
    batches = [other[i:i+16] for i in range(0, len(other), 16)]
    batch_load(batches[0])
    A('s_waitcnt vmcnt(16)')
    for (c, t, hf) in inplace:
        r = wreg(c, t) + 4 * hf
        A(f'v_permlane16_swap_b32 v{r}, v{r+2}')
        A(f'v_permlane16_swap_b32 v{r+1}, v{r+3}')
        A('s_nop 1')
        A(f'v_swap_b32 v{r+1}, v{r+2}')
    for bi, fl in enumerate(batches):
        if bi > 0: batch_load(fl)
        A('s_waitcnt vmcnt(0)')
        batch_fin(fl)
    for r in range(20, 24):
        A(f'v_mov_b32 v{r}, 0')
    A('v_and_b32 v5, 15, v1')
    A('v_lshrrev_b32 v6, 4, v1')
    A('v_and_b32 v7, 8, v1')
    A('v_cmp_eq_u32 vcc, 0, v7')
    A('v_mov_b32 v3, 0xeeeeeeee')
    A('v_mov_b32 v7, 0x44444444')
    A('v_cndmask_b32 v3, v3, v7, vcc')
    A('v_lshrrev_b32 v7, 2, v5')
    A('v_lshlrev_b32 v7, 4, v7')
    A('v_and_b32 v8, 3, v5')
    A('v_lshlrev_b32 v8, 1, v8')
    A('v_add_u32 v7, v7, v8')
    A('v_and_b32 v8, 1, v6')
    A('v_lshlrev_b32 v8, 8, v8')
    A('v_add_u32 v7, v7, v8')
    A('v_lshrrev_b32 v8, 1, v6')
    A('v_lshlrev_b32 v8, 6, v8')
    A('v_add_u32 v7, v7, v8')
    A('v_lshlrev_b32 v8, 6, v5')
    A('v_lshlrev_b32 v9, 4, v6')
    A('v_add_u32 v8, v8, v9')
    A('v_mov_b32 v11, v8')
    A('v_lshlrev_b32 v8, 7, v6')
    A('v_lshlrev_b32 v9, 4, v5')
    A('v_add_u32 v8, v8, v9')
    A('v_add_u32 v8, 128, v8')
    A('v_lshlrev_b32 v10, 3, v6')
    A('v_add_u32 v9, v9, v10')
    A('v_cmp_gt_u32 vcc, 2, v6')
    A('s_mov_b64 s[48:49], vcc')
    A('s_mov_b32 s66, 0x00ff00ff')
    A('s_mov_b32 s67, 0x00ff00ff')
    A('s_mov_b32 s46, 0x00ff00ff')
    A('s_mov_b32 s47, 0')
    for a in range(3):
        A(f's_add_u32 s50, s51, {a}')
        A('s_lshr_b32 s52, s50, 1')
        A('s_lshl_b32 s52, s52, 10')
        A('s_and_b32 s50, s50, 1')
        A('s_lshl_b32 s50, s50, 3')
        A(f's_add_u32 s{53+a}, s50, s52')
    A('v_add_u32 v5, s53, v7')
    A('v_add_u32 v6, s54, v7')
    A('v_add_u32 v7, s55, v7')
    A(f's_mul_i32 s24, s20, 3072')
    A('v_add_u32 v10, s24, v2')
    A(f's_mov_b32 s58, {SCALE}')
    A(f's_mov_b32 s56, {LOG2E}')
    def kf_prefetch(sreg):
        A(f's_mul_i32 s45, s{sreg}, {2*192*1024}')
        A(f's_mul_i32 s50, s2, {6*1024}')
        A('s_add_u32 s45, s45, s50')
        A(f's_add_u32 s45, s45, {WS["KF"]}')
        A('s_add_u32 s45, s45, s57')
        for a in range(3):
            A(f'buffer_load_dwordx4 v[{KFR+a*4}:{KFR+a*4+3}], v2, s[4:7], s45 offen offset:{a*1024}')
    A('s_cmp_ge_u32 s20, 2')
    A(f's_cselect_b32 s57, {192*1024 - 6*1024}, 0')
    A('s_mul_i32 s24, s20, 3072')
    A('s_add_u32 s57, s57, s24')
    A('v_lshlrev_b32 v1, 3, v1')
    flag_issue(A, 40)
    A('s_waitcnt vmcnt(0)')
    ts2(A, 0)
    A('s_mov_b32 s92, 0xf0000000')
    A('s_mov_b32 s93, -1')
    flag_check(A, 's1i', 's[92:93]')
    kf_prefetch(40)
    A('s_mov_b32 s59, 0')
    A.label('L_s1_loop')
    tstep(A)
    for r in range(24): A(f'v_mov_b32 v{ACC+r}, 0')
    for r in range(20, 24): A(f'v_mov_b32 v{r}, 0')
    def kfw():
        for a in range(3):
            A(f'ds_write_b128 v10, v[{KFR+a*4}:{KFR+a*4+3}] offset:{KFL + a*1024}')
    A('s_add_u32 s50, s40, 1')
    A('s_min_u32 s52, s50, 63')
    A('s_cmp_lt_u32 s52, 12')
    A('s_cselect_b32 s92, 0xf0000000, -1')
    A('s_lshr_b32 s45, s52, 2')
    A('s_lshl_b32 s45, s45, 9')
    A(f's_add_u32 s68, s45, {TF}')
    A('buffer_load_dwordx2 v[76:77], v1, s[4:7], s68 offen sc1')
    def kfw2():
        kfw()
        A('v_and_b32 v76, v76, v77')
        A('v_cmp_ne_u32 vcc, 1, v76')
        A('s_and_b64 s[70:71], vcc, s[92:93]')
    gather_mem(A, 's1', 40, extra=kfw2)
    stamp(A, 2)
    L = Lgkm(A)
    def rdA(c):
        b = A9 if c == 9 else AR + (c % 4) * 4
        L.issue(('A', c), f'ds_read_b128 v[{b}:{b+3}], v2 offset:{MEMLDS + c*1024}')
    def rdW(t):
        b = WT + (t % 2) * 8
        L.issue(('W', t, 0), f'ds_read_b128 v[{b}:{b+3}], v0 offset:{WL + t*2048}')
        L.issue(('W', t, 1), f'ds_read_b128 v[{b+4}:{b+7}], v0 offset:{WL + t*2048 + 1024}')
    rdA(0); rdA(1); rdA(9); rdW(0); rdA(2); rdW(1)
    for c in range(9):
        if c + 3 < 9: rdA(c + 3)
        L.need(('A', c))
        b = AR + (c % 4) * 4
        for t in range(6):
            d = ACC + t * 4
            A(f'v_smfmac_f32_16x16x64_bf16 v[{d}:{d+3}], v[{b}:{b+3}], {reg(wreg(c,t),8)}, v3')
        if c < 6:
            L.need(('A', 9)); L.need(('W', c, 1))
            d = ACC + c * 4
            w = WT + (c % 2) * 8
            A(f'v_smfmac_f32_16x16x64_bf16 v[{d}:{d+3}], v[{A9}:{A9+3}], v[{w}:{w+7}], v3')
            if c + 2 < 6: rdW(c + 2)
    A('s_nop 7')
    A('s_nop 3')
    stamp(A, 3)
    for t in range(6):
        d = ACC + t * 4
        A(f'v_permlane32_swap_b32 v{d}, v{d+1}')
        A(f'v_permlane32_swap_b32 v{d+2}, v{d+3}')
    A('s_nop 0')
    for t in range(6):
        d = ACC + t * 4
        A(f'v_add_f32 v{d}, v{d}, v{d+1}')
        A(f'v_add_f32 v{d+2}, v{d+2}, v{d+3}')
        A(f'v_cvt_pk_bf16_f32 v{d}, v{d}, v{d+2}')
        base = QT if t < 3 else KT
        A(f'ds_write_b16 v{5 + t % 3}, v{d} offset:{base}')
        A(f'ds_write_b16_d16_hi v{5 + t % 3}, v{d} offset:{base + 128}')
    A(f's_mul_i32 s45, s40, {PS}')
    A('s_mul_i32 s50, s2, 640')
    A('s_add_u32 s45, s45, s50')
    A(f's_add_u32 s45, s45, {WS["PB"]}')
    A('s_waitcnt lgkmcnt(0)')
    stamp(A, 4)
    A('s_barrier')
    stamp(A, 5)
    A('s_cmp_lg_u32 s20, 0')
    A('s_cbranch_scc1 L_s1_nopub')
    SA = 12
    L = Lgkm(A)
    def rdS(ks):
        b = 24 + (ks % 3) * 16
        L.issue(('q', ks), f'ds_read_b128 v[{b}:{b+3}], v11 offset:{QT + ks*1024}')
        L.issue(('k', ks), f'ds_read_b128 v[{b+4}:{b+7}], v11 offset:{KT + ks*1024}')
        L.issue(('f0', ks), f'ds_read_b128 v[{b+8}:{b+11}], v2 offset:{KFL + ks*1024}')
        L.issue(('f1', ks), f'ds_read_b128 v[{b+12}:{b+15}], v2 offset:{KFL + (6+ks)*1024}')
    rdS(0); rdS(1); rdS(2)
    for ks in range(6):
        b = 24 + (ks % 3) * 16
        for st, tg in enumerate(('k', 'f0', 'f1')):
            L.need((tg, ks))
            d = SA + st * 4
            c = '0' if ks == 0 else f'v[{d}:{d+3}]'
            A(f'v_mfma_f32_16x16x32_bf16 v[{d}:{d+3}], v[{b+4+4*st}:{b+7+4*st}], v[{b}:{b+3}], {c}')
        if ks + 3 < 6: rdS(ks + 3)
    A('s_nop 7')
    A('v_mov_b32 v36, s58')
    A('v_mov_b32 v37, s58')
    A('v_mov_b32 v38, s56')
    A('v_mov_b32 v39, s56')
    vals = list(range(SA, SA + 12))
    A('v_mov_b32 v25, 0xff800000')
    A(f'v_max3_f32 v26, v{vals[0]}, v{vals[1]}, v{vals[2]}')
    A(f'v_max3_f32 v27, v{vals[4]}, v{vals[5]}, v{vals[6]}')
    A(f'v_max_f32 v26, v26, v{vals[3]}')
    A(f'v_max3_f32 v27, v27, v{vals[7]}, v{vals[8]}')
    A('v_cndmask_b32 v26, v25, v26, s[48:49]')
    A(f'v_max3_f32 v27, v27, v{vals[9]}, v{vals[10]}')
    A(f'v_max3_f32 v26, v26, v27, v{vals[11]}')
    for i in range(0, 12, 2):
        A(f'v_cvt_pk_bf16_f32 v{28+i//2}, v{vals[i]}, v{vals[i+1]}')
    A('v_mov_b32 v27, v26')
    for i in range(0, 12, 2):
        A(f'v_lshlrev_b32 v{vals[i]}, 16, v{28+i//2}')
        A(f'v_and_b32 v{vals[i+1]}, 0xffff0000, v{28+i//2}')
    A('v_permlane16_swap_b32 v26, v27')
    for i in range(0, 12, 2):
        A(f'v_pk_mul_f32 v[{vals[i]}:{vals[i+1]}], v[{vals[i]}:{vals[i+1]}], v[36:37]')
    A('v_max_f32 v26, v26, v27')
    for i in range(0, 12, 2):
        A(f'v_cvt_pk_bf16_f32 v{28+i//2}, v{vals[i]}, v{vals[i+1]}')
    A('v_mov_b32 v27, v26')
    for i in range(0, 6, 2):
        A(f'v_lshlrev_b32 v{vals[i]}, 16, v{28+i//2}')
        A(f'v_and_b32 v{vals[i+1]}, 0xffff0000, v{28+i//2}')
    A('v_permlane32_swap_b32 v26, v27')
    for i in range(6, 12, 2):
        A(f'v_lshlrev_b32 v{vals[i]}, 16, v{28+i//2}')
        A(f'v_and_b32 v{vals[i+1]}, 0xffff0000, v{28+i//2}')
    A('v_max_f32 v26, v26, v27')
    A('v_cvt_pk_bf16_f32 v27, v26, v26')
    A('v_lshlrev_b32 v26, 16, v27')
    A('v_mul_f32 v26, s58, v26')
    A('v_cvt_pk_bf16_f32 v27, v26, v26')
    A('v_lshlrev_b32 v26, 16, v27')
    A('v_mul_f32 v26, s56, v26')
    A('v_xor_b32 v26, 0x80000000, v26')
    A('v_mov_b32 v27, v26')
    for i in range(0, 12, 2):
        A(f'v_pk_fma_f32 v[{vals[i]}:{vals[i+1]}], v[{vals[i]}:{vals[i+1]}], v[38:39], v[26:27]')
    for v in vals:
        A(f'v_exp_f32 v{v}, v{v}')
    A('s_nop 0')
    for r in range(4):
        A(f'v_cndmask_b32 v{vals[r]}, 0, v{vals[r]}, s[48:49]')
    A(f'v_pk_add_f32 v[26:27], v[{vals[4]}:{vals[5]}], v[{vals[6]}:{vals[7]}]')
    A(f'v_pk_add_f32 v[34:35], v[{vals[8]}:{vals[9]}], v[{vals[10]}:{vals[11]}]')
    A(f'v_pk_add_f32 v[26:27], v[26:27], v[{vals[0]}:{vals[1]}]')
    A(f'v_pk_add_f32 v[34:35], v[34:35], v[{vals[2]}:{vals[3]}]')
    A('v_pk_add_f32 v[26:27], v[26:27], v[34:35]')
    A('v_add_f32 v26, v26, v27')
    xred1632(A, 'v_add_f32', 26, 27)
    A('v_rcp_f32 v26, v26')
    A('s_nop 0')
    A('v_mov_b32 v27, v26')
    for i in range(0, 12, 2):
        A(f'v_pk_mul_f32 v[{vals[i]}:{vals[i+1]}], v[{vals[i]}:{vals[i+1]}], v[26:27]')
    for i in range(6):
        src = vals[4 + 2 * i] if i < 4 else vals[2 * (i - 4)]
        A(f'v_cvt_pk_bf16_f32 v{28+i}, v{src}, v{src+1}')
    A('s_mov_b64 exec, s[66:67]')
    A('buffer_store_dwordx4 v[28:31], v8, s[4:7], s45 offen sc1')
    A('s_mov_b64 exec, s[46:47]')
    A('buffer_store_dwordx2 v[32:33], v9, s[4:7], s45 offen sc1')
    A('s_mov_b64 exec, -1')
    A('s_branch L_s1_pubd')
    A.label('L_s1_nopub')
    A('s_sub_u32 s50, s20, 1')
    A('s_lshl_b32 s50, s50, 11')
    A('v_add_u32 v24, s50, v11')
    A(f'ds_read_b128 v[28:31], v24 offset:{KT}')
    A(f'ds_read_b128 v[32:35], v24 offset:{KT + 1024}')
    A('v_add_u32 v24, s50, v2')
    A('s_lshl_b32 s45, s40, 5')
    A('s_add_u32 s45, s45, s2')
    A(f's_mul_i32 s45, s45, {6*1024}')
    A(f's_add_u32 s45, s45, {WS["KMF"]}')
    A('s_waitcnt lgkmcnt(0)')
    A('buffer_store_dwordx4 v[28:31], v24, s[4:7], s45 offen sc1')
    A('buffer_store_dwordx4 v[32:35], v24, s[4:7], s45 offen offset:1024 sc1')
    A('s_lshl_b32 s59, s40, 9')
    A('s_lshl_b32 s50, s2, 4')
    A('s_add_u32 s59, s59, s50')
    A('s_lshl_b32 s50, s20, 2')
    A('s_add_u32 s59, s59, s50')
    A(f's_add_u32 s59, s59, {WS["TF3"]}')
    A.label('L_s1_pubd')
    stamp(A, 6)
    A('s_cmp_eq_u64 s[70:71], 0')
    A('s_cbranch_scc1 L_s1_flgood')
    A('buffer_load_dwordx2 v[20:21], v1, s[4:7], s68 offen sc1')
    A('s_waitcnt vmcnt(0)')
    flag_check(A, 's1l', 's[92:93]')
    A.label('L_s1_flgood')
    A('s_add_u32 s50, s40, 1')
    A('s_min_u32 s52, s50, 63')
    kf_prefetch(52)
    stamp_flush(A, 8, 's1')
    A('s_add_u32 s40, s40, 1')
    A('s_cmp_lt_u32 s40, 64')
    A('s_cbranch_scc1 L_s1_loop')
    tstep(A)
    A('s_waitcnt vmcnt(0)')
    kflag(A, 'b')
    A('s_endpgm')

def gen_s2(A):
    PT, PM, VT, MOP, ACCM, ACC, VMOP, PK = 24, 56, 64, 96, 112, 128, 132, 140
    def wreg(ks, pp):
        f = ks * 4 + pp
        return (192 + f * 4) if f < 16 else (256 + (f - 16) * 4)
    ts2(A, 0)
    for r in range(20, 24):
        A(f'v_mov_b32 v{r}, 0')
    A('s_sub_u32 s21, s2, 32')
    A('s_lshr_b32 s22, s21, 1')
    A('s_and_b32 s23, s21, 1')
    A('v_and_b32 v5, 15, v1')
    A('v_lshrrev_b32 v6, 4, v1')
    A('v_and_b32 v7, 7, v1')
    A('v_lshrrev_b32 v8, 3, v5')
    A('s_lshl_b32 s24, s23, 3')
    A('v_lshlrev_b32 v9, 4, v6')
    A('v_add_u32 v9, v9, v7')
    A('v_add_u32 v9, s24, v9')
    A('v_lshlrev_b32 v9, 4, v9')
    A(f'v_mul_u32_u24 v10, {40*1024}, v8')
    A('v_add_u32 v9, v9, v10')
    A('s_lshl_b32 s24, s20, 3')
    A('s_mul_i32 s24, s24, 40')
    A('s_add_u32 s24, s24, s22')
    A('s_lshl_b32 s24, s24, 10')
    A(f's_add_u32 s24, s24, {WS["WVOF"]}')
    A('v_min_u32 v22, 39, v1')
    A('v_lshlrev_b32 v22, 2, v22')
    A('s_mul_i32 s68, s20, 160')
    A(f's_add_u32 s68, s68, {TF + 17*512}')
    A('s_mov_b32 s42, 0')
    A.label('L_s2w_fl')
    A('buffer_load_dword v20, v22, s[4:7], s68 offen sc1')
    A('s_waitcnt vmcnt(0)')
    A('v_cmp_ne_u32 vcc, 1, v20')
    A('s_cbranch_vccz L_s2w_ok')
    A('s_add_u32 s42, s42, 1')
    A('s_cmp_lt_u32 s42, s44')
    A('s_cbranch_scc1 L_s2w_fl')
    A('s_mov_b32 s44, 0')
    A.label('L_s2w_ok')
    for ks in range(20):
        for pp in range(4):
            r = wreg(ks, pp)
            A(f's_add_u32 s25, s24, {(ks*32 + 2*pp)*40*1024}')
            A(f'buffer_load_dwordx4 {reg(r,4)}, v9, s[4:7], s25 offen')
    ts2(A, 1)
    A('v_lshrrev_b32 v9, 1, v6')
    A('v_lshlrev_b32 v9, 7, v9')
    A('v_lshlrev_b32 v10, 4, v7')
    A('v_add_u32 v9, v9, v10')
    A('v_and_b32 v10, 1, v6')
    A('v_lshlrev_b32 v10, 3, v10')
    A('v_add_u32 v9, v9, v10')
    MB = [9, 148, 149, 150, 151]
    for j in range(1, 5):
        A(f'v_add_u32 v{MB[j]}, {2048*j}, v9')
    A('v_lshlrev_b32 v10, 8, v8')
    A('s_lshl_b32 s24, s23, 3')
    A('v_add_u32 v11, s24, v7')
    A('v_lshlrev_b32 v11, 4, v11')
    A('v_add_u32 v10, v10, v11')
    A('v_lshlrev_b32 v11, 3, v6')
    A('v_add_u32 v10, v10, v11')
    A('s_lshl_b32 s24, s20, 11')
    A(f's_add_u32 s24, s24, {TL}')
    A('v_add_u32 v11, s24, v10')
    A('v_add_u32 v152, s24, v2')
    A('v_lshlrev_b32 v153, 4, v7')
    A('v_lshlrev_b32 v154, 7, v6')
    A('v_add_u32 v154, v154, v153')
    A('v_mul_u32_u24 v155, 640, v6')
    A('v_add_u32 v155, v155, v153')
    A('v_mul_u32_u24 v153, 640, v8')
    A('v_add_u32 v154, v154, v153')
    A('v_mul_u32_u24 v153, 2560, v8')
    A('v_add_u32 v155, v155, v153')
    A('s_mov_b32 s66, 0x00ff00ff')
    A('s_mov_b32 s67, 0x00ff00ff')
    for r in range(PT, PT + 40): A(f'v_mov_b32 v{r}, 0')
    for r in range(164, 192): A(f'v_mov_b32 v{r}, 0')
    A('s_lshl_b32 s24, s20, 10')
    A('v_add_u32 v156, s24, v2')
    A('v_and_b32 v157, 1, v8')
    A('s_lshl_b32 s24, s23, 1')
    A('v_add_u32 v158, s24, v157')
    A('v_lshlrev_b32 v158, 4, v158')
    A('v_add_u32 v158, v158, v7')
    A('v_lshlrev_b32 v158, 4, v158')
    A('s_lshr_b32 s24, s22, 1')
    A('s_lshl_b32 s24, s24, 9')
    A('s_and_b32 s25, s22, 1')
    A('s_lshl_b32 s25, s25, 1')
    A('s_add_u32 s25, s25, s23')
    A('s_lshl_b32 s25, s25, 7')
    A('s_add_u32 s24, s24, s25')
    A('v_lshlrev_b32 v159, 4, v7')
    A('v_lshlrev_b32 v157, 3, v157')
    A('v_add_u32 v159, v159, v157')
    A('v_add_u32 v159, s24, v159')
    for r in range(4): A(f'v_mov_b32 v{PK+r}, 0')
    A(f'ds_write_b128 v152, v[{PK}:{PK+3}]')
    A(f'ds_write_b128 v152, v[{PK}:{PK+3}] offset:1024')
    def vt_prefetch(sreg):
        A(f's_lshl_b32 s45, s{sreg}, 5')
        A('s_lshl_b32 s50, s20, 3')
        A('s_add_u32 s45, s45, s50')
        A('s_mul_i32 s45, s45, 40')
        A('s_add_u32 s45, s45, s22')
        A('s_lshl_b32 s45, s45, 10')
        A(f's_add_u32 s45, s45, {WS["VOF"]}')
        for hh in range(8):
            A(f'buffer_load_dwordx4 v[{VT+hh*4}:{VT+hh*4+3}], v2, s[4:7], s45 offen')
            if hh < 7: A(f's_add_u32 s45, s45, {40*1024}')
    T2 = 32768
    A('v_lshlrev_b32 v160, 10, v8')
    A('v_lshlrev_b32 v161, 8, v6')
    A('v_add_u32 v160, v160, v161')
    A('s_lshl_b32 s24, s23, 3')
    A('v_add_u32 v161, s24, v7')
    A('v_lshlrev_b32 v161, 4, v161')
    A('v_add_u32 v160, v160, v161')
    A('s_lshl_b32 s24, s20, 13')
    A(f's_add_u32 s24, s24, {T2}')
    A('v_add_u32 v160, s24, v160')
    A('v_add_u32 v161, s24, v2')
    A('v_lshrrev_b32 v162, 1, v6')
    A('v_lshlrev_b32 v162, 8, v162')
    A('v_lshlrev_b32 v163, 4, v5')
    A('v_add_u32 v162, v162, v163')
    A('v_and_b32 v163, 1, v6')
    A('v_lshlrev_b32 v163, 3, v163')
    A('v_add_u32 v162, v162, v163')
    STG = 65536
    SR = [164, 168, 172, 176, 180, 184, 188, 128, 132, 136]
    A(f's_mul_i32 s24, s20, {10*1024}')
    A(f's_add_u32 s24, s24, {STG}')
    A('v_add_u32 v163, s24, v2')
    A(f'v_add_u32 v162, {STG}, v162')
    def stage_ld(sreg):
        A(f's_mul_i32 s45, s{sreg}, {40*1024}')
        A(f's_mul_i32 s50, s20, {10*1024}')
        A('s_add_u32 s45, s45, s50')
        A(f's_add_u32 s45, s45, {WS["H1F"]}')
        for f in range(10):
            b = SR[f]
            A(f'buffer_load_dwordx4 v[{b}:{b+3}], v2, s[4:7], s45 offen offset:{(f%4)*1024}')
            if f % 4 == 3: A('s_add_u32 s45, s45, 4096')
    def stage_wr():
        for f in range(10):
            b = SR[f]
            A(f'ds_write_b128 v163, v[{b}:{b+3}] offset:{f*1024}')
    def tokvo():
        L = Lgkm(A)
        def rd(f):
            b = MOP + (f % 4) * 4
            L.issue((f, 0), f'ds_read_b64 v[{b}:{b+1}], v162 offset:{f*1024}')
            L.issue((f, 1), f'ds_read_b64 v[{b+2}:{b+3}], v162 offset:{f*1024 + 512}')
        for f in range(3): rd(f)
        for f in range(40):
            tt, ks = f // 20, f % 20
            if f + 3 < 40: rd(f + 3)
            L.need((f, 1))
            b = MOP + (f % 4) * 4
            for pp in range(4):
                d = ACCM + pp * 4
                c = '0' if ks == 0 else f'v[{d}:{d+3}]'
                A(f'v_mfma_f32_16x16x32_bf16 v[{d}:{d+3}], v[{b}:{b+3}], {reg(wreg(ks,pp),4)}, {c}')
            if ks == 19:
                A('s_nop 7')
                A('s_nop 7')
                for pp in range(4):
                    d = ACCM + pp * 4
                    A(f'v_cvt_pk_bf16_f32 v{PK+2*pp}, v{d}, v{d+1}')
                    A(f'v_cvt_pk_bf16_f32 v{PK+2*pp+1}, v{d+2}, v{d+3}')
                for pp in range(4):
                    L.issue(('w', tt, pp), f'ds_write_b64 v160, v[{PK+2*pp}:{PK+2*pp+1}] offset:{pp*2048 + tt*8}')
                A('s_nop 1')
    def tokrd():
        A('s_waitcnt lgkmcnt(0)')
        for hh in range(8):
            A(f'ds_read_b128 v[{VT+hh*4}:{VT+hh*4+3}], v161 offset:{hh*1024}')
    A('v_lshlrev_b32 v1, 3, v1')
    stage_ld(40)
    A('s_waitcnt vmcnt(0) lgkmcnt(0)')
    ts2(A, 2)
    stage_wr()
    A('s_waitcnt lgkmcnt(0)')
    A('s_barrier')
    tokvo()
    tokrd()
    A('s_waitcnt vmcnt(0) lgkmcnt(0)')
    ts2(A, 3)
    A.label('L_s2_loop')
    A('s_cmp_ge_u32 s40, 3')
    A('s_cbranch_scc1 L_s2_nost')
    A('s_add_u32 s51, s40, 1')
    stage_ld(51)
    A.label('L_s2_nost')
    def stw():
        A('s_cmp_ge_u32 s40, 3')
        A('s_cbranch_scc1 L_s2_nosw')
        stage_wr()
        A.label('L_s2_nosw')
    gather_mem(A, 's2', 40, extra=stw)
    stamp(A, 2)
    A('s_add_u32 s50, s40, 1')
    A('s_min_u32 s52, s50, 63')
    flag_issue(A, 52)
    L = Lgkm(A)
    def rd(ks):
        b = MOP + (ks % 4) * 4
        L.issue(ks, f'ds_read2_b64 v[{b}:{b+3}], v{MB[ks//4]} offset0:{(ks%4)*64} offset1:{(ks%4)*64+32}')
    for ks in range(3): rd(ks)
    for ks in range(20):
        if ks + 3 < 20: rd(ks + 3)
        L.need(ks)
        b = MOP + (ks % 4) * 4
        for pp in range(4):
            d = ACCM + pp * 4
            c = '0' if ks == 0 else f'v[{d}:{d+3}]'
            A(f'v_mfma_f32_16x16x32_bf16 v[{d}:{d+3}], v[{b}:{b+3}], {reg(wreg(ks,pp),4)}, {c}')
    A('s_nop 7')
    A('s_nop 3')
    A('s_lshl_b32 s45, s40, 3')
    A('s_lshl_b32 s50, s20, 1')
    A('s_add_u32 s45, s45, s50')
    A('s_mul_i32 s45, s45, 40')
    A('s_add_u32 s45, s45, s22')
    A('s_lshl_b32 s45, s45, 10')
    A(f's_add_u32 s45, s45, {WS["VOMF"]}')
    A(f's_add_u32 s50, s45, {40*1024}')
    for pp in range(4):
        d = ACCM + pp * 4
        A(f'v_cvt_pk_bf16_f32 v{PK+2*pp}, v{d}, v{d+1}')
        A(f'v_cvt_pk_bf16_f32 v{PK+2*pp+1}, v{d+2}, v{d+3}')
    A('s_mov_b64 exec, s[60:61]')
    for pp in range(4):
        A(f'ds_write_b64 v11, v[{PK+2*pp}:{PK+2*pp+1}] offset:{(pp>>1)*1024 + (pp&1)*512}')
        A(f'buffer_store_dwordx2 v[{PK+2*pp}:{PK+2*pp+1}], v10, s[4:7], s{45 if pp < 2 else 50} offen offset:{(pp&1)*512} sc1')
    A('s_mov_b64 exec, -1')
    A(f'ds_read_b128 v[{VMOP}:{VMOP+3}], v152')
    A(f'ds_read_b128 v[{VMOP+4}:{VMOP+7}], v152 offset:1024')
    A('s_cmp_ge_u32 s40, 3')
    A('s_cbranch_scc1 L_s2_notok')
    tokvo()
    A.label('L_s2_notok')
    A(f's_mul_i32 s45, s40, {PS}')
    A(f's_add_u32 s45, s45, {WS["PB"]}')
    A('s_mul_i32 s50, s20, 5120')
    A('s_add_u32 s45, s45, s50')
    A(f's_add_u32 s50, s45, 2560')
    stamp(A, 3)
    delay(A, 'pd0', D['d0p'])
    A('s_mov_b32 s42, 0')
    A.label('L_s2_ppoll')
    for j in range(4):
        A(f'buffer_load_dwordx4 v[{PT+j*4}:{PT+j*4+3}], v154, s[4:7], s{45 if j < 2 else 50} offen offset:{128 + (j&1)*1280} sc1')
    A(f'buffer_load_dwordx4 v[{PM}:{PM+3}], v155, s[4:7], s45 offen sc1')
    A('s_waitcnt vmcnt(0)')
    regs = list(range(PT, PT + 16)) + list(range(PM, PM + 4))
    A(f'v_max3_u32 v12, v{regs[0]}, v{regs[1]}, v{regs[2]}')
    A(f'v_max3_u32 v13, v{regs[3]}, v{regs[4]}, v{regs[5]}')
    k = 6; tgl = 0
    while k + 1 < 20:
        A(f'v_max3_u32 v{12+tgl}, v{12+tgl}, v{regs[k]}, v{regs[k+1]}')
        k += 2; tgl ^= 1
    A('v_max_u32 v12, v12, v13')
    A('v_cmp_eq_u32 vcc, -1, v12')
    A('s_cbranch_vccz L_s2_pok')
    A('s_add_u32 s42, s42, 1')
    A('s_cmp_lt_u32 s42, s44')
    A('s_cbranch_scc1 L_s2_ppoll')
    A('s_mov_b32 s44, 0')
    A.label('L_s2_pok')
    stamp(A, 4)
    if PROF in (1, 2): A('s_mov_b32 s80, s42')
    A('s_waitcnt lgkmcnt(0)')
    for hh in range(8):
        d = ACC if hh % 2 == 0 else ACCM
        c = '0' if hh < 2 else f'v[{d}:{d+3}]'
        b = PT + (hh // 2) * 4
        A(f'v_mfma_f32_16x16x32_bf16 v[{d}:{d+3}], v[{VT+hh*4}:{VT+hh*4+3}], v[{b}:{b+3}], {c}')
    for hg in range(2):
        d = ACC if hg == 0 else ACCM
        A(f'v_mfma_f32_16x16x32_bf16 v[{d}:{d+3}], v[{VMOP+hg*4}:{VMOP+hg*4+3}], v[{PM}:{PM+3}], v[{d}:{d+3}]')
    A('s_nop 7')
    A('s_nop 3')
    for r in range(4):
        A(f'v_add_f32_dpp v{ACC+r}, v{ACCM+r}, v{ACC+r} row_ror:8 row_mask:0xf bank_mask:0xf')
    A(f'ds_write_b128 v156, v[{ACC}:{ACC+3}] offset:{RED}')
    A('s_waitcnt lgkmcnt(0)')
    stamp(A, 5)
    A('s_barrier')
    A('s_cmp_lg_u32 s20, 0')
    A('s_cbranch_scc1 L_s2_next')
    R0 = ACCM
    for w in range(4):
        A(f'ds_read_b128 v[{R0+4*w}:{R0+3+4*w}], v158 offset:{RED + w*1024}')
    A('s_waitcnt lgkmcnt(2)')
    for r in range(4): A(f'v_add_f32 v{R0+r}, v{R0+r}, v{R0+4+r}')
    A('s_waitcnt lgkmcnt(0)')
    for r in range(4): A(f'v_add_f32 v{R0+8+r}, v{R0+8+r}, v{R0+12+r}')
    for r in range(4): A(f'v_add_f32 v{R0+r}, v{R0+r}, v{R0+8+r}')
    A(f'v_cvt_pk_bf16_f32 v{R0}, v{R0}, v{R0+1}')
    A(f'v_cvt_pk_bf16_f32 v{R0+1}, v{R0+2}, v{R0+3}')
    A(f'v_min_u32 v{R0}, 0xfffffffe, v{R0}')
    A(f'v_min_u32 v{R0+1}, 0xfffffffe, v{R0+1}')
    A('s_add_u32 s45, s40, 1')
    A(f's_mul_i32 s45, s45, {MS}')
    A(f's_add_u32 s45, s45, {WS["MEMB"]}')
    A('s_mov_b64 exec, s[62:63]')
    A(f'buffer_store_dwordx2 v[{R0}:{R0+1}], v159, s[4:7], s45 offen sc1')
    A('s_mov_b64 exec, -1')
    A.label('L_s2_next')
    if int(os.environ.get('B2', '0')): A('s_barrier')
    A('s_cmp_ge_u32 s40, 3')
    A('s_cbranch_scc1 L_s2_vtn')
    tokrd()
    A('s_branch L_s2_vtd')
    A.label('L_s2_vtn')
    A('s_cmp_lt_u32 s40, 11')
    A('s_cselect_b32 s92, 0xffff, -1')
    A('s_cselect_b32 s93, 0, -1')
    flag_check(A, 's2l', 's[92:93]')
    A('s_add_u32 s50, s40, 1')
    A('s_min_u32 s52, s50, 63')
    vt_prefetch(52)
    A.label('L_s2_vtd')
    stamp(A, 6)
    stamp_flush(A, 9, 's2')
    A('s_add_u32 s40, s40, 1')
    A('s_cmp_lt_u32 s40, 64')
    A('s_cbranch_scc1 L_s2_loop')
    A('s_endpgm')
```

```python
from asmlib import *
from layout import WS
from k_post import SCALE, LOG2E

SPIN = 400000
MEMLDS = 0
RED = 10240
WLDS = 17408
TL = 16384
LDS_CHAIN = 65536 + 40960

class Lgkm:
    def __init__(s, A): s.A = A; s.q = []
    def issue(s, tag, text): s.A(text); s.q.append(tag)
    def need(s, tag):
        if tag in s.q:
            i = s.q.index(tag)
            n = len(s.q) - 1 - i
            s.A(f's_waitcnt lgkmcnt({min(n,15)})')
            s.q = s.q[i + 1:]

import os
PROF = int(os.environ.get('PROF', '0'))
def stamp(A, idx):
    if PROF in (1, 2):
        A('s_memrealtime s[98:99]' if PROF == 2 else 's_memtime s[98:99]')
        A('s_waitcnt lgkmcnt(0)')
        A(f's_mov_b32 s{72+idx}, s98')
def stamp_flush(A, n, tag):
    if PROF in (1, 2):
        A(f's_cmp_lg_u32 s40, {int(os.environ.get("PSTEP", "45"))}')
        A(f's_cbranch_scc1 L_{tag}_nofl')
        A('s_lshl_b32 s96, s2, 2')
        A('s_add_u32 s96, s96, s20')
        A('s_lshl_b32 s96, s96, 6')
        A(f's_add_u32 s96, s96, {WS["FLAGS"]}')
        for i in range(n):
            A(f'v_mov_b32 v26, s{72+i}')
            A('v_mov_b32 v27, 0')
            A(f'buffer_store_dword v26, v27, s[4:7], s96 offen offset:{4*i}')
        A(f'L_{tag}_nofl:')

KT = int(os.environ.get('KT', '0'))
XM = int(os.environ.get('XM', '6'))
XP = int(os.environ.get('XP', '14'))
D = {k: int(os.environ.get(k, '18' if k == 'd0p' else '0')) for k in ('d0s1', 'd1s1', 'd0s2', 'd1s2', 'd0p', 'd1p')}
def delay(A, tag, n):
    if n:
        A('; initial back-off of the polling loop below (first poll is issued when data is likely there)')
        A(f's_mov_b32 s43, {n}')
        A(f'L_dl_{tag}:')
        A('s_nop 15')
        A('s_sub_u32 s43, s43, 1')
        A('s_cmp_lg_u32 s43, 0')
        A(f's_cbranch_scc1 L_dl_{tag}')
def tag_poll(A, tag, treg, vtag, sbase, nx, mask=None):
    A('s_mov_b32 s42, 0')
    if mask: A(f's_mov_b64 exec, {mask}')
    for j in range(KT):
        A(f'buffer_load_dword v{treg+j}, v{vtag}, s[4:7], s{sbase} offen sc1')
        if j < KT - 1:
            for _ in range(nx): A('s_nop 15')
    A.label(f'L_{tag}_tag')
    for j in range(KT):
        A(f's_waitcnt vmcnt({KT-1})')
        A(f'v_cmp_eq_u32 vcc, -1, v{treg+j}')
        A(f's_cbranch_vccz L_{tag}_tagok')
        A(f'buffer_load_dword v{treg+j}, v{vtag}, s[4:7], s{sbase} offen sc1')
        for _ in range(nx): A('s_nop 15')
    A('s_add_u32 s42, s42, 1')
    A('s_cmp_lt_u32 s42, s44')
    A(f's_cbranch_scc1 L_{tag}_tag')
    A.label(f'L_{tag}_tagok')
    if mask: A('s_mov_b64 exec, -1')

MS, PS = 10240, 20480
def kflag(A, t):
    A('s_cmp_eq_u32 s59, 0')
    A(f's_cbranch_scc1 L_kfl_{t}')
    A('v_mov_b32 v24, 1')
    A('v_mov_b32 v25, 0')
    A('s_mov_b64 exec, 1')
    A('buffer_store_dword v24, v25, s[4:7], s59 offen sc1')
    A('s_mov_b64 exec, -1')
    A('s_mov_b32 s59, 0')
    A.label(f'L_kfl_{t}')
PUB = RED + 5632
S1MODE = os.environ.get('S1MODE', 'flag')
def gather_mem(A, tag, sstep, extra=None):
    A(f's_mul_i32 s41, s{sstep}, {MS}')
    A(f's_add_u32 s41, s41, {WS["MEMB"]}')
    stamp(A, 0)
    flag = False
    def loads(sc):
        A(f'buffer_load_dwordx4 v[12:15], v4, s[4:7], s41 offen {sc}')
        A(f'buffer_load_dwordx4 v[16:19], v4, s[4:7], s41 offen offset:1024 {sc}')
        A('s_mov_b64 exec, s[60:61]')
        A(f'buffer_load_dwordx4 v[20:23], v4, s[4:7], s41 offen offset:2048 {sc}')
        A('s_mov_b64 exec, -1')
    if flag:
        A(f's_cmp_eq_u32 s{sstep}, 0')
        A(f's_cbranch_scc1 L_{tag}m_tagok2')
        tag_poll(A, tag + 'm', 24, 1, 41, XM, 's[64:65]')
        A.label(f'L_{tag}m_tagok2')
        A('s_mov_b32 s42, 0')
        loads('')
        A(f's_branch L_{tag}_chk')
    else:
        delay(A, tag + 'd0', D['d0' + tag])
        A('s_mov_b32 s42, 0')
    A.label(f'L_{tag}_poll')
    loads('sc1')
    A.label(f'L_{tag}_chk')
    A('s_waitcnt vmcnt(0)')
    if tag == 's1': kflag(A, 'a')
    A('v_max3_u32 v24, v12, v13, v14')
    A('v_max3_u32 v25, v15, v16, v17')
    A('v_max3_u32 v24, v24, v18, v19')
    A('v_max3_u32 v25, v25, v20, v21')
    A('v_max3_u32 v24, v24, v22, v23')
    A('v_max_u32 v24, v24, v25')
    A('v_cmp_eq_u32 vcc, -1, v24')
    A(f's_cbranch_vccz L_{tag}_ok')
    A('s_add_u32 s42, s42, 1')
    A('s_cmp_lt_u32 s42, s44')
    A(f's_cbranch_scc1 L_{tag}_poll')
    A('s_mov_b32 s44, 0')
    A.label(f'L_{tag}_ok')
    stamp(A, 1)
    if PROF in (1, 2): A('s_mov_b32 s79, s42')
    A(f'ds_write_b128 v4, v[12:15] offset:{MEMLDS}')
    A(f'ds_write_b128 v4, v[16:19] offset:{MEMLDS+1024}')
    A('s_mov_b64 exec, s[60:61]')
    A(f'ds_write_b128 v4, v[20:23] offset:{MEMLDS+2048}')
    A('s_mov_b64 exec, -1')
    if extra: extra()
    A('s_waitcnt lgkmcnt(0)')
    A('s_barrier')

from k_mega import TF, gen_worker, gen_pre, wait_row
def flag_issue(A, sreg):
    A(f's_lshr_b32 s45, s{sreg}, 2')
    A('s_lshl_b32 s45, s45, 9')
    A(f's_add_u32 s68, s45, {TF}')
    A('buffer_load_dwordx2 v[20:21], v1, s[4:7], s68 offen sc1')
def flag_check(A, tag, mask=None):
    A('s_mov_b32 s42, 0')
    A.label(f'L_{tag}_fl')
    A('v_and_b32 v20, v20, v21')
    A('v_cmp_ne_u32 vcc, 1, v20')
    if mask: A(f's_and_b64 vcc, vcc, {mask}')
    A(f's_cbranch_vccz L_{tag}_flok')
    A('s_add_u32 s42, s42, 1')
    A('s_cmp_lt_u32 s42, s44')
    A(f's_cbranch_scc0 L_{tag}_flto')
    A('buffer_load_dwordx2 v[20:21], v1, s[4:7], s68 offen sc1')
    A('s_waitcnt vmcnt(0)')
    A(f's_branch L_{tag}_fl')
    A.label(f'L_{tag}_flto')
    A('s_mov_b32 s44, 0')
    A.label(f'L_{tag}_flok')

def dpp_red32(A, op, v, t):
    for c in ['quad_perm:[1,0,3,2]', 'quad_perm:[2,3,0,1]', 'row_half_mirror', 'row_mirror']:
        A('s_nop 1')
        A(f'{op}_dpp v{v}, v{v}, v{v} {c} row_mask:0xf bank_mask:0xf')
    A(f'v_mov_b32 v{t}, v{v}')
    A('s_nop 1')
    A(f'v_permlane16_swap_b32 v{v}, v{t}')
    A('s_nop 1')
    A(f'{op} v{v}, v{v}, v{t}')

def tstep(A, slot=None):
    if PROF != 3: return
    l = A.newlabel('L_ts')
    A('s_or_b32 s96, s2, s20')
    A('s_cmp_lg_u32 s96, 0')
    A(f's_cbranch_scc1 {l}')
    A('s_memrealtime s[98:99]')
    A('s_waitcnt lgkmcnt(0)')
    A('v_mov_b32 v26, s98')
    A('v_mov_b32 v27, 0')
    if slot is None:
        A('s_lshl_b32 s96, s40, 2')
    else:
        A(f's_mov_b32 s96, {slot*4}')
    A(f's_add_u32 s96, s96, {WS["FLAGS"] + 28672}')
    A('buffer_store_dword v26, v27, s[4:7], s96 offen')
    A.label(l)

def ts2(A, k):
    if PROF != 3: return
    l = A.newlabel('L_ts2')
    A('s_cmp_lg_u32 s20, 0')
    A(f's_cbranch_scc1 {l}')
    A('s_memrealtime s[98:99]')
    A('s_waitcnt lgkmcnt(0)')
    A('v_mov_b32 v26, s98')
    A('v_mov_b32 v27, 0')
    A('s_lshl_b32 s96, s2, 5')
    A(f's_add_u32 s96, s96, {WS["FLAGS"] + 57344 + 4*k}')
    A('buffer_store_dword v26, v27, s[4:7], s96 offen')
    A.label(l)

def gen_chain(A):
    name = 'k_chain_kernel'
    kernel_header(A, name)
    A('s_cmp_ge_u32 s2, 256')
    A('s_cbranch_scc1 L_ch_end')
    srds(A, [('ws', 4), ('x', 8), ('Wv', 12)])
    A('v_lshrrev_b32 v1, 6, v0')
    A('s_nop 0')
    A('v_readfirstlane_b32 s20, v1')
    A('v_and_b32 v1, 63, v0')
    A('v_lshlrev_b32 v2, 4, v1')
    A(f's_mov_b32 s44, {SPIN}')
    A('s_mov_b32 s40, 0')
    tstep(A, 65)
    gen_pre(A)
    A('v_and_b32 v1, 63, v0')
    A('v_lshlrev_b32 v2, 4, v1')
    A('s_mul_i32 s21, s20, 2560')
    A('v_add_u32 v4, s21, v2')
    for r in range(20, 24):
        A(f'v_mov_b32 v{r}, 0')
    A(f's_mov_b32 s44, {SPIN}')
    A('s_mov_b32 s60, -1')
    A('s_mov_b32 s61, 0')
    A('s_mov_b32 s62, 0xffff')
    A('s_mov_b32 s63, 0')
    A('s_mov_b32 s64, 0xfffff')
    A('s_mov_b32 s65, 0')
    A('s_mov_b32 s40, 0')
    A('s_cmp_ge_u32 s2, 112')
    A('s_cbranch_scc1 L_ch_w')
    A('s_cmp_ge_u32 s2, 32')
    A('s_cbranch_scc1 L_ch_s2')
    gen_s1(A)
    A.label('L_ch_s2')
    gen_s2(A)
    A.label('L_ch_w')
    gen_worker(A)
    A.label('L_ch_end')
    A('s_endpgm')
    return name, kernel_desc(name, 256, 256), f'; @launch kernel={name} grid=(256,1,1) block=(256,1,1) lds={LDS_CHAIN}'

def gen_s1(A):
    from k_post import rnd2, xred1632
    QT, KT, KFL, WL = 10240, 16384, 22528, 34816
    AR, ACC, WT = 24, 40, 64
    A9 = 12
    KFR = 64
    def wreg(c, t):
        f = c * 6 + t
        return (80 + f * 8) if f < 22 else (256 + (f - 22) * 8)
    A('s_mul_i32 s22, s2, 12')
    A('s_mul_i32 s51, s20, 3')
    A('s_add_u32 s22, s22, s51')
    A(f's_mul_i32 s22, s22, {20*1024}')
    A(f's_add_u32 s22, s22, {WS["WqF"]}')
    KOFF = WS['WkF'] - WS['WqF']
    A(f's_mul_i32 s24, s20, {12*1024}')
    A(f'v_add_u32 v0, s24, v2')
    frs = [(c, t, hf) for c in range(10) for t in range(6) for hf in range(2)]
    def src_off(c, t, hf):
        return (t % 3) * 20 * 1024 + (KOFF if t >= 3 else 0) + (2 * c + hf) * 1024
    inplace = [f for f in frs if f[0] < 9 and wreg(f[0], f[1]) < 256]
    other = [f for f in frs if f not in inplace]
    for (c, t, hf) in inplace:
        r = wreg(c, t) + 4 * hf
        A(f's_add_u32 s23, s22, {src_off(c, t, hf)}')
        A(f'buffer_load_dwordx4 v[{r}:{r+3}], v2, s[4:7], s23 offen')
    def batch_load(fl):
        for n, (c, t, hf) in enumerate(fl):
            r = 12 + 4 * n
            A(f's_add_u32 s23, s22, {src_off(c, t, hf)}')
            A(f'buffer_load_dwordx4 v[{r}:{r+3}], v2, s[4:7], s23 offen')
    def batch_fin(fl):
        for n, (c, t, hf) in enumerate(fl):
            r = 12 + 4 * n
            A(f'v_permlane16_swap_b32 v{r}, v{r+2}')
            A(f'v_permlane16_swap_b32 v{r+1}, v{r+3}')
        A('s_nop 1')
        for n, (c, t, hf) in enumerate(fl):
            r = 12 + 4 * n
            if c < 9:
                d = wreg(c, t) - 256 + 4 * hf
                for q, sr_ in enumerate((0, 2, 1, 3)):
                    A(f'v_accvgpr_write_b32 a{d+q}, v{r+sr_}')
            else:
                A(f'v_swap_b32 v{r+1}, v{r+2}')
                A('s_nop 0')
                A(f'ds_write_b128 v0, v[{r}:{r+3}] offset:{WL + (t*2 + hf)*1024}')
        A('s_waitcnt lgkmcnt(0)')
    batches = [other[i:i+16] for i in range(0, len(other), 16)]
    batch_load(batches[0])
    A('s_waitcnt vmcnt(16)')
    for (c, t, hf) in inplace:
        r = wreg(c, t) + 4 * hf
        A(f'v_permlane16_swap_b32 v{r}, v{r+2}')
        A(f'v_permlane16_swap_b32 v{r+1}, v{r+3}')
        A('s_nop 1')
        A(f'v_swap_b32 v{r+1}, v{r+2}')
    for bi, fl in enumerate(batches):
        if bi > 0: batch_load(fl)
        A('s_waitcnt vmcnt(0)')
        batch_fin(fl)
    for r in range(20, 24):
        A(f'v_mov_b32 v{r}, 0')
    A('v_and_b32 v5, 15, v1')
    A('v_lshrrev_b32 v6, 4, v1')
    A('v_and_b32 v7, 8, v1')
    A('v_cmp_eq_u32 vcc, 0, v7')
    A('v_mov_b32 v3, 0xeeeeeeee')
    A('v_mov_b32 v7, 0x44444444')
    A('v_cndmask_b32 v3, v3, v7, vcc')
    A('v_lshrrev_b32 v7, 2, v5')
    A('v_lshlrev_b32 v7, 4, v7')
    A('v_and_b32 v8, 3, v5')
    A('v_lshlrev_b32 v8, 1, v8')
    A('v_add_u32 v7, v7, v8')
    A('v_and_b32 v8, 1, v6')
    A('v_lshlrev_b32 v8, 8, v8')
    A('v_add_u32 v7, v7, v8')
    A('v_lshrrev_b32 v8, 1, v6')
    A('v_lshlrev_b32 v8, 6, v8')
    A('v_add_u32 v7, v7, v8')
    A('v_lshlrev_b32 v8, 6, v5')
    A('v_lshlrev_b32 v9, 4, v6')
    A('v_add_u32 v8, v8, v9')
    A('v_mov_b32 v11, v8')
    A('v_lshlrev_b32 v8, 7, v6')
    A('v_lshlrev_b32 v9, 4, v5')
    A('v_add_u32 v8, v8, v9')
    A('v_add_u32 v8, 128, v8')
    A('v_lshlrev_b32 v10, 3, v6')
    A('v_add_u32 v9, v9, v10')
    A('v_cmp_gt_u32 vcc, 2, v6')
    A('s_mov_b64 s[48:49], vcc')
    A('s_mov_b32 s66, 0x00ff00ff')
    A('s_mov_b32 s67, 0x00ff00ff')
    A('s_mov_b32 s46, 0x00ff00ff')
    A('s_mov_b32 s47, 0')
    for a in range(3):
        A(f's_add_u32 s50, s51, {a}')
        A('s_lshr_b32 s52, s50, 1')
        A('s_lshl_b32 s52, s52, 10')
        A('s_and_b32 s50, s50, 1')
        A('s_lshl_b32 s50, s50, 3')
        A(f's_add_u32 s{53+a}, s50, s52')
    A('v_add_u32 v5, s53, v7')
    A('v_add_u32 v6, s54, v7')
    A('v_add_u32 v7, s55, v7')
    A(f's_mul_i32 s24, s20, 3072')
    A('v_add_u32 v10, s24, v2')
    A(f's_mov_b32 s58, {SCALE}')
    A(f's_mov_b32 s56, {LOG2E}')
    def kf_prefetch(sreg):
        A(f's_mul_i32 s45, s{sreg}, {2*192*1024}')
        A(f's_mul_i32 s50, s2, {6*1024}')
        A('s_add_u32 s45, s45, s50')
        A(f's_add_u32 s45, s45, {WS["KF"]}')
        A('s_add_u32 s45, s45, s57')
        for a in range(3):
            A(f'buffer_load_dwordx4 v[{KFR+a*4}:{KFR+a*4+3}], v2, s[4:7], s45 offen offset:{a*1024}')
    A('s_cmp_ge_u32 s20, 2')
    A(f's_cselect_b32 s57, {192*1024 - 6*1024}, 0')
    A('s_mul_i32 s24, s20, 3072')
    A('s_add_u32 s57, s57, s24')
    A('v_lshlrev_b32 v1, 3, v1')
    flag_issue(A, 40)
    A('s_waitcnt vmcnt(0)')
    ts2(A, 0)
    A('s_mov_b32 s92, 0xf0000000')
    A('s_mov_b32 s93, -1')
    flag_check(A, 's1i', 's[92:93]')
    kf_prefetch(40)
    A('s_mov_b32 s59, 0')
    A.label('L_s1_loop')
    tstep(A)
    for r in range(24): A(f'v_mov_b32 v{ACC+r}, 0')
    for r in range(20, 24): A(f'v_mov_b32 v{r}, 0')
    def kfw():
        for a in range(3):
            A(f'ds_write_b128 v10, v[{KFR+a*4}:{KFR+a*4+3}] offset:{KFL + a*1024}')
    A('s_add_u32 s50, s40, 1')
    A('s_min_u32 s52, s50, 63')
    A('s_cmp_lt_u32 s52, 12')
    A('s_cselect_b32 s92, 0xf0000000, -1')
    A('s_lshr_b32 s45, s52, 2')
    A('s_lshl_b32 s45, s45, 9')
    A(f's_add_u32 s68, s45, {TF}')
    A('buffer_load_dwordx2 v[76:77], v1, s[4:7], s68 offen sc1')
    A('s_waitcnt vmcnt(1)')
    kfw()
    def kfw2():
        A('v_and_b32 v76, v76, v77')
        A('v_cmp_ne_u32 vcc, 1, v76')
        A('s_and_b64 s[70:71], vcc, s[92:93]')
    gather_mem(A, 's1', 40, extra=kfw2)
    stamp(A, 2)
    L = Lgkm(A)
    def rdA(c):
        b = A9 if c == 9 else AR + (c % 4) * 4
        L.issue(('A', c), f'ds_read_b128 v[{b}:{b+3}], v2 offset:{MEMLDS + c*1024}')
    def rdW(t):
        b = WT + (t % 2) * 8
        L.issue(('W', t, 0), f'ds_read_b128 v[{b}:{b+3}], v0 offset:{WL + t*2048}')
        L.issue(('W', t, 1), f'ds_read_b128 v[{b+4}:{b+7}], v0 offset:{WL + t*2048 + 1024}')
    rdA(0); rdA(1); rdA(9); rdW(0); rdA(2); rdW(1)
    for c in range(9):
        if c + 3 < 9: rdA(c + 3)
        L.need(('A', c))
        b = AR + (c % 4) * 4
        for t in range(6):
            d = ACC + t * 4
            A(f'v_smfmac_f32_16x16x64_bf16 v[{d}:{d+3}], v[{b}:{b+3}], {reg(wreg(c,t),8)}, v3')
        if c < 6:
            L.need(('A', 9)); L.need(('W', c, 1))
            d = ACC + c * 4
            w = WT + (c % 2) * 8
            A(f'v_smfmac_f32_16x16x64_bf16 v[{d}:{d+3}], v[{A9}:{A9+3}], v[{w}:{w+7}], v3')
            if c + 2 < 6: rdW(c + 2)
    A('s_nop 7')
    A('s_nop 3')
    stamp(A, 3)
    for t in range(6):
        d = ACC + t * 4
        A(f'v_permlane32_swap_b32 v{d}, v{d+1}')
        A(f'v_permlane32_swap_b32 v{d+2}, v{d+3}')
    A('s_nop 0')
    for t in range(6):
        d = ACC + t * 4
        A(f'v_add_f32 v{d}, v{d}, v{d+1}')
        A(f'v_add_f32 v{d+2}, v{d+2}, v{d+3}')
        A(f'v_cvt_pk_bf16_f32 v{d}, v{d}, v{d+2}')
        base = QT if t < 3 else KT
        A(f'ds_write_b16 v{5 + t % 3}, v{d} offset:{base}')
        A(f'ds_write_b16_d16_hi v{5 + t % 3}, v{d} offset:{base + 128}')
    A(f's_mul_i32 s45, s40, {PS}')
    A('s_mul_i32 s50, s2, 640')
    A('s_add_u32 s45, s45, s50')
    A(f's_add_u32 s45, s45, {WS["PB"]}')
    A('s_waitcnt lgkmcnt(0)')
    stamp(A, 4)
    A('s_barrier')
    stamp(A, 5)
    A('s_cmp_lg_u32 s20, 0')
    A('s_cbranch_scc1 L_s1_nopub')
    SA = 12
    L = Lgkm(A)
    def rdS(ks):
        b = 24 + (ks % 3) * 16
        L.issue(('q', ks), f'ds_read_b128 v[{b}:{b+3}], v11 offset:{QT + ks*1024}')
        L.issue(('k', ks), f'ds_read_b128 v[{b+4}:{b+7}], v11 offset:{KT + ks*1024}')
        L.issue(('f0', ks), f'ds_read_b128 v[{b+8}:{b+11}], v10 offset:{KFL + ks*1024}')
        L.issue(('f1', ks), f'ds_read_b128 v[{b+12}:{b+15}], v10 offset:{KFL + (6+ks)*1024}')
    rdS(0); rdS(1); rdS(2)
    for ks in range(6):
        b = 24 + (ks % 3) * 16
        for st, tg in enumerate(('k', 'f0', 'f1')):
            L.need((tg, ks))
            d = SA + st * 4
            c = '0' if ks == 0 else f'v[{d}:{d+3}]'
            A(f'v_mfma_f32_16x16x32_bf16 v[{d}:{d+3}], v[{b+4+4*st}:{b+7+4*st}], v[{b}:{b+3}], {c}')
        if ks + 3 < 6: rdS(ks + 3)
    A('s_nop 7')
    A('v_mov_b32 v36, s58')
    A('v_mov_b32 v37, s58')
    A('v_mov_b32 v38, s56')
    A('v_mov_b32 v39, s56')
    vals = list(range(SA, SA + 12))
    A('v_mov_b32 v25, 0xff800000')
    A(f'v_max3_f32 v26, v{vals[0]}, v{vals[1]}, v{vals[2]}')
    A(f'v_max3_f32 v27, v{vals[4]}, v{vals[5]}, v{vals[6]}')
    A(f'v_max_f32 v26, v26, v{vals[3]}')
    A(f'v_max3_f32 v27, v27, v{vals[7]}, v{vals[8]}')
    A('v_cndmask_b32 v26, v25, v26, s[48:49]')
    A(f'v_max3_f32 v27, v27, v{vals[9]}, v{vals[10]}')
    A(f'v_max3_f32 v26, v26, v27, v{vals[11]}')
    for i in range(0, 12, 2):
        A(f'v_cvt_pk_bf16_f32 v{28+i//2}, v{vals[i]}, v{vals[i+1]}')
    A('v_mov_b32 v27, v26')
    for i in range(0, 12, 2):
        A(f'v_lshlrev_b32 v{vals[i]}, 16, v{28+i//2}')
        A(f'v_and_b32 v{vals[i+1]}, 0xffff0000, v{28+i//2}')
    A('v_permlane16_swap_b32 v26, v27')
    for i in range(0, 12, 2):
        A(f'v_pk_mul_f32 v[{vals[i]}:{vals[i+1]}], v[{vals[i]}:{vals[i+1]}], v[36:37]')
    A('v_max_f32 v26, v26, v27')
    for i in range(0, 12, 2):
        A(f'v_cvt_pk_bf16_f32 v{28+i//2}, v{vals[i]}, v{vals[i+1]}')
    A('v_mov_b32 v27, v26')
    for i in range(0, 6, 2):
        A(f'v_lshlrev_b32 v{vals[i]}, 16, v{28+i//2}')
        A(f'v_and_b32 v{vals[i+1]}, 0xffff0000, v{28+i//2}')
    A('v_permlane32_swap_b32 v26, v27')
    for i in range(6, 12, 2):
        A(f'v_lshlrev_b32 v{vals[i]}, 16, v{28+i//2}')
        A(f'v_and_b32 v{vals[i+1]}, 0xffff0000, v{28+i//2}')
    A('v_max_f32 v26, v26, v27')
    A('v_cvt_pk_bf16_f32 v27, v26, v26')
    A('v_lshlrev_b32 v26, 16, v27')
    A('v_mul_f32 v26, s58, v26')
    A('v_cvt_pk_bf16_f32 v27, v26, v26')
    A('v_lshlrev_b32 v26, 16, v27')
    A('v_mul_f32 v26, s56, v26')
    A('v_xor_b32 v26, 0x80000000, v26')
    A('v_mov_b32 v27, v26')
    for i in range(0, 12, 2):
        A(f'v_pk_fma_f32 v[{vals[i]}:{vals[i+1]}], v[{vals[i]}:{vals[i+1]}], v[38:39], v[26:27]')
    for v in vals:
        A(f'v_exp_f32 v{v}, v{v}')
    A('s_nop 0')
    for r in range(4):
        A(f'v_cndmask_b32 v{vals[r]}, 0, v{vals[r]}, s[48:49]')
    A(f'v_pk_add_f32 v[26:27], v[{vals[4]}:{vals[5]}], v[{vals[6]}:{vals[7]}]')
    A(f'v_pk_add_f32 v[34:35], v[{vals[8]}:{vals[9]}], v[{vals[10]}:{vals[11]}]')
    A(f'v_pk_add_f32 v[26:27], v[26:27], v[{vals[0]}:{vals[1]}]')
    A(f'v_pk_add_f32 v[34:35], v[34:35], v[{vals[2]}:{vals[3]}]')
    A('v_pk_add_f32 v[26:27], v[26:27], v[34:35]')
    A('v_add_f32 v26, v26, v27')
    xred1632(A, 'v_add_f32', 26, 27)
    A('v_rcp_f32 v26, v26')
    A('s_nop 0')
    A('v_mov_b32 v27, v26')
    for i in range(0, 12, 2):
        A(f'v_pk_mul_f32 v[{vals[i]}:{vals[i+1]}], v[{vals[i]}:{vals[i+1]}], v[26:27]')
    for i in range(6):
        src = vals[4 + 2 * i] if i < 4 else vals[2 * (i - 4)]
        A(f'v_cvt_pk_bf16_f32 v{28+i}, v{src}, v{src+1}')
    A('s_mov_b64 exec, s[66:67]')
    A('buffer_store_dwordx4 v[28:31], v8, s[4:7], s45 offen sc1')
    A('s_mov_b64 exec, s[46:47]')
    A('buffer_store_dwordx2 v[32:33], v9, s[4:7], s45 offen sc1')
    A('s_mov_b64 exec, -1')
    A('s_branch L_s1_pubd')
    A.label('L_s1_nopub')
    A('s_sub_u32 s50, s20, 1')
    A('s_lshl_b32 s50, s50, 11')
    A('v_add_u32 v24, s50, v11')
    A(f'ds_read_b128 v[28:31], v24 offset:{KT}')
    A(f'ds_read_b128 v[32:35], v24 offset:{KT + 1024}')
    A('v_add_u32 v24, s50, v2')
    A('s_lshl_b32 s45, s40, 5')
    A('s_add_u32 s45, s45, s2')
    A(f's_mul_i32 s45, s45, {6*1024}')
    A(f's_add_u32 s45, s45, {WS["KMF"]}')
    A('s_waitcnt lgkmcnt(0)')
    A('buffer_store_dwordx4 v[28:31], v24, s[4:7], s45 offen sc1')
    A('buffer_store_dwordx4 v[32:35], v24, s[4:7], s45 offen offset:1024 sc1')
    A('s_lshl_b32 s59, s40, 9')
    A('s_lshl_b32 s50, s2, 4')
    A('s_add_u32 s59, s59, s50')
    A('s_lshl_b32 s50, s20, 2')
    A('s_add_u32 s59, s59, s50')
    A(f's_add_u32 s59, s59, {WS["TF3"]}')
    A.label('L_s1_pubd')
    stamp(A, 6)
    A('s_cmp_eq_u64 s[70:71], 0')
    A('s_cbranch_scc1 L_s1_flgood')
    A('buffer_load_dwordx2 v[20:21], v1, s[4:7], s68 offen sc1')
    A('s_waitcnt vmcnt(0)')
    flag_check(A, 's1l', 's[92:93]')
    A.label('L_s1_flgood')
    A('s_add_u32 s50, s40, 1')
    A('s_min_u32 s52, s50, 63')
    kf_prefetch(52)
    A('v_xor_b32 v10, 0x8000, v10')
    stamp_flush(A, 8, 's1')
    A('s_add_u32 s40, s40, 1')
    A('s_cmp_lt_u32 s40, 64')
    A('s_cbranch_scc1 L_s1_loop')
    tstep(A)
    A('s_waitcnt vmcnt(0)')
    kflag(A, 'b')
    A('s_endpgm')

def gen_s2(A):
    PT, PM, VT, MOP, ACCM, ACC, VMOP, PK = 24, 56, 64, 96, 112, 128, 132, 140
    def wreg(ks, pp):
        f = ks * 4 + pp
        return (192 + f * 4) if f < 16 else (256 + (f - 16) * 4)
    ts2(A, 0)
    for r in range(20, 24):
        A(f'v_mov_b32 v{r}, 0')
    A('s_sub_u32 s21, s2, 32')
    A('s_lshr_b32 s22, s21, 1')
    A('s_and_b32 s23, s21, 1')
    A('v_and_b32 v5, 15, v1')
    A('v_lshrrev_b32 v6, 4, v1')
    A('v_and_b32 v7, 7, v1')
    A('v_lshrrev_b32 v8, 3, v5')
    A('s_lshl_b32 s24, s23, 3')
    A('v_lshlrev_b32 v9, 4, v6')
    A('v_add_u32 v9, v9, v7')
    A('v_add_u32 v9, s24, v9')
    A('v_lshlrev_b32 v9, 4, v9')
    A(f'v_mul_u32_u24 v10, {40*1024}, v8')
    A('v_add_u32 v9, v9, v10')
    A('s_lshl_b32 s24, s20, 3')
    A('s_mul_i32 s24, s24, 40')
    A('s_add_u32 s24, s24, s22')
    A('s_lshl_b32 s24, s24, 10')
    A(f's_add_u32 s24, s24, {WS["WVOF"]}')
    A('v_min_u32 v22, 39, v1')
    A('v_lshlrev_b32 v22, 2, v22')
    A('s_mul_i32 s68, s20, 160')
    A(f's_add_u32 s68, s68, {TF + 17*512}')
    A('s_mov_b32 s42, 0')
    A.label('L_s2w_fl')
    A('buffer_load_dword v20, v22, s[4:7], s68 offen sc1')
    A('s_waitcnt vmcnt(0)')
    A('v_cmp_ne_u32 vcc, 1, v20')
    A('s_cbranch_vccz L_s2w_ok')
    A('s_add_u32 s42, s42, 1')
    A('s_cmp_lt_u32 s42, s44')
    A('s_cbranch_scc1 L_s2w_fl')
    A('s_mov_b32 s44, 0')
    A.label('L_s2w_ok')
    for ks in range(20):
        for pp in range(4):
            r = wreg(ks, pp)
            A(f's_add_u32 s25, s24, {(ks*32 + 2*pp)*40*1024}')
            A(f'buffer_load_dwordx4 {reg(r,4)}, v9, s[4:7], s25 offen')
    ts2(A, 1)
    A('v_lshrrev_b32 v9, 1, v6')
    A('v_lshlrev_b32 v9, 7, v9')
    A('v_lshlrev_b32 v10, 4, v7')
    A('v_add_u32 v9, v9, v10')
    A('v_and_b32 v10, 1, v6')
    A('v_lshlrev_b32 v10, 3, v10')
    A('v_add_u32 v9, v9, v10')
    MB = [9, 148, 149, 150, 151]
    for j in range(1, 5):
        A(f'v_add_u32 v{MB[j]}, {2048*j}, v9')
    A('v_lshlrev_b32 v10, 8, v8')
    A('s_lshl_b32 s24, s23, 3')
    A('v_add_u32 v11, s24, v7')
    A('v_lshlrev_b32 v11, 4, v11')
    A('v_add_u32 v10, v10, v11')
    A('v_lshlrev_b32 v11, 3, v6')
    A('v_add_u32 v10, v10, v11')
    A('s_lshl_b32 s24, s20, 11')
    A(f's_add_u32 s24, s24, {TL}')
    A('v_add_u32 v11, s24, v10')
    A('v_add_u32 v152, s24, v2')
    A('v_lshlrev_b32 v153, 4, v7')
    A('v_lshlrev_b32 v154, 7, v6')
    A('v_add_u32 v154, v154, v153')
    A('v_mul_u32_u24 v155, 640, v6')
    A('v_add_u32 v155, v155, v153')
    A('v_mul_u32_u24 v153, 640, v8')
    A('v_add_u32 v154, v154, v153')
    A('v_mul_u32_u24 v153, 2560, v8')
    A('v_add_u32 v155, v155, v153')
    A('s_mov_b32 s66, 0x00ff00ff')
    A('s_mov_b32 s67, 0x00ff00ff')
    for r in range(PT, PT + 40): A(f'v_mov_b32 v{r}, 0')
    for r in range(164, 192): A(f'v_mov_b32 v{r}, 0')
    A('s_lshl_b32 s24, s20, 10')
    A('v_add_u32 v156, s24, v2')
    A('v_and_b32 v157, 1, v8')
    A('s_lshl_b32 s24, s23, 1')
    A('v_add_u32 v158, s24, v157')
    A('v_lshlrev_b32 v158, 4, v158')
    A('v_add_u32 v158, v158, v7')
    A('v_lshlrev_b32 v158, 4, v158')
    A('s_lshr_b32 s24, s22, 1')
    A('s_lshl_b32 s24, s24, 9')
    A('s_and_b32 s25, s22, 1')
    A('s_lshl_b32 s25, s25, 1')
    A('s_add_u32 s25, s25, s23')
    A('s_lshl_b32 s25, s25, 7')
    A('s_add_u32 s24, s24, s25')
    A('v_lshlrev_b32 v159, 4, v7')
    A('v_lshlrev_b32 v157, 3, v157')
    A('v_add_u32 v159, v159, v157')
    A('v_add_u32 v159, s24, v159')
    for r in range(4): A(f'v_mov_b32 v{PK+r}, 0')
    A(f'ds_write_b128 v152, v[{PK}:{PK+3}]')
    A(f'ds_write_b128 v152, v[{PK}:{PK+3}] offset:1024')
    def vt_prefetch(sreg):
        A(f's_lshl_b32 s45, s{sreg}, 5')
        A('s_lshl_b32 s50, s20, 3')
        A('s_add_u32 s45, s45, s50')
        A('s_mul_i32 s45, s45, 40')
        A('s_add_u32 s45, s45, s22')
        A('s_lshl_b32 s45, s45, 10')
        A(f's_add_u32 s45, s45, {WS["VOF"]}')
        for hh in range(8):
            A(f'buffer_load_dwordx4 v[{VT+hh*4}:{VT+hh*4+3}], v2, s[4:7], s45 offen')
            if hh < 7: A(f's_add_u32 s45, s45, {40*1024}')
    T2 = 32768
    A('v_lshlrev_b32 v160, 10, v8')
    A('v_lshlrev_b32 v161, 8, v6')
    A('v_add_u32 v160, v160, v161')
    A('s_lshl_b32 s24, s23, 3')
    A('v_add_u32 v161, s24, v7')
    A('v_lshlrev_b32 v161, 4, v161')
    A('v_add_u32 v160, v160, v161')
    A('s_lshl_b32 s24, s20, 13')
    A(f's_add_u32 s24, s24, {T2}')
    A('v_add_u32 v160, s24, v160')
    A('v_add_u32 v161, s24, v2')
    A('v_lshrrev_b32 v162, 1, v6')
    A('v_lshlrev_b32 v162, 8, v162')
    A('v_lshlrev_b32 v163, 4, v5')
    A('v_add_u32 v162, v162, v163')
    A('v_and_b32 v163, 1, v6')
    A('v_lshlrev_b32 v163, 3, v163')
    A('v_add_u32 v162, v162, v163')
    STG = 65536
    SR = [164, 168, 172, 176, 180, 184, 188, 128, 132, 136]
    A(f's_mul_i32 s24, s20, {10*1024}')
    A(f's_add_u32 s24, s24, {STG}')
    A('v_add_u32 v163, s24, v2')
    A(f'v_add_u32 v162, {STG}, v162')
    def stage_ld(sreg):
        A(f's_mul_i32 s45, s{sreg}, {40*1024}')
        A(f's_mul_i32 s50, s20, {10*1024}')
        A('s_add_u32 s45, s45, s50')
        A(f's_add_u32 s45, s45, {WS["H1F"]}')
        for f in range(10):
            b = SR[f]
            A(f'buffer_load_dwordx4 v[{b}:{b+3}], v2, s[4:7], s45 offen offset:{(f%4)*1024}')
            if f % 4 == 3: A('s_add_u32 s45, s45, 4096')
    def stage_wr():
        for f in range(10):
            b = SR[f]
            A(f'ds_write_b128 v163, v[{b}:{b+3}] offset:{f*1024}')
    def tokvo():
        L = Lgkm(A)
        def rd(f):
            b = MOP + (f % 4) * 4
            L.issue((f, 0), f'ds_read_b64 v[{b}:{b+1}], v162 offset:{f*1024}')
            L.issue((f, 1), f'ds_read_b64 v[{b+2}:{b+3}], v162 offset:{f*1024 + 512}')
        for f in range(3): rd(f)
        for f in range(40):
            tt, ks = f // 20, f % 20
            if f + 3 < 40: rd(f + 3)
            L.need((f, 1))
            b = MOP + (f % 4) * 4
            for pp in range(4):
                d = ACCM + pp * 4
                c = '0' if ks == 0 else f'v[{d}:{d+3}]'
                A(f'v_mfma_f32_16x16x32_bf16 v[{d}:{d+3}], v[{b}:{b+3}], {reg(wreg(ks,pp),4)}, {c}')
            if ks == 19:
                A('s_nop 7')
                A('s_nop 7')
                for pp in range(4):
                    d = ACCM + pp * 4
                    A(f'v_cvt_pk_bf16_f32 v{PK+2*pp}, v{d}, v{d+1}')
                    A(f'v_cvt_pk_bf16_f32 v{PK+2*pp+1}, v{d+2}, v{d+3}')
                for pp in range(4):
                    L.issue(('w', tt, pp), f'ds_write_b64 v160, v[{PK+2*pp}:{PK+2*pp+1}] offset:{pp*2048 + tt*8}')
                A('s_nop 1')
    def tokrd():
        A('s_waitcnt lgkmcnt(0)')
        for hh in range(8):
            A(f'ds_read_b128 v[{VT+hh*4}:{VT+hh*4+3}], v161 offset:{hh*1024}')
    A('v_lshlrev_b32 v1, 3, v1')
    stage_ld(40)
    A('s_waitcnt vmcnt(0) lgkmcnt(0)')
    ts2(A, 2)
    stage_wr()
    A('s_waitcnt lgkmcnt(0)')
    A('s_barrier')
    tokvo()
    tokrd()
    A('s_waitcnt vmcnt(0) lgkmcnt(0)')
    ts2(A, 3)
    A.label('L_s2_loop')
    A('s_cmp_ge_u32 s40, 3')
    A('s_cbranch_scc1 L_s2_nost')
    A('s_add_u32 s51, s40, 1')
    stage_ld(51)
    A.label('L_s2_nost')
    def stw():
        A('s_cmp_ge_u32 s40, 3')
        A('s_cbranch_scc1 L_s2_nosw')
        stage_wr()
        A.label('L_s2_nosw')
    gather_mem(A, 's2', 40, extra=stw)
    stamp(A, 2)
    A('s_add_u32 s50, s40, 1')
    A('s_min_u32 s52, s50, 63')
    flag_issue(A, 52)
    L = Lgkm(A)
    def rd(ks):
        b = MOP + (ks % 4) * 4
        L.issue(ks, f'ds_read2_b64 v[{b}:{b+3}], v{MB[ks//4]} offset0:{(ks%4)*64} offset1:{(ks%4)*64+32}')
    for ks in range(3): rd(ks)
    for ks in range(20):
        if ks + 3 < 20: rd(ks + 3)
        L.need(ks)
        b = MOP + (ks % 4) * 4
        for pp in range(4):
            d = ACCM + pp * 4
            c = '0' if ks == 0 else f'v[{d}:{d+3}]'
            A(f'v_mfma_f32_16x16x32_bf16 v[{d}:{d+3}], v[{b}:{b+3}], {reg(wreg(ks,pp),4)}, {c}')
    A('s_nop 7')
    A('s_nop 3')
    A('s_lshl_b32 s45, s40, 3')
    A('s_lshl_b32 s50, s20, 1')
    A('s_add_u32 s45, s45, s50')
    A('s_mul_i32 s45, s45, 40')
    A('s_add_u32 s45, s45, s22')
    A('s_lshl_b32 s45, s45, 10')
    A(f's_add_u32 s45, s45, {WS["VOMF"]}')
    A(f's_add_u32 s50, s45, {40*1024}')
    for pp in range(4):
        d = ACCM + pp * 4
        A(f'v_cvt_pk_bf16_f32 v{PK+2*pp}, v{d}, v{d+1}')
        A(f'v_cvt_pk_bf16_f32 v{PK+2*pp+1}, v{d+2}, v{d+3}')
    A('s_mov_b64 exec, s[60:61]')
    for pp in range(4):
        A(f'ds_write_b64 v11, v[{PK+2*pp}:{PK+2*pp+1}] offset:{(pp>>1)*1024 + (pp&1)*512}')
        A(f'buffer_store_dwordx2 v[{PK+2*pp}:{PK+2*pp+1}], v10, s[4:7], s{45 if pp < 2 else 50} offen offset:{(pp&1)*512} sc1')
    A('s_mov_b64 exec, -1')
    A(f'ds_read_b128 v[{VMOP}:{VMOP+3}], v152')
    A(f'ds_read_b128 v[{VMOP+4}:{VMOP+7}], v152 offset:1024')
    A('s_cmp_ge_u32 s40, 3')
    A('s_cbranch_scc1 L_s2_notok')
    tokvo()
    A.label('L_s2_notok')
    A(f's_mul_i32 s45, s40, {PS}')
    A(f's_add_u32 s45, s45, {WS["PB"]}')
    A('s_mul_i32 s50, s20, 5120')
    A('s_add_u32 s45, s45, s50')
    A(f's_add_u32 s50, s45, 2560')
    stamp(A, 3)
    delay(A, 'pd0', D['d0p'])
    A('s_mov_b32 s42, 0')
    A.label('L_s2_ppoll')
    for j in range(4):
        A(f'buffer_load_dwordx4 v[{PT+j*4}:{PT+j*4+3}], v154, s[4:7], s{45 if j < 2 else 50} offen offset:{128 + (j&1)*1280} sc1')
    A(f'buffer_load_dwordx4 v[{PM}:{PM+3}], v155, s[4:7], s45 offen sc1')
    A('s_waitcnt vmcnt(0)')
    regs = list(range(PT, PT + 16)) + list(range(PM, PM + 4))
    A(f'v_max3_u32 v12, v{regs[0]}, v{regs[1]}, v{regs[2]}')
    A(f'v_max3_u32 v13, v{regs[3]}, v{regs[4]}, v{regs[5]}')
    k = 6; tgl = 0
    while k + 1 < 20:
        A(f'v_max3_u32 v{12+tgl}, v{12+tgl}, v{regs[k]}, v{regs[k+1]}')
        k += 2; tgl ^= 1
    A('v_max_u32 v12, v12, v13')
    A('v_cmp_eq_u32 vcc, -1, v12')
    A('s_cbranch_vccz L_s2_pok')
    A('s_add_u32 s42, s42, 1')
    A('s_cmp_lt_u32 s42, s44')
    A('s_cbranch_scc1 L_s2_ppoll')
    A('s_mov_b32 s44, 0')
    A.label('L_s2_pok')
    stamp(A, 4)
    if PROF in (1, 2): A('s_mov_b32 s80, s42')
    A('s_waitcnt lgkmcnt(0)')
    for hh in range(8):
        d = ACC if hh % 2 == 0 else ACCM
        c = '0' if hh < 2 else f'v[{d}:{d+3}]'
        b = PT + (hh // 2) * 4
        A(f'v_mfma_f32_16x16x32_bf16 v[{d}:{d+3}], v[{VT+hh*4}:{VT+hh*4+3}], v[{b}:{b+3}], {c}')
    for hg in range(2):
        d = ACC if hg == 0 else ACCM
        A(f'v_mfma_f32_16x16x32_bf16 v[{d}:{d+3}], v[{VMOP+hg*4}:{VMOP+hg*4+3}], v[{PM}:{PM+3}], v[{d}:{d+3}]')
    A('s_nop 7')
    A('s_nop 3')
    for r in range(4):
        A(f'v_add_f32_dpp v{ACC+r}, v{ACCM+r}, v{ACC+r} row_ror:8 row_mask:0xf bank_mask:0xf')
    A(f'ds_write_b128 v156, v[{ACC}:{ACC+3}] offset:{RED}')
    A('s_waitcnt lgkmcnt(0)')
    stamp(A, 5)
    A('s_barrier')
    A('s_cmp_lg_u32 s20, 0')
    A('s_cbranch_scc1 L_s2_next')
    R0 = ACCM
    for w in range(4):
        A(f'ds_read_b128 v[{R0+4*w}:{R0+3+4*w}], v158 offset:{RED + w*1024}')
    A('s_waitcnt lgkmcnt(2)')
    for r in range(4): A(f'v_add_f32 v{R0+r}, v{R0+r}, v{R0+4+r}')
    A('s_waitcnt lgkmcnt(0)')
    for r in range(4): A(f'v_add_f32 v{R0+8+r}, v{R0+8+r}, v{R0+12+r}')
    for r in range(4): A(f'v_add_f32 v{R0+r}, v{R0+r}, v{R0+8+r}')
    A(f'v_cvt_pk_bf16_f32 v{R0}, v{R0}, v{R0+1}')
    A(f'v_cvt_pk_bf16_f32 v{R0+1}, v{R0+2}, v{R0+3}')
    A(f'v_min_u32 v{R0}, 0xfffffffe, v{R0}')
    A(f'v_min_u32 v{R0+1}, 0xfffffffe, v{R0+1}')
    A('s_add_u32 s45, s40, 1')
    A(f's_mul_i32 s45, s45, {MS}')
    A(f's_add_u32 s45, s45, {WS["MEMB"]}')
    A('s_mov_b64 exec, s[62:63]')
    A(f'buffer_store_dwordx2 v[{R0}:{R0+1}], v159, s[4:7], s45 offen sc1')
    A('s_mov_b64 exec, -1')
    A.label('L_s2_next')
    if int(os.environ.get('B2', '0')): A('s_barrier')
    A('s_cmp_ge_u32 s40, 3')
    A('s_cbranch_scc1 L_s2_vtn')
    tokrd()
    A('s_branch L_s2_vtd')
    A.label('L_s2_vtn')
    A('s_cmp_lt_u32 s40, 11')
    A('s_cselect_b32 s92, 0xffff, -1')
    A('s_cselect_b32 s93, 0, -1')
    flag_check(A, 's2l', 's[92:93]')
    A('s_add_u32 s50, s40, 1')
    A('s_min_u32 s52, s50, 63')
    vt_prefetch(52)
    A.label('L_s2_vtd')
    stamp(A, 6)
    stamp_flush(A, 9, 's2')
    A('s_add_u32 s40, s40, 1')
    A('s_cmp_lt_u32 s40, 64')
    A('s_cbranch_scc1 L_s2_loop')
    A('s_endpgm')
```
